```python
import torch

def _softmax(x, axis=-1):
    return torch.softmax(x, dim=axis)
def _gelu(x):
    return torch.nn.functional.gelu(x, approximate="tanh")
def _silu(x):
    return torch.nn.functional.silu(x)
def _sigmoid(x):
    return torch.sigmoid(x)
def _layernorm(x, axis=-1, eps=1e-5):
    m = x.mean(dim=axis, keepdim=True)
    v = x.var(dim=axis, keepdim=True, unbiased=False)
    return (x - m) / torch.sqrt(v + eps)
def _scatter_add(tgt, idx, src, axis=0):
    return tgt.clone().index_add_(axis, idx, src)
def _segment_sum(src, seg, n):
    out = torch.zeros((n,) + src.shape[1:], dtype=src.dtype)
    return out.index_add_(0, seg, src)
def _pad(x, pw):
    flat = tuple(v for pair in reversed(pw) for v in pair)
    return torch.nn.functional.pad(x, flat)

kernel_name = 'gated_mix__spectral_gfnet__linear_attn_block__prompt'

def setup_inputs():

    _w = (lambda a: (lambda t: t.to(torch.bfloat16) if t.is_floating_point() else t)(torch.as_tensor(a)))
    def _A_setup():
        B, S, D = 1, 2048, 512
        Df = D // 2 + 1
        return {
            "x": _w((lambda *s: torch.randn(*s, dtype=torch.bfloat16) * 0.05)(B, S, D)),
            "w_r": _w((lambda *s: torch.randn(*s, dtype=torch.bfloat16) * 1.6)(S, Df) * 0.02),
            "w_i": _w((lambda *s: torch.randn(*s, dtype=torch.bfloat16) * 1.6)(S, Df) * 0.02),
        }
    _A_in = _A_setup()

    def _B_setup():
        B, S, D = 1, 2048, 512
        return {
            "x": _w((lambda *s: torch.randn(*s, dtype=torch.bfloat16) * 0.05)(B, S, D)),
            "wqkv": _w((lambda *s: torch.randn(*s, dtype=torch.bfloat16) * 0.4)(D, 3 * D)),
            "wo": _w((lambda *s: torch.randn(*s, dtype=torch.bfloat16) * 0.05)(D, D)),
        }
    _B_in = _B_setup()

    return {
        "A_x": _A_in["x"],
        "A_w_r": _A_in["w_r"],
        "A_w_i": _A_in["w_i"],
        "B_x": _B_in["x"],
        "B_wqkv": _B_in["wqkv"],
        "B_wo": _B_in["wo"],
        "gate_w": _w((lambda *s: torch.randn(*s, dtype=torch.bfloat16) * 0.05)(512) * 16.0),
    }

def reference(A_x, A_w_r, A_w_i, B_x, B_wqkv, B_wo, gate_w):
    def _A_ref(x, w_r, w_i):
        B, S, D = x.shape
        X = (lambda x, axes=(-2,-1): torch.fft.rfft2(x.float(), dim=axes))(x, axes=(-2, -1))
        W = w_r + 1j * w_i
        X = X * W
        y = (lambda x, s, axes=(-2,-1): torch.fft.irfft2(x, s=s, dim=axes).to(torch.bfloat16))(X, (S, D), axes=(-2, -1))
        return y

    def _B_ref(x, wqkv, wo):
        B, S, D = x.shape
        H = 32; Dh = D // H
        qkv = (lambda x, *d: x.permute(*d))((x @ wqkv).reshape(B, S, 3, H, Dh), 2, 0, 3, 1, 4)
        q, k, v = qkv[0], qkv[1], qkv[2]
        phi = lambda t: torch.where(t > 0, t + 1, torch.exp(t)) + 1e-6
        pq, pk = phi(q), phi(k)
        kv = torch.einsum("bhsd,bhse->bhde", pk, v)
        z = torch.einsum("bhsd->bhd", pk)
        num = torch.einsum("bhqd,bhde->bhqe", pq, kv)
        den = torch.einsum("bhqd,bhd->bhq", pq, z)[..., None] + 1e-6
        o = num / den
        return (lambda x, *d: x.permute(*d))(o, 0, 2, 1, 3).reshape(B, S, D) @ wo

    x = A_x
    g = _sigmoid((x * gate_w).sum(-1, keepdims=True))
    a = _A_ref(x, A_w_r, A_w_i)
    b = _B_ref(x, B_wqkv, B_wo)
    return g * a + (1 - g) * b
```

```python
import re
TRANS = ('v_exp_f32','v_log_f32','v_rcp_f32','v_rsq_f32','v_sqrt_f32','v_sin_f32','v_cos_f32','v_rcp_iflag_f32')
def _regs(tok):
    tok = tok.strip()
    tok = re.sub(r'^-', '', tok)
    m = re.match(r'^(?:abs\(|\|)(.*?)(?:\)|\|)$', tok)
    if m: tok = m.group(1)
    m = re.match(r'^([vsa])(\d+)$', tok)
    if m: return {(m.group(1), int(m.group(2)))}
    m = re.match(r'^([vsa])\[(\d+):(\d+)\]$', tok)
    if m: return {(m.group(1), i) for i in range(int(m.group(2)), int(m.group(3))+1)}
    if tok in ('vcc','vcc_lo','vcc_hi'): return {('s','vcc')}
    if tok in ('exec','exec_lo','exec_hi'): return {('s','exec')}
    if tok == 'm0': return {('s','m0')}
    return set()
class Ins:
    def __init__(self, text):
        self.text = text
        t = text.split(';')[0].strip()
        parts = t.split(None, 1)
        self.mn = parts[0]
        rest = parts[1] if len(parts) > 1 else ''
        toks = [x.strip() for x in rest.split(',')]
        ops = []
        self.mods = ''
        for i, x in enumerate(toks):
            if not x: continue
            sp = x.split()
            ops.append(sp[0])
            if len(sp) > 1: self.mods += ' ' + ' '.join(sp[1:])
        self.ops = ops
        mn = self.mn
        self.is_mfma = mn.startswith('v_mfma')
        self.is_valu = mn.startswith('v_') and not self.is_mfma
        self.is_salu = mn.startswith('s_')
        self.is_ds = mn.startswith('ds_')
        self.is_vmem = mn.startswith(('buffer_','global_','flat_'))
        self.is_trans = any(mn.startswith(x) for x in TRANS)
        self.is_dpp = ('row_' in self.mods or 'quad_perm' in self.mods or 'wave_' in self.mods or 'row_' in rest or 'quad_perm' in rest)
        self.is_lds_dma = self.is_vmem and (' lds' in (' '+self.mods) or '_lds_' in mn)
        R = [_regs(o) for o in ops]
        self.allregs = set().union(*R) if R else set()
        self.defs = set(); self.uses = set()
        if self.is_mfma:
            self.D, self.A, self.B, self.C = R[0], R[1], R[2], R[3]
            self.defs = R[0]; self.uses = R[1] | R[2] | R[3]
            self.passes = 8 if '32x32' in mn else 4
        elif self.is_valu:
            self.defs = set(R[0]); self.uses = set().union(*R[1:]) if len(R) > 1 else set()
            if mn.startswith(('v_add_co','v_sub_co','v_addc_co','v_subb_co','v_div_scale','v_mad_u64')):
                self.defs |= R[1]
            if mn.startswith(('v_fmac','v_pk_fmac','v_dot2c','v_writelane')): self.uses |= R[0]
            if mn.startswith('v_permlane') and 'swap' in mn: self.defs |= R[1]; self.uses |= R[0]
            if mn.startswith('v_cndmask') and len(ops) == 3: self.uses |= {('s','vcc')}
            if mn.startswith('v_cmpx'): self.defs |= {('s','exec')}
            if self.is_dpp: self.uses |= R[0]
        elif self.is_salu:
            if mn.startswith(('s_cmp','s_cbranch','s_branch','s_waitcnt','s_nop','s_barrier','s_endpgm','s_sleep','s_setprio','s_bitcmp')):
                self.uses = self.allregs
            else:
                self.defs = set(R[0]) if R else set(); self.uses = set().union(*R[1:]) if len(R) > 1 else set()
        else:
            self.uses = self.allregs
        self.store_data = set()
        if self.is_vmem and 'store' in mn and ('x3' in mn or 'x4' in mn):
            self.store_data = R[0] if mn.startswith('buffer') else R[1]
        self.states = 1
        if mn == 's_nop': self.states = int(ops[0], 0) + 1
def vonly(s): return {r for r in s if r[0] in 'va'}
def sonly(s): return {r for r in s if r[0] == 's'}
def need(P, C):
    n = 0
    if P.is_valu:
        pv = vonly(P.defs); ps = sonly(P.defs)
        if C.is_mfma and pv & C.uses: n = max(n, 2)
        if C.is_valu:
            if P.is_trans and not C.is_trans and pv & C.uses: n = max(n, 1)
            if ps & C.uses: n = max(n, 4 if C.mn.startswith(('v_readlane','v_writelane','v_div_fmas')) else 2)
            if C.mn.startswith(('v_readlane','v_readfirstlane')) and pv & C.uses: n = max(n, 1)
            if (C.is_dpp or C.mn.startswith('v_permlane')) and pv & C.uses: n = max(n, 2)
            if ('s','exec') in ps: n = max(n, 5)
            if ('op_sel' in P.mods and not P.mn.startswith('v_pk') or 'dst_sel' in P.mods) and pv & (C.uses|C.defs): n = max(n, 1)
        if C.is_vmem and ps & C.uses: n = max(n, 5)
        if C.is_salu and ps & C.uses: n = max(n, 2)
        if C.is_mfma and ('s','exec') in ps: n = max(n, 4)
        if P.mn.startswith('v_dot') and (C.is_valu or C.is_mfma or C.is_vmem or C.is_ds) and pv & (C.uses | C.defs):
            if not (C.mn == P.mn and not (pv & (_regs(C.ops[1]) | _regs(C.ops[2])))): n = max(n, 3)
    if P.is_mfma:
        big = P.passes == 8
        if C.is_mfma:
            if P.D & (C.A | C.B): n = max(n, 12 if big else 8)
            if P.D & C.C and not (P.D == C.C and P.passes == C.passes): n = max(n, 10 if big else 6)
            if P.D & C.D and not (P.D == C.D and P.D == C.C): n = max(n, 10 if big else 6)
        elif (C.is_valu or C.is_ds or C.is_vmem):
            if P.D & C.allregs: n = max(n, 12 if big else 8)
            if C.is_valu and P.C & C.defs: n = max(n, 7 if big else 3)
    if P.is_salu and ('s','m0') in P.defs and (C.is_lds_dma or 'addtid' in C.mn): n = max(n, 1)
    if P.store_data and (C.is_valu or C.is_mfma) and P.store_data & C.defs: n = max(n, 2)
    if P.store_data and (C.is_ds or C.is_vmem) and 'load' in C.mn+'' and P.store_data & C.allregs: n = max(n, 1)
    if P.store_data and C.is_ds and 'read' in C.mn and P.store_data & C.allregs: n = max(n, 1)
    return n
class Asm:
    def __init__(self, auto=True):
        self.lines = []; self.hist = []; self.uid = 0; self.auto = auto; self.nops = 0; self.count = 0
    def __call__(self, s=''):
        for l in s.split('\n'):
            l = l.strip()
            if not l: continue
            if l.startswith(';') or l.startswith('.'):
                self.lines.append('    ' + l); continue
            if l.endswith(':'):
                self.label(l[:-1]); continue
            I = Ins(l)
            if self.auto:
                dist = 0; req = 0
                for P in reversed(self.hist):
                    req = max(req, need(P, I) - dist)
                    dist += P.states
                    if dist >= 14: break
                while req > 0:
                    k = min(req, 16)
                    N = Ins(f's_nop {k-1}'); self.lines.append('    ' + N.text); self.hist.append(N); req -= k; self.nops += 1
            self.lines.append('    ' + l); self.hist.append(I); self.count += 1
    def label(self, name):
        self.lines.append(name + ':')
    def fence(self, n=12):
        self(f's_nop {n-1}')
    def newlabel(self, p='L'):
        self.uid += 1
        return f'{p}_{self.uid}'
    def text(self): return '\n'.join(self.lines) + '\n'

class Regs:
    def __init__(self, start=0, limit=256, kind='v'):
        self.kind = kind; self.limit = limit; self.used = [False]*limit; self.hi = start
        for i in range(start): self.used[i] = True
    def alloc(self, n=1, align=None):
        if align is None: align = 2 if n > 1 else 1
        i = 0
        while i + n <= self.limit:
            if i % align == 0 and not any(self.used[i:i+n]):
                for j in range(i, i+n): self.used[j] = True
                self.hi = max(self.hi, i+n)
                return i
            i += 1
        raise RuntimeError('out of registers')
    def free(self, base, n=1):
        for j in range(base, base+n):
            assert self.used[j]; self.used[j] = False
def V(b, n=1): return f'v{b}' if n == 1 else f'v[{b}:{b+n-1}]'
def S(b, n=1): return f's{b}' if n == 1 else f's[{b}:{b+n-1}]'
import struct
def F(x):
    return '0x%08x' % struct.unpack('<I', struct.pack('<f', x))[0]

def kernel_header(name):
    return f'''.globl {name}
.p2align 8
.type {name},@function
{name}:
'''
def kernel_desc(name, vgpr, sgpr=96, accum=None, wgy=False):
    if accum is None: accum = (vgpr + 3)//4*4
    s = f'''.amdhsa_kernel {name}
  .amdhsa_next_free_vgpr {vgpr}
  .amdhsa_next_free_sgpr {sgpr}
  .amdhsa_accum_offset {accum}
  .amdhsa_group_segment_fixed_size 0
  .amdhsa_kernarg_size 80
  .amdhsa_user_sgpr_count 2
  .amdhsa_user_sgpr_kernarg_segment_ptr 1
  .amdhsa_system_sgpr_workgroup_id_x 1
'''
    if wgy: s += '  .amdhsa_system_sgpr_workgroup_id_y 1\n'
    s += '  .amdhsa_float_denorm_mode_32 3\n  .amdhsa_float_denorm_mode_16_64 3\n'
    s += '.end_amdhsa_kernel\n'
    return s
```

```python
from gen import *

def p2_consts(a, R, name, vl15, fl15, fg4):
    C = {}
    B1 = R.alloc(32); tw1c = R.alloc(8); tw1s = R.alloc(8); tw2c = R.alloc(8); tw2s = R.alloc(8); F64 = R.alloc(24)
    c = R.alloc(4); s = R.alloc(4); base = R.alloc(); step = R.alloc(); fk = R.alloc(); m = R.alloc(); t0 = R.alloc(); t1 = R.alloc()
    a(f's_lshl_b32 s{sT}, s{sW4}, 4'); a(f'v_add_u32 v{t0}, s{sT}, v{vl15}'); a(f'v_cvt_f32_u32 v{fk}, v{t0}')
    a(f'v_mul_f32 v{step}, {F(-1/64)}, v{fk}')
    a(f'v_lshrrev_b32 v{t0}, 5, v0'); a(f'v_lshlrev_b32 v{t0}, 2, v{t0}'); a(f'v_cvt_f32_u32 v{t0}, v{t0}')
    a(f'v_bfe_u32 v{t1}, v0, 4, 1')
    L0 = a.newlabel(name); L1 = a.newlabel(name)
    a(f's_cmp_eq_u32 s{sP}, 0'); a(f's_cbranch_scc1 {L0}')
    a(f'v_xor_b32 v{m}, v{t1}, v0'); a(f'v_lshlrev_b32 v{m}, 31, v{m}'); a(f'v_xor_b32 v{base}, {F(-0.125)}, v{m}')
    a(f'v_fmac_f32 v{base}, v{t0}, v{step}')
    a(f'v_lshlrev_b32 v{m}, 31, v{t1}')
    for k in range(4):
        sincos4(a, base, step, 8*k, c, s)
        for i in range(4):
            a(f'v_cvt_pk_bf16_f32 v{B1+k*8+i}, v{c+i}, -v{s+i}'); a(f'v_cvt_pk_bf16_f32 v{B1+k*8+4+i}, v{s+i}, v{c+i}')
    a(f's_mov_b32 s58, {F(math.sqrt(0.5))}')
    a(f's_branch {L1}')
    a.label(L0)
    a(f'v_cvt_f32_u32 v{base}, v{t1}'); a(f'v_mul_f32 v{base}, 0x3e800000, v{base}')
    a(f'v_fmac_f32 v{base}, v{t0}, v{step}')
    a(f'v_lshlrev_b32 v{m}, 31, v0')
    for k in range(4):
        sincos4(a, base, step, 8*k, c, s)
        for i in range(4):
            a(f'v_cvt_pk_bf16_f32 v{B1+k*8+i}, v{c+i}, v{c+i}'); a(f'v_cvt_pk_bf16_f32 v{B1+k*8+4+i}, v{s+i}, v{s+i}')
    a(f's_mov_b32 s58, {F(0.25)}')
    a.label(L1)
    a('s_mov_b32 s59, s58')
    for j in range(32): a(f'v_xor_b32 v{B1+j}, v{m}, v{B1+j}')
    a(f'v_mul_f32 v{step}, {F(-1/2048)}, v{fk}'); a(f'v_mul_f32 v{base}, v{fg4}, v{step}')
    sincos4(a, base, step, 0, tw1c, tw1s); sincos4(a, base, step, 16, tw1c+4, tw1s+4)
    for j in range(0, 8, 2):
        a(f'v_pk_mul_f32 {V(tw1c+j,2)}, {V(tw1c+j,2)}, s[58:59]'); a(f'v_pk_mul_f32 {V(tw1s+j,2)}, {V(tw1s+j,2)}, s[58:59]')
    a(f'v_cvt_f32_u32 v{t0}, s{sT}'); a(f'v_add_f32 v{t0}, v{t0}, v{fg4}')
    for t in range(2):
        if t == 0: a(f'v_mul_f32 v{step}, {F(-1/2048)}, v{fl15}')
        else: a(f'v_add_f32 v{step}, {F(-16/2048)}, v{step}')
        a(f'v_mul_f32 v{base}, v{t0}, v{step}')
        sincos4(a, base, step, 0, tw2c+4*t, tw2s+4*t)
    a(f'v_mul_f32 v{step}, {F(1/64)}, v{fk}'); a(f'v_mul_f32 v{base}, v{fg4}, v{step}')
    for k in range(4):
        sincos4(a, base, step, 16*k, c, s); mat6(a, F64+6*k, c, s)
    for r, n in ((c,4),(s,4),(base,1),(step,1),(fk,1),(m,1),(t0,1),(t1,1)): R.free(r, n)
    return dict(B1=B1, tw1c=tw1c, tw1s=tw1s, tw2c=tw2c, tw2s=tw2s, F64=F64)

def k2(name):
    L_IN=0; L_EX=16384; L_OT=24576; L_SP=32768
    a = Asm(); R = Regs(2)
    prologue(a, name)
    IN = R.alloc(32); vA = R.alloc(); t0 = R.alloc(); t1 = R.alloc(); v16 = R.alloc()
    a(f'v_lshrrev_b32 v{t0}, 2, v0'); a(f'v_and_b32 v{t1}, 3, v0')
    a(f'v_mul_u32_u24 v{vA}, {ZSTRIDE}, v{t0}'); a(f'v_lshl_add_u32 v{vA}, v{t1}, 4, v{vA}')
    a(f's_mul_i32 s{sT}, s{sW4}, {64*ZSTRIDE}'); a(f's_lshl_b32 s{sT+1}, s{sP}, 6'); a(f's_add_u32 s{sT}, s{sT}, s{sT+1}')
    for j in range(4):
        a(f's_add_u32 s{sT+1}, s{sT}, {WS_Z + 16*j*ZSTRIDE}')
        a(f'buffer_load_dwordx4 {V(IN+4*j,4)}, v{vA}, s[{sWS}:{sWS+3}], s{sT+1} offen')
    aW = R.alloc()
    a(f'v_lshlrev_b32 v{aW}, 4, v{t0}'); a(f'v_and_b32 v{t0}, 1, v{t1}'); a(f'v_lshl_add_u32 v{aW}, v{t0}, 8, v{aW}')
    a(f'v_lshrrev_b32 v{t0}, 1, v{t1}'); a(f'v_lshl_add_u32 v{aW}, v{t0}, 13, v{aW}')
    a(f's_lshl_b32 s{sT}, s{sW4}, 10'); a(f'v_add_u32 v{aW}, s{sT}, v{aW}')
    a(f'v_lshlrev_b32 v{v16}, 4, v0')
    vl15, fl15, fg4 = lane_consts(a, R)
    F32T = gen_f32(a, R, fl15, fg4, vl15)
    C = p2_consts(a, R, name, vl15, fl15, fg4)
    aWr = R.alloc()
    a(f'v_lshrrev_b32 v{t0}, 4, v0'); a(f'v_lshlrev_b32 v{t0}, 10, v{t0}'); a(f'v_lshl_add_u32 v{aWr}, v{vl15}, 4, v{t0}')
    a(f's_and_b32 s{sT}, s{sW4}, 1'); a(f's_lshl_b32 s{sT}, s{sT}, 12'); a(f's_lshr_b32 s{sT+1}, s{sW4}, 1'); a(f's_lshl_b32 s{sT+1}, s{sT+1}, 9')
    a(f's_add_u32 s{sT}, s{sT}, s{sT+1}'); a(f'v_add_u32 v{aWr}, s{sT}, v{aWr}')
    for j in range(4):
        a(f's_waitcnt vmcnt({3-j})')
        a(f'ds_write_b128 v{aW}, {V(IN+4*j,4)} offset:{L_IN + (j&1)*4096 + (j>>1)*512}')
    a('s_waitcnt lgkmcnt(0)'); a('s_barrier')
    Wv = R.alloc(8); Dr = R.alloc(8); Di = R.alloc(8); tmp = R.alloc(8); X = R.alloc(8); wc = R.alloc(8); wsn = R.alloc(8)
    for n in range(8): a(f'ds_read_b128 {V(IN+4*n,4)}, v{v16} offset:{L_IN + n*1024}')
    for t in range(2): a(f'ds_read_b128 {V(Wv+4*t,4)}, v{aWr} offset:{L_IN + 8192 + t*256}')
    for t in range(2):
        for k in range(4):
            n = t*4+k
            a(f's_waitcnt lgkmcnt({9-n})')
            a(f'{M16} {V(Dr+4*t,4)}, {V(IN+4*n,4)}, {V(C["B1"]+8*k,4)}, {"0" if k==0 else V(Dr+4*t,4)}')
            a(f'{M16} {V(Di+4*t,4)}, {V(IN+4*n,4)}, {V(C["B1"]+8*k+4,4)}, {"0" if k==0 else V(Di+4*t,4)}')
    for t in range(2): cmul_pack(a, Dr+4*t, Di+4*t, C['tw1c']+4*t, C['tw1s']+4*t, X+4*t, tmp)
    for t in range(2):
        for u in range(2):
            T = F32T + (u*2+t)*6
            a(f'{M16} {V(Dr+4*u,4)}, {V(T+2,4)}, {V(X+4*t,4)}, {"0" if t==0 else V(Dr+4*u,4)}')
            a(f'{M16} {V(Di+4*u,4)}, {V(T,4)}, {V(X+4*t,4)}, {"0" if t==0 else V(Di+4*u,4)}')
    a('s_waitcnt lgkmcnt(0)')
    LS = a.newlabel(name); LJ = a.newlabel(name)
    a(f's_cmp_eq_u32 s{sP}, 0'); a(f's_cbranch_scc1 {LS}')
    for j in range(8):
        a(f'v_lshlrev_b32 v{wc+j}, 16, v{Wv+j}'); a(f'v_and_b32 v{wsn+j}, 0xffff0000, v{Wv+j}')
    for u in range(2): cmul_pack(a, Dr+4*u, Di+4*u, wc+4*u, wsn+4*u, X+4*u, tmp, conj_out=True)
    a.label(LJ)
    a.fence(2)
    for u in range(2):
        for t in range(2):
            T = F32T + (t*2+u)*6
            a(f'{M16} {V(Dr+4*t,4)}, {V(X+4*u,4)}, {V(T+2,4)}, {"0" if u==0 else V(Dr+4*t,4)}')
            a(f'{M16} {V(Di+4*t,4)}, {V(X+4*u,4)}, {V(T,4)}, {"0" if u==0 else V(Di+4*t,4)}')
    aE = R.alloc()
    a(f's_lshl_b32 s{sT}, s{sW4}, 10'); a(f'v_add_u32 v{aE}, s{sT}, v{v16}')
    for t in range(2):
        cmul_pack(a, Dr+4*t, Di+4*t, C['tw2c']+4*t, C['tw2s']+4*t, X+4*t, tmp)
        a(f'ds_write_b128 v{aE}, {V(X+4*t,4)} offset:{L_EX + t*4096}')
    a('s_waitcnt lgkmcnt(0)'); a('s_barrier')
    for n in range(8): a(f'ds_read_b128 {V(IN+4*n,4)}, v{v16} offset:{L_EX + n*1024}')
    for t in range(2):
        for k in range(4):
            n = t*4+k; T = C['F64'] + 6*k
            a(f's_waitcnt lgkmcnt({7-n})')
            a(f'{M16} {V(Dr+4*t,4)}, {V(IN+4*n,4)}, {V(T+2,4)}, {"0" if k==0 else V(Dr+4*t,4)}')
            a(f'{M16} {V(Di+4*t,4)}, {V(IN+4*n,4)}, {V(T,4)}, {"0" if k==0 else V(Di+4*t,4)}')
    a(f'v_lshrrev_b32 v{t0}, 4, v0'); a(f'v_and_b32 v{t1}, 7, v0'); a(f'v_xor_b32 v{t0}, v{t0}, v{t1}'); a(f'v_lshlrev_b32 v{t0}, 4, v{t0}')
    a(f'v_lshl_add_u32 v{t0}, v{vl15}, 7, v{t0}'); a(f's_lshl_b32 s{sT}, s{sW4}, 11'); a(f'v_add_u32 v{t0}, s{sT}, v{t0}'); a(f'v_xor_b32 v{aE}, 64, v{t0}')
    a(f'v_lshrrev_b32 v{aW}, 3, v0'); a(f'v_xor_b32 v{t1}, v{t1}, v{aW}'); a(f'v_lshlrev_b32 v{t1}, 4, v{t1}'); a(f'v_lshl_add_u32 v{t1}, v{aW}, 7, v{t1}'); a(f'v_add_u32 v{t1}, s{sT}, v{t1}')
    a(f'v_lshlrev_b32 v{aW}, 15, v{aW}'); a(f'v_and_b32 v{vA}, 7, v0'); a(f'v_lshl_add_u32 v{vA}, v{vA}, 4, v{aW}')
    for t in range(2):
        a(f'v_cvt_pk_bf16_f32 v{X+4*t}, v{Dr+4*t}, v{Dr+4*t+1}'); a(f'v_cvt_pk_bf16_f32 v{X+4*t+1}, v{Dr+4*t+2}, v{Dr+4*t+3}')
        a(f'v_cvt_pk_bf16_f32 v{X+4*t+2}, v{Di+4*t}, v{Di+4*t+1}'); a(f'v_cvt_pk_bf16_f32 v{X+4*t+3}, v{Di+4*t+2}, v{Di+4*t+3}')
        a(f'ds_write_b128 v{t0 if t==0 else aE}, {V(X+4*t,4)} offset:{L_OT}')
    a('s_waitcnt lgkmcnt(0)')
    a(f'ds_read_b128 {V(IN,4)}, v{t1} offset:{L_OT}'); a(f'ds_read_b128 {V(IN+4,4)}, v{t1} offset:{L_OT+1024}')
    a(f's_lshl_b32 s{sT}, s{sW4}, 19'); a(f's_lshl_b32 s{sT+1}, s{sP}, 7'); a(f's_add_u32 s{sT}, s{sT}, s{sT+1}'); a(f's_add_u32 s{sT}, s{sT}, {WS_Y}')
    a(f's_add_u32 s{sT+1}, s{sT}, {8*32768}')
    a('s_waitcnt lgkmcnt(1)'); a(f'buffer_store_dwordx4 {V(IN,4)}, v{vA}, s[{sWS}:{sWS+3}], s{sT} offen')
    a('s_waitcnt lgkmcnt(0)'); a(f'buffer_store_dwordx4 {V(IN+4,4)}, v{vA}, s[{sWS}:{sWS+3}], s{sT+1} offen')
    a.label(f'{name}_done'); a('s_endpgm')
    a.label(LS); a.hist = []
    a.fence(8)
    W6 = IN; N = IN+8
    a(f'v_lshrrev_b32 v{t0}, 4, v0'); a(f'v_lshl_add_u32 v{t1}, v{t0}, 6, v{vl15}'); a(f's_lshl_b32 s{sT}, s{sW4}, 4'); a(f'v_add_u32 v{t1}, s{sT}, v{t1}')
    a(f'v_mul_u32_u24 v{t1}, {ZSTRIDE}, v{t1}'); a(f's_mov_b32 s{sT+1}, {WS_Z+16384}')
    a(f'buffer_load_dwordx4 {V(W6,4)}, v{t1}, s[{sWS}:{sWS+3}], s{sT+1} offen'); a(f'buffer_load_dwordx4 {V(W6+4,4)}, v{t1}, s[{sWS}:{sWS+3}], s{sT+1} offen offset:16')
    a(f'v_lshl_add_u32 v{t0}, v{t0}, 8, v{vl15}'); a(f'v_add_u32 v{t0}, s{sT}, v{t0}'); a(f'v_lshlrev_b32 v{t0}, 2, v{t0}')
    a('s_waitcnt vmcnt(0)')
    for j in range(8):
        off = (16*(j//4) + j%4)*256
        a(f'ds_write_b32 v{t0}, v{Dr+j} offset:{L_SP+off}'); a(f'ds_write_b32 v{t0}, v{Di+j} offset:{L_SP+8192+off}')
        a(f'ds_write_b32 v{t0}, v{Wv+j} offset:{L_SP+16384+off}'); a(f'ds_write_b32 v{t0}, v{W6+j} offset:{L_SP+24576+off}')
    a('s_waitcnt lgkmcnt(0)'); a('s_barrier')
    p = tmp
    for j in range(8):
        off = (16*(j//4) + j%4)*256
        a(f'v_sub_u32 v{t1}, {8192-off}, v{t0}'); a(f'v_and_b32 v{t1}, 8191, v{t1}')
        for q in range(4): a(f'ds_read_b32 v{N+q}, v{t1} offset:{L_SP+8192*q}')
        a('s_waitcnt lgkmcnt(0)')
        a(f'v_lshlrev_b32 v{p}, 16, v{Wv+j}'); a(f'v_lshlrev_b32 v{p+4}, 16, v{N+2}'); a(f'v_add_f32 v{p}, v{p}, v{p+4}')
        a(f'v_and_b32 v{p+1}, 0xffff0000, v{Wv+j}'); a(f'v_and_b32 v{p+4}, 0xffff0000, v{N+2}'); a(f'v_sub_f32 v{p+1}, v{p+1}, v{p+4}')
        a(f'v_lshlrev_b32 v{p+2}, 16, v{W6+j}'); a(f'v_lshlrev_b32 v{p+4}, 16, v{N+3}'); a(f'v_add_f32 v{p+2}, v{p+2}, v{p+4}')
        a(f'v_and_b32 v{p+3}, 0xffff0000, v{W6+j}'); a(f'v_and_b32 v{p+4}, 0xffff0000, v{N+3}'); a(f'v_sub_f32 v{p+3}, v{p+3}, v{p+4}')
        a(f'v_add_f32 v{p+4}, v{p}, v{p+2}'); a(f'v_add_f32 v{p+5}, v{p+1}, v{p+3}')
        a(f'v_sub_f32 v{p+6}, v{p}, v{p+2}'); a(f'v_sub_f32 v{p+7}, v{p+1}, v{p+3}')
        a(f'v_mul_f32 v{wc+j}, v{Dr+j}, v{p+4}'); a(f'v_fma_f32 v{wc+j}, -v{Di+j}, v{p+5}, v{wc+j}')
        a(f'v_fmac_f32 v{wc+j}, v{N}, v{p+6}'); a(f'v_fmac_f32 v{wc+j}, v{N+1}, v{p+7}')
        a(f'v_mul_f32 v{wsn+j}, v{Dr+j}, v{p+5}'); a(f'v_fmac_f32 v{wsn+j}, v{Di+j}, v{p+4}')
        a(f'v_fmac_f32 v{wsn+j}, v{N}, v{p+7}'); a(f'v_fma_f32 v{wsn+j}, -v{N+1}, v{p+6}, v{wsn+j}')
    for u in range(2):
        a(f'v_cvt_pk_bf16_f32 v{X+4*u}, v{wc+4*u}, v{wc+4*u+1}'); a(f'v_cvt_pk_bf16_f32 v{X+4*u+1}, v{wc+4*u+2}, v{wc+4*u+3}')
        a(f'v_cvt_pk_bf16_f32 v{X+4*u+2}, -v{wsn+4*u}, -v{wsn+4*u+1}'); a(f'v_cvt_pk_bf16_f32 v{X+4*u+3}, -v{wsn+4*u+2}, -v{wsn+4*u+3}')
    a(f's_branch {LJ}')
    return a, R.hi

def k3(name):
    L_WO=0; L_Y=131072; L_O=0; L_EP=32768; RS=528
    sAT, sKH, sCT = 56, 57, sW4
    a = Asm(); R = Regs(2)
    prologue(a, name)
    a(f's_lshr_b32 s{sAT}, s{sROW0}, 5'); a(f's_add_u32 s{sAT}, s{sAT}, s{sHH}'); a(f's_lshr_b32 s{sKH}, s{sWV}, 2')
    WF = R.alloc(64); TF = R.alloc(64); accA = R.alloc(16); accB = R.alloc(16)
    PQ = R.alloc(16); KVf = R.alloc(32); Yl = R.alloc(16)
    v16 = R.alloc(); t0 = R.alloc(); t1 = R.alloc(); vg = R.alloc(); vomg = R.alloc()
    a(f'v_lshlrev_b32 v{v16}, 4, v0')
    a(f's_lshl_b32 s{sT}, s{sAT}, 15'); a(f's_lshl_b32 s{sT+1}, s{sWV}, 12'); a(f's_add_u32 s{sT}, s{sT}, s{sT+1}')
    a(f's_add_u32 s{sT+1}, s{sT}, {WS_Y}'); a(f's_add_u32 s{sT+2}, s{sT}, {WS_PQ}')
    for j in range(4): a(f'buffer_load_dwordx4 {V(Yl+4*j,4)}, v{v16}, s[{sWS}:{sWS+3}], s{sT+1} offen offset:{j*1024}')
    for j in range(4): a(f'buffer_load_dwordx4 {V(PQ+4*j,4)}, v{v16}, s[{sWS}:{sWS+3}], s{sT+2} offen offset:{j*1024}')
    a(f'v_and_b32 v{t0}, 31, v0'); a(f'v_min_u32 v{t0}, 16, v{t0}'); a(f'v_lshlrev_b32 v{t0}, 6, v{t0}'); a(f'v_lshrrev_b32 v{t1}, 5, v0'); a(f'v_lshl_add_u32 v{t0}, v{t1}, 5, v{t0}')
    a(f's_mul_i32 s{sT}, s{sWV}, 4352'); a(f's_add_u32 s{sT}, s{sT}, {WS_KV}')
    for j in range(4):
        for q in range(2): a(f'buffer_load_dwordx4 {V(KVf+8*j+4*q,4)}, v{t0}, s[{sWS}:{sWS+3}], s{sT} offen offset:{j*1088+q*16}')
    a(f'v_and_b32 v{t0}, 31, v0'); a(f'v_lshlrev_b32 v{t0}, 2, v{t0}'); a(f's_lshl_b32 s{sT}, s2, 7'); a(f's_add_u32 s{sT}, s{sT}, {WS_G}')
    a(f'buffer_load_dword v{vg}, v{t0}, s[{sWS}:{sWS+3}], s{sT} offen')
    vw = R.alloc()
    a(f'v_lshrrev_b32 v{t0}, 4, v0'); a(f'v_and_b32 v{t1}, 15, v0'); a(f'v_lshlrev_b32 v{vw}, 2, v{t0}'); a(f'v_xor_b32 v{t1}, v{t1}, v{vw}')
    a(f'v_lshlrev_b32 v{t1}, 4, v{t1}'); a(f'v_lshl_add_u32 v{vw}, v{t0}, 10, v{t1}')
    a(f's_lshl_b32 s{sT}, s{sWV}, 16'); a(f's_lshl_b32 s{sT+1}, s{sHL}, 8'); a(f's_add_u32 s{sT}, s{sT}, s{sT+1}')
    a(f's_lshl_b32 s{sT+2}, s{sWV}, 14')
    for i in range(16):
        a(f's_add_u32 s{sT+1}, s{sT}, {i*4096}'); a(f's_add_u32 m0, s{sT+2}, {L_WO+i*1024}')
        a(f'buffer_load_dwordx4 v{vw}, s[{sWO}:{sWO+3}], s{sT+1} offen lds')
    c = R.alloc(4); s = R.alloc(4); base = R.alloc(); step = R.alloc()
    a(f's_lshl_b32 s{sT}, s{sHL}, 7'); a(f's_lshl_b32 s{sT+1}, s{sCT}, 5'); a(f's_add_u32 s{sT}, s{sT}, s{sT+1}')
    a(f'v_and_b32 v{t0}, 31, v0'); a(f'v_add_u32 v{t0}, s{sT}, v{t0}'); a(f'v_cvt_f32_u32 v{step}, v{t0}'); a(f'v_mul_f32 v{step}, {F(1/512)}, v{step}')
    a(f'v_lshrrev_b32 v{t1}, 5, v0'); a(f'v_lshlrev_b32 v{t1}, 2, v{t1}'); a(f's_lshl_b32 s{sT}, s{sKH}, 7'); a(f'v_add_u32 v{t1}, s{sT}, v{t1}')
    a(f'v_cvt_f32_u32 v{base}, v{t1}'); a(f'v_mul_f32 v{base}, v{base}, v{step}')
    for k in range(16):
        sincos4(a, base, step, 8*k, c, s)
        for j in range(4): a(f'v_cvt_pk_bf16_f32 v{TF+4*k+j}, v{c+j}, v{s+j}')
    a(f'v_lshlrev_b32 v{t0}, 31, v{t0}'); a(f'v_xor_b32 v{t0}, 0xbf003f00, v{t0}')
    a(f'v_cmp_eq_u32 vcc, 0, v{t1}'); a(f'v_cndmask_b32 v{TF}, v{TF}, v{t0}, vcc')
    aYw = R.alloc()
    a(f's_lshl_b32 s{sT}, s{sWV}, 12'); a(f's_add_u32 s{sT}, s{sT}, {L_Y}'); a(f'v_add_u32 v{aYw}, s{sT}, v{v16}')
    a('s_waitcnt vmcnt(29)')
    for j in range(4): a(f'ds_write_b128 v{aYw}, {V(Yl+4*j,4)} offset:{j*1024}')
    a('s_waitcnt vmcnt(16)')
    a(f'v_sub_f32 v{vomg}, 1.0, v{vg}'); a(f'v_cvt_pk_bf16_f32 v{vomg}, v{vomg}, v{vomg}'); a(f'v_and_b32 v{vomg}, 0xffff0000, v{vomg}')
    a(f'v_mul_f32 v{vg}, {F(2.0**-19)}, v{vg}')
    for j in range(4):
        for q in range(4): a(f'v_cvt_pk_bf16_f32 v{KVf+8*j+q}, v{KVf+8*j+2*q}, v{KVf+8*j+2*q+1}')
    OF = Yl
    a('s_waitcnt lgkmcnt(0)')
    for j in range(4):
        D = accA if j % 2 == 0 else accB
        a(f'{M32} {V(D,16)}, {V(KVf+8*j,4)}, {V(PQ+4*j,4)}, 0')
        a(f'v_add_f32 v{t0}, {F(1e-6)}, v{D+8}'); a(f'v_rcp_f32 v{t0}, v{t0}'); a(f'v_mul_f32 v{c}, v{t0}, v{vomg}'); a(f'v_mov_b32 v{c+1}, v{c}')
        for q in range(0, 8, 2): a(f'v_pk_mul_f32 {V(D+q,2)}, {V(D+q,2)}, {V(c,2)}')
        for q in range(4): a(f'v_cvt_pk_bf16_f32 v{OF+4*j+q}, v{D+2*q}, v{D+2*q+1}')
    a('s_waitcnt vmcnt(0)'); a('s_barrier')
    aF = R.alloc(); aY = R.alloc()
    a(f'v_bfe_u32 v{t0}, v0, 2, 2'); a(f'v_lshrrev_b32 v{t1}, 5, v0'); a(f'v_lshl_add_u32 v{aF}, v{t1}, 2, v{t0}'); a(f'v_lshlrev_b32 v{aF}, 8, v{aF}')
    a(f'v_xor_b32 v{t0}, s{sCT}, v{t0}'); a(f'v_lshl_add_u32 v{aF}, v{t0}, 6, v{aF}')
    a(f'v_bfe_u32 v{t0}, v0, 4, 1'); a(f'v_lshl_add_u32 v{aF}, v{t0}, 5, v{aF}')
    a(f'v_lshlrev_b32 v{aY}, 6, v{t0}')
    a(f'v_and_b32 v{t0}, 3, v0'); a(f'v_lshl_add_u32 v{aF}, v{t0}, 3, v{aF}'); a(f'v_lshl_add_u32 v{aY}, v{t0}, 4, v{aY}')
    a(f's_lshl_b32 s{sT}, s{sKH}, 16'); a(f'v_add_u32 v{aF}, s{sT}, v{aF}')
    for n in range(16):
        for jj in range(2): a(f'ds_read_b64_tr_b16 {V(WF+4*n+2*jj,2)}, v{aF} offset:{L_WO+(16*n+8*jj)*256}')
    a(f'v_lshl_add_u32 v{aY}, v{t1}, 9, v{aY}')
    a(f'v_bfe_u32 v{t0}, v0, 3, 1'); a(f'v_lshl_add_u32 v{aY}, v{t0}, 7, v{aY}')
    a(f'v_bfe_u32 v{t0}, v0, 2, 1'); a(f'v_lshl_add_u32 v{aY}, v{t0}, 3, v{aY}')
    a(f's_lshl_b32 s{sT}, s{sKH}, 14'); a(f's_add_u32 s{sT}, s{sT}, {L_Y}'); a(f'v_add_u32 v{aY}, s{sT}, v{aY}')
    a('s_waitcnt lgkmcnt(0)'); a('s_barrier')
    a(f's_lshl_b32 s{sT}, s{sWV}, 12'); a(f'v_add_u32 v{aYw}, s{sT}, v{v16}')
    for j in range(4): a(f'ds_write_b128 v{aYw}, {V(OF+4*j,4)} offset:{L_O+j*1024}')
    BF = KVf
    PF = 6
    def yread(n):
        for jj in range(2): a(f'ds_read_b64_tr_b16 {V(BF+(n%8)*4+2*jj,2)}, v{aY} offset:{(8*n+2*jj)*128}')
    a('s_waitcnt lgkmcnt(0)')
    for n in range(PF): yread(n)
    for n in range(16):
        a(f's_waitcnt lgkmcnt({2*min(PF-1, 15-n)})')
        a(f'{M32} {V(accA,16)}, {V(TF+4*n,4)}, {V(BF+(n%8)*4,4)}, {"0" if n==0 else V(accA,16)}')
        if n+PF < 16: yread(n+PF)
    a('s_barrier')
    aO = aY
    a(f's_lshl_b32 s{sT}, s{sKH}, 14'); a(f'v_add_u32 v{aO}, s{sT}, v{v16}')
    def oread(n): a(f'ds_read_b128 {V(BF+(n%8)*4,4)}, v{aO} offset:{L_O+n*1024}')
    for n in range(PF): oread(n)
    for n in range(16):
        a(f's_waitcnt lgkmcnt({min(PF-1, 15-n)})')
        a(f'{M32} {V(accB,16)}, {V(WF+4*n,4)}, {V(BF+(n%8)*4,4)}, {"0" if n==0 else V(accB,16)}')
        if n+PF < 16: oread(n+PF)
    a(f'v_and_b32 v{t0}, 31, v0'); a(f'v_mul_u32_u24 v{t0}, {RS}, v{t0}'); a(f'v_lshrrev_b32 v{t1}, 5, v0'); a(f'v_lshl_add_u32 v{t0}, v{t1}, 4, v{t0}')
    a(f's_mul_i32 s{sT}, s{sKH}, {32*RS}'); a(f's_lshl_b32 s{sT+1}, s{sCT}, 7'); a(f's_add_u32 s{sT}, s{sT}, s{sT+1}'); a(f'v_add_u32 v{t0}, s{sT}, v{t0}')
    for r in range(16): a(f'v_fmac_f32 v{accB+r}, v{vg}, v{accA+r}')
    for q in range(4): a(f'ds_write_b128 v{t0}, {V(accB+4*q,4)} offset:{L_EP+q*32}')
    a(f'v_lshrrev_b32 v{t0}, 4, v0'); a(f's_lshl_b32 s{sT}, s{sWV}, 2'); a(f'v_add_u32 v{t0}, s{sT}, v{t0}')
    a(f'v_and_b32 v{t1}, 15, v0')
    a(f'v_mul_u32_u24 v{aF}, {RS}, v{t0}'); a(f'v_lshl_add_u32 v{aF}, v{t1}, 5, v{aF}')
    a(f'v_lshlrev_b32 v{t0}, 10, v{t0}'); a(f'v_lshl_add_u32 v{t0}, v{t1}, 4, v{t0}')
    a(f's_lshl_b32 s{sT}, s{sAT}, 15'); a(f's_lshl_b32 s{sT+1}, s{sHL}, 8'); a(f's_add_u32 s{sT}, s{sT}, s{sT+1}')
    a('s_waitcnt lgkmcnt(0)'); a('s_barrier')
    for kh in range(2):
        for q in range(2): a(f'ds_read_b128 {V(accA+8*kh+4*q,4)}, v{aF} offset:{L_EP+kh*32*RS+q*16}')
    a('s_waitcnt lgkmcnt(0)')
    for q in range(0, 8, 2): a(f'v_pk_add_f32 {V(accA+q,2)}, {V(accA+q,2)}, {V(accA+8+q,2)}')
    for q in range(4): a(f'v_cvt_pk_bf16_f32 v{accB+q}, v{accA+2*q}, v{accA+2*q+1}')
    a(f'buffer_store_dwordx4 {V(accB,4)}, v{t0}, s[{sOUT}:{sOUT+3}], s{sT} offen')
    a.label(f'{name}_done'); a('s_endpgm')
    return a, R.hi
```

```python
import sys, math
sys.path.insert(0,'lib')
from asmgen import *

WS_Z=0; ZSTRIDE=16640; WS_PQ=0x480000; WS_Y=0x680000; WS_KV=0x880000; WS_G=0x890000; WS_SIZE=0x900000
XR=0; KR=40960; VR=81920; SC=122880
PS=1088
L_P1X=SC; L_PL=SC+8192; L_GW=L_PL+4*PS*4; L_KVR=L_GW+1024
L_END=L_KVR+2*4352
assert L_END <= 163840, L_END
LOG2E=1.4426950408889634

sX,sWR,sWI,sWQ,sWO,sGW,sOUT,sWS = 8,12,16,20,24,28,32,36
sXCD,sIDX,sP,sHG,sROW0,sROT,sWV,sW4,sHH,sHL = 40,41,42,43,44,45,46,47,48,49
sT=50

def srd(a, d, lo, nbytes):
    a(f's_mov_b32 s{d}, s{lo}'); a(f's_and_b32 s{d+1}, s{lo+1}, 0xffff'); a(f's_mov_b32 s{d+2}, {nbytes}'); a(f's_mov_b32 s{d+3}, 0x20000')

def prologue(a, name):
    a('s_cmp_ge_u32 s2, 256'); a(f's_cbranch_scc1 {name}_done')
    a('s_load_dwordx16 s[64:79], s[0:1], 0')
    a('s_load_dwordx2 s[80:81], s[0:1], 72')
    a(f's_and_b32 s{sXCD}, s2, 7'); a(f's_lshr_b32 s{sIDX}, s2, 3')
    a(f's_lshl_b32 s{sP}, s{sXCD}, 5'); a(f's_add_u32 s{sP}, s{sP}, s{sIDX}')
    a(f's_and_b32 s{sHH}, s{sXCD}, 1'); a(f's_and_b32 s{sHL}, s{sIDX}, 3')
    a(f's_lshl_b32 s{sHG}, s{sHH}, 2'); a(f's_add_u32 s{sHG}, s{sHG}, s{sHL}')
    a(f's_lshr_b32 s{sT}, s{sIDX}, 2')
    a(f's_lshl_b32 s{sROT}, s{sHL}, 1'); a(f's_add_u32 s{sROT}, s{sROT}, s{sT}'); a(f's_and_b32 s{sROT}, s{sROT}, 7')
    a(f's_lshr_b32 s{sROW0}, s{sXCD}, 1'); a(f's_lshl_b32 s{sROW0}, s{sROW0}, 8')
    a(f's_and_b32 s{sT+1}, s{sT}, 3'); a(f's_lshl_b32 s{sT+1}, s{sT+1}, 6'); a(f's_add_u32 s{sROW0}, s{sROW0}, s{sT+1}')
    a(f's_lshr_b32 s{sT+1}, s{sT}, 2'); a(f's_lshl_b32 s{sT+1}, s{sT+1}, 10'); a(f's_add_u32 s{sROW0}, s{sROW0}, s{sT+1}')
    a('v_lshrrev_b32 v1, 6, v0'); a(f'v_readfirstlane_b32 s{sWV}, v1')
    a('v_and_b32 v0, 63, v0')
    a(f's_and_b32 s{sW4}, s{sWV}, 3')
    a('s_waitcnt lgkmcnt(0)')
    srd(a, sX, 64, 0x200000); srd(a, sWR, 66, 2048*514); srd(a, sWI, 68, 2048*514); srd(a, sWQ, 72, 512*3072)
    srd(a, sWO, 74, 512*1024); srd(a, sGW, 76, 1024); srd(a, sOUT, 78, 0x200000); srd(a, sWS, 80, WS_SIZE)

def dma_setup(a, R):
    vx0, vx1, vw, t0, t1 = [R.alloc() for _ in range(5)]
    a(f'v_lshrrev_b32 v{t0}, 3, v0')
    a(f'v_and_b32 v{t1}, 7, v0')
    a(f'v_lshrrev_b32 v{vw}, 1, v{t0}')
    a(f'v_xor_b32 v{vx0}, v{t1}, v{vw}')
    a(f'v_lshlrev_b32 v{vx0}, 4, v{vx0}')
    a(f's_lshl_b32 s{sT}, s{sW4}, 4'); a(f's_add_u32 s{sT+1}, s{sT}, s{sROW0}')
    a(f'v_add_u32 v{vx1}, s{sT+1}, v{t0}')
    a(f'v_lshl_add_u32 v{vx0}, v{vx1}, 10, v{vx0}')
    a(f'v_xor_b32 v{vx1}, 64, v{vx0}')
    a(f'v_add_u32 v{vx1}, 8192, v{vx1}')
    a(f'v_and_b32 v{vw}, 1, v{vw}'); a(f'v_lshlrev_b32 v{vw}, 2, v{vw}'); a(f'v_xor_b32 v{vw}, v{vw}, v{t1}'); a(f'v_lshlrev_b32 v{vw}, 4, v{vw}')
    a(f'v_add_u32 v{t0}, s{sT}, v{t0}')
    a(f'v_mul_u32_u24 v{t0}, 3072, v{t0}')
    a(f's_lshl_b32 s{sT+1}, s{sHG}, 7')
    a(f'v_add3_u32 v{vw}, v{vw}, v{t0}, s{sT+1}')
    R.free(t0); R.free(t1)
    return vx0, vx1, vw

def wq_unit(j):
    g = 8 + j//3; slot = g % 5
    return [XR, KR, VR][j % 3] + slot*8192

def dma_group(a, g, vx0, vx1, vw):
    n = 0
    def one(v, srdr, soff, lds):
        nonlocal n
        a(f's_add_u32 m0, s62, {lds}')
        a(f'buffer_load_dwordx4 v{v}, s[{srdr}:{srdr+3}], s{soff} offen lds'); n += 1
    if g < 8:
        slot = g % 5
        a(f's_add_u32 s{sT}, s{sROT}, {g}'); a(f's_and_b32 s{sT}, s{sT}, 7')
        a(f's_lshl_b32 s{sT+1}, s{sT}, 7'); a(f's_mul_i32 s{sT+2}, s{sT}, {64*3072}')
        one(vx0, sX, sT+1, XR+slot*8192); one(vx1, sX, sT+1, XR+slot*8192+1024)
        for part, base in ((1, KR), (2, VR)):
            for ii in range(2):
                a(f's_add_u32 s{sT+3}, s{sT+2}, {part*1024 + ii*8*3072}')
                one(vw, sWQ, sT+3, base+slot*8192+ii*1024)
    else:
        for j in range((g-8)*3, min(8, (g-8)*3+3)):
            a(f's_add_u32 s{sT}, s{sROT}, {j}'); a(f's_and_b32 s{sT}, s{sT}, 7'); a(f's_mul_i32 s{sT+2}, s{sT}, {64*3072}')
            for ii in range(2):
                if ii: a(f's_add_u32 s{sT+2}, s{sT+2}, {8*3072}')
                one(vw, sWQ, sT+2, wq_unit(j)+ii*1024)
    return n

def phi_pack(a, acc, n, out, tmp):
    for j in range(0, n, 2): a(f'v_pk_mul_f32 {V(tmp+j,2)}, {V(acc+j,2)}, s[60:61]')
    for j in range(n): a(f'v_exp_f32_e64 v{tmp+j}, v{tmp+j} clamp')
    for j in range(n): a(f'v_max_f32 v{acc+j}, {F(1e-6)}, v{acc+j}')
    for j in range(0, n, 2): a(f'v_pk_add_f32 {V(tmp+j,2)}, {V(tmp+j,2)}, {V(acc+j,2)}')
    for j in range(0, n, 2): a(f'v_cvt_pk_bf16_f32 v{out+j//2}, v{tmp+j}, v{tmp+j+1}')

def sincos4(a, base, step, r0, c, s):
    for r in range(4):
        k = r0 + r
        if k == 0: a(f'v_mov_b32 v{s+r}, v{base}')
        else: a(f'v_fmamk_f32 v{s+r}, v{step}, {F(float(k))}, v{base}')
    for r in range(4): a(f'v_cos_f32 v{c+r}, v{s+r}')
    for r in range(4): a(f'v_sin_f32 v{s+r}, v{s+r}')

def mat6(a, dst, c, s):
    a(f'v_cvt_pk_bf16_f32 v{dst+2}, v{c}, v{c+1}'); a(f'v_cvt_pk_bf16_f32 v{dst+3}, v{c+2}, v{c+3}')
    a(f'v_cvt_pk_bf16_f32 v{dst+4}, v{s}, v{s+1}'); a(f'v_cvt_pk_bf16_f32 v{dst+5}, v{s+2}, v{s+3}')
    a(f'v_cvt_pk_bf16_f32 v{dst+0}, -v{s}, -v{s+1}'); a(f'v_cvt_pk_bf16_f32 v{dst+1}, -v{s+2}, -v{s+3}')

def gen_f32(a, R, fl15, fg4, vl15):
    T = R.alloc(24); c = R.alloc(4); s = R.alloc(4); base = R.alloc(); step = R.alloc(); m = R.alloc()
    a(f'v_mul_f32 v{step}, {F(1/32)}, v{fl15}'); a(f'v_mul_f32 v{base}, v{fg4}, v{step}')
    sincos4(a, base, step, 0, c, s); mat6(a, T, c, s)
    a(f'v_and_b32 v{m}, 1, v{vl15}'); a(f'v_sub_u32 v{m}, 0, v{m}'); a(f'v_and_b32 v{m}, 0x80008000, v{m}')
    for j in range(6):
        a(f'v_xor_b32 v{T+6+j}, v{m}, v{T+j}')
        a(f'v_xor_b32 v{T+12+j}, 0x80000000, v{T+j}')
        a(f'v_xor_b32 v{T+18+j}, 0x80000000, v{T+6+j}')
    R.free(c,4); R.free(s,4); R.free(base); R.free(step); R.free(m)
    return T

def cmul_pack(a, re, im, tc, ts, out, tmp, conj_out=False, inter=False):
    for j in (0, 2):
        a(f'v_pk_mul_f32 {V(tmp+j,2)}, {V(re+j,2)}, {V(tc+j,2)}')
        a(f'v_pk_mul_f32 {V(tmp+4+j,2)}, {V(re+j,2)}, {V(ts+j,2)}')
    for j in (0, 2):
        a(f'v_pk_fma_f32 {V(tmp+j,2)}, {V(im+j,2)}, {V(ts+j,2)}, {V(tmp+j,2)} neg_lo:[1,0,0] neg_hi:[1,0,0]')
        a(f'v_pk_fma_f32 {V(tmp+4+j,2)}, {V(im+j,2)}, {V(tc+j,2)}, {V(tmp+4+j,2)}')
    n = '-' if conj_out else ''
    a(f'v_cvt_pk_bf16_f32 v{out}, v{tmp}, v{tmp+1}'); a(f'v_cvt_pk_bf16_f32 v{out+1}, v{tmp+2}, v{tmp+3}')
    a(f'v_cvt_pk_bf16_f32 v{out+2}, {n}v{tmp+4}, {n}v{tmp+5}'); a(f'v_cvt_pk_bf16_f32 v{out+3}, {n}v{tmp+6}, {n}v{tmp+7}')

M16 = 'v_mfma_f32_16x16x32_bf16'; M32 = 'v_mfma_f32_32x32x16_bf16'

def lane_consts(a, R):
    vl15, fl15, fg4 = R.alloc(), R.alloc(), R.alloc()
    a(f'v_and_b32 v{vl15}, 15, v0'); a(f'v_cvt_f32_u32 v{fl15}, v{vl15}')
    a(f'v_lshrrev_b32 v{fg4}, 4, v0'); a(f'v_lshlrev_b32 v{fg4}, 2, v{fg4}'); a(f'v_cvt_f32_u32 v{fg4}, v{fg4}')
    return vl15, fl15, fg4

def k0(name):
    a = Asm()
    a('s_cmp_ge_u32 s2, 9'); a(f's_cbranch_scc1 {name}_done')
    a('s_load_dwordx2 s[80:81], s[0:1], 72'); a('s_waitcnt lgkmcnt(0)')
    srd(a, sWS, 80, WS_SIZE)
    a('s_lshl_b32 s3, s2, 12'); a(f's_add_u32 s3, s3, {WS_KV}')
    a('v_lshlrev_b32 v1, 4, v0')
    for i in range(4): a(f'v_mov_b32 v{4+i}, 0')
    a(f'buffer_store_dwordx4 v[4:7], v1, s[{sWS}:{sWS+3}], s3 offen')
    a.label(f'{name}_done'); a('s_endpgm')
    return a, 8

def k1(name):
    a = Asm()
    prologue(a, name)
    a(f's_lshl_b32 s62, s{sW4}, 11')
    a(f's_mov_b32 s60, {F(LOG2E)}'); a(f's_mov_b32 s61, {F(LOG2E)}')
    a(f's_cmp_ge_u32 s{sWV}, 4'); a(f's_cbranch_scc1 {name}_H')
    R = Regs(2)
    xf = R.alloc(128); accK = R.alloc(16); accV = R.alloc(16); bf = R.alloc(32)
    vkd = R.alloc(); vex = R.alloc()
    a(f's_lshl_b32 s{sT}, s{sW4}, 6'); a(f'v_add_u32 v{vkd}, s{sT}, v0'); a(f'v_lshlrev_b32 v{vex}, 1, v{vkd}')
    a(f's_and_b32 s{sT}, s{sP}, 63'); a(f's_lshr_b32 s{sT+1}, s{sP}, 6'); a(f's_lshl_b32 s{sT+1}, s{sT+1}, 8'); a(f's_add_u32 s{sT}, s{sT}, s{sT+1}')
    a(f's_mul_i32 s{sT}, s{sT}, 514')
    wr = xf; wi = xf+10
    for j in range(8):
        t, r = j//4, j%4
        a(f's_add_u32 s{sT+1}, s{sT}, {64*(16*t+r)*514}')
        a(f'buffer_load_ushort v{wr+j}, v{vex}, s[{sWR}:{sWR+3}], s{sT+1} offen')
        a(f'buffer_load_ushort v{wi+j}, v{vex}, s[{sWI}:{sWI+3}], s{sT+1} offen')
    e0, e1 = xf+20, xf+21
    a(f'v_and_b32 v{e0}, 3, v0'); a(f'v_bfe_u32 v{e1}, v0, 2, 1'); a(f'v_lshl_add_u32 v{vex}, v{e1}, 4, v{e0}')
    a(f'v_mul_u32_u24 v{vex}, {64*514}, v{vex}'); a(f'v_add_u32 v{vex}, 512, v{vex}')
    a(f'buffer_load_ushort v{wr+8}, v{vex}, s[{sWR}:{sWR+3}], s{sT} offen')
    a(f'buffer_load_ushort v{wi+8}, v{vex}, s[{sWI}:{sWI+3}], s{sT} offen')
    a(f'v_mul_u32_u24 v{e0}, {PS}, v{e0}'); a(f'v_add_u32 v{e0}, v{e0}, v{e1}'); a(f'v_lshlrev_b32 v{e0}, 2, v{e0}')
    vx0, vx1, vw = dma_setup(a, R)
    dma_group(a, 0, vx0, vx1, vw); dma_group(a, 1, vx0, vx1, vw)
    aA = R.alloc(4); aBX, aBK, aBV = R.alloc(), R.alloc(), R.alloc(); t0, t1 = R.alloc(), R.alloc()
    a(f's_lshr_b32 s{sT}, s{sW4}, 1'); a(f's_and_b32 s{sT+1}, s{sW4}, 1')
    a(f's_lshl_b32 s{sT+2}, s{sT}, 5')
    a(f'v_and_b32 v{t0}, 31, v0'); a(f'v_add_u32 v{t0}, s{sT+2}, v{t0}')
    a(f'v_bfe_u32 v{t1}, v{t0}, 1, 3'); a(f'v_lshrrev_b32 v{aA}, 5, v0'); a(f'v_xor_b32 v{t1}, v{t1}, v{aA}')
    a(f'v_lshlrev_b32 v{t1}, 4, v{t1}'); a(f'v_lshl_add_u32 v{aA}, v{t0}, 7, v{t1}')
    for k in range(1,4): a(f'v_xor_b32 v{aA+k}, {32*k}, v{aA}')
    a(f'v_lshrrev_b32 v{t0}, 5, v0'); a(f'v_lshlrev_b32 v{t0}, 3, v{t0}'); a(f'v_bfe_u32 v{t1}, v0, 2, 2'); a(f'v_add_u32 v{t0}, v{t0}, v{t1}')
    a(f'v_lshlrev_b32 v{aBX}, 7, v{t0}')
    a(f'v_bfe_u32 v{t1}, v0, 3, 1'); a(f'v_xor_b32 v{t1}, s{sT+1}, v{t1}'); a(f'v_lshl_add_u32 v{aBX}, v{t1}, 6, v{aBX}')
    a(f'v_bfe_u32 v{t1}, v0, 4, 1'); a(f'v_lshl_add_u32 v{aBX}, v{t1}, 5, v{aBX}')
    a(f'v_and_b32 v{t1}, 3, v0'); a(f'v_lshl_add_u32 v{aBX}, v{t1}, 3, v{aBX}')
    a(f'v_add_u32 v{aBK}, {KR}, v{aBX}'); a(f'v_add_u32 v{aBV}, {VR}, v{aBX}')
    a(f'v_lshlrev_b32 v{vkd}, 2, v{vkd}'); a(f'v_add_u32 v{vkd}, {L_PL}, v{vkd}'); a(f'v_add_u32 v{e0}, {L_PL+1040*4}, v{e0}')
    a('s_waitcnt vmcnt(12)')
    for j in range(9): a(f'v_lshl_or_b32 v{wr+j}, v{wi+j}, 16, v{wr+j}')
    for j in range(8):
        t, r = j//4, j%4
        a(f'ds_write_b32 v{vkd}, v{wr+j} offset:{(r*PS + (520 if t==0 else 784))*4}')
    a(f'ds_write_b32 v{e0}, v{wr+8}')
    a('s_waitcnt lgkmcnt(0)'); a('s_barrier')
    for c in range(8):
        slot = c % 5
        if c == 0: a('s_waitcnt vmcnt(6)')
        if c == 1: a('s_waitcnt vmcnt(0)')
        a('s_barrier')
        def reads(k):
            a(f'ds_read_b128 {V(xf+(c*4+k)*4,4)}, v{aA+k} offset:{XR+slot*8192}')
            for jj in range(2): a(f'ds_read_b64_tr_b16 {V(bf+k*8+jj*2,2)}, v{aBK} offset:{slot*8192+(16*k+4*jj)*128}')
            for jj in range(2): a(f'ds_read_b64_tr_b16 {V(bf+k*8+4+jj*2,2)}, v{aBV} offset:{slot*8192+(16*k+4*jj)*128}')
        reads(0); reads(1); reads(2)
        for k in range(4):
            a(f's_waitcnt lgkmcnt({[10,10,5,0][k] if k else 10})')
            cK = '0' if (c == 0 and k == 0) else V(accK,16); cV = '0' if (c == 0 and k == 0) else V(accV,16)
            a(f'{M32} {V(accK,16)}, {V(xf+(c*4+k)*4,4)}, {V(bf+k*8,4)}, {cK}')
            if k == 0: reads(3)
            a(f'{M32} {V(accV,16)}, {V(xf+(c*4+k)*4,4)}, {V(bf+k*8+4,4)}, {cV}')
    pk = bf; vv = bf+8; tmp = bf+16
    phi_pack(a, accK, 16, pk, tmp)
    for j in range(8): a(f'v_cvt_pk_bf16_f32 v{vv+j}, v{accV+2*j}, v{accV+2*j+1}')
    ones = tmp
    for j in range(4): a(f'v_mov_b32 v{ones+j}, 0x3f803f80')
    a(f'{M32} {V(accK,16)}, {V(pk,4)}, {V(vv,4)}, 0'); a(f'{M32} {V(accV,16)}, {V(pk,4)}, {V(ones,4)}, 0')
    a(f'{M32} {V(accK,16)}, {V(pk+4,4)}, {V(vv+4,4)}, {V(accK,16)}'); a(f'{M32} {V(accV,16)}, {V(pk+4,4)}, {V(ones,4)}, {V(accV,16)}')
    a(f's_lshr_b32 s{sT}, s{sW4}, 1'); a(f's_and_b32 s{sT+1}, s{sW4}, 1')
    a(f's_mul_i32 s{sT}, s{sT}, 4352'); a(f's_mul_i32 s{sT+1}, s{sT+1}, 2176'); a(f's_add_u32 s{sT}, s{sT}, s{sT+1}'); a(f's_add_u32 s{sT}, s{sT}, {L_KVR}')
    a(f'v_bfe_u32 v{t0}, v0, 4, 1'); a(f'v_mul_u32_u24 v{t0}, 1088, v{t0}'); a(f'v_lshrrev_b32 v{t1}, 5, v0'); a(f'v_lshl_add_u32 v{t0}, v{t1}, 5, v{t0}')
    a(f'v_add_u32 v{t0}, s{sT}, v{t0}')
    a(f'v_and_b32 v{t1}, 15, v0'); a(f'v_lshl_add_u32 v{t1}, v{t1}, 6, v{t0}')
    a('s_mov_b32 exec_lo, 0x0000ffff'); a('s_mov_b32 exec_hi, 0x0000ffff')
    a(f'ds_write_b128 v{t1}, {V(accK,4)}'); a(f'ds_write_b128 v{t1}, {V(accK+4,4)} offset:16')
    a('s_mov_b32 exec_lo, 0xffff0000'); a('s_mov_b32 exec_hi, 0xffff0000')
    a(f'ds_write_b128 v{t1}, {V(accK+8,4)}'); a(f'ds_write_b128 v{t1}, {V(accK+12,4)} offset:16')
    a('s_mov_b32 exec_lo, 0x00000001'); a('s_mov_b32 exec_hi, 0x00000001')
    a(f'ds_write_b128 v{t0}, {V(accV,4)} offset:1024'); a(f'ds_write_b128 v{t0}, {V(accV+4,4)} offset:1040')
    a('s_mov_b32 exec_lo, 0x00010000'); a('s_mov_b32 exec_hi, 0x00010000')
    a(f'ds_write_b128 v{t0}, {V(accV+8,4)} offset:1024'); a(f'ds_write_b128 v{t0}, {V(accV+12,4)} offset:1040')
    a('s_mov_b64 exec, -1')
    a('s_waitcnt lgkmcnt(0)'); a('s_barrier')
    def qread(n):
        j, k = n//4, n%4
        u = wq_unit(j); base, off = (aBX, u-XR) if u < KR else ((aBK, u-KR) if u < VR else (aBV, u-VR))
        for jj in range(2): a(f'ds_read_b64_tr_b16 {V(bf+(n%8)*4+jj*2,2)}, v{base} offset:{off+(16*k+4*jj)*128}')
    PF = 6
    for n in range(PF): qread(n)
    for n in range(32):
        left = min(PF-1, 31-n)
        a(f's_waitcnt lgkmcnt({2*left})')
        a(f'{M32} {V(accK,16)}, {V(bf+(n%8)*4,4)}, {V(xf+n*4,4)}, {"0" if n==0 else V(accK,16)}')
        if n+PF < 32: qread(n+PF)
    phi_pack(a, accK, 16, pk, tmp)
    a(f's_lshr_b32 s{sT}, s{sROW0}, 5'); a(f's_lshr_b32 s{sT+1}, s{sW4}, 1'); a(f's_add_u32 s{sT}, s{sT}, s{sT+1}'); a(f's_lshl_b32 s{sT}, s{sT}, 15')
    a(f's_lshl_b32 s{sT+1}, s{sHG}, 12'); a(f's_add_u32 s{sT}, s{sT}, s{sT+1}')
    a(f's_and_b32 s{sT+1}, s{sW4}, 1'); a(f's_lshl_b32 s{sT+1}, s{sT+1}, 11'); a(f's_add_u32 s{sT}, s{sT}, s{sT+1}'); a(f's_add_u32 s{sT}, s{sT}, {WS_PQ}')
    a(f'v_lshlrev_b32 v{t0}, 4, v0')
    a(f'buffer_store_dwordx4 {V(pk,4)}, v{t0}, s[{sWS}:{sWS+3}], s{sT} offen')
    a(f'buffer_store_dwordx4 {V(pk+4,4)}, v{t0}, s[{sWS}:{sWS+3}], s{sT} offen offset:1024')
    a('s_endpgm')
    hiG = R.hi
    a.label(f'{name}_H'); a.hist = []
    R = Regs(2)
    v16 = R.alloc()
    a(f'v_lshlrev_b32 v{v16}, 4, v0')
    a(f's_lshl_b32 s{sT}, s{sXCD}, 7'); a(f's_lshl_b32 s{sT+1}, s{sW4}, 5'); a(f's_add_u32 s{sT}, s{sT}, s{sT+1}'); a(f's_add_u32 s{sT}, s{sT}, s{sIDX}')
    a(f's_lshl_b32 s{sT}, s{sT}, 10'); a(f's_add_u32 s{sT+1}, s{sT}, {1024*1024}')
    a(f's_add_u32 m0, s62, {L_P1X}'); a(f'buffer_load_dwordx4 v{v16}, s[{sX}:{sX+3}], s{sT} offen lds')
    a(f's_add_u32 m0, s62, {L_P1X+1024}'); a(f'buffer_load_dwordx4 v{v16}, s[{sX}:{sX+3}], s{sT+1} offen lds')
    t0, t1 = R.alloc(), R.alloc()
    a(f'v_lshlrev_b32 v{t0}, 2, v0'); a(f's_lshl_b32 s{sT}, s{sW4}, 8'); a(f's_add_u32 m0, s{sT}, {L_GW}')
    a(f'buffer_load_dword v{t0}, s[{sGW}:{sGW+3}], s{sT} offen lds')
    vl15, fl15, fg4 = lane_consts(a, R)
    F32T = gen_f32(a, R, fl15, fg4, vl15)
    F16T = R.alloc(6); tc = R.alloc(8); ts = R.alloc(8); base = R.alloc(); step = R.alloc()
    a(f'v_mul_f32 v{step}, {F(1/16)}, v{fl15}'); a(f'v_mul_f32 v{base}, v{fg4}, v{step}')
    sincos4(a, base, step, 0, tc, ts); mat6(a, F16T, tc, ts)
    a(f'v_mul_f32 v{step}, {F(-1/512)}, v{fl15}'); a(f'v_mul_f32 v{base}, v{fg4}, v{step}')
    sincos4(a, base, step, 0, tc, ts); sincos4(a, base, step, 16, tc+4, ts+4)
    vx0, vx1, vw = dma_setup(a, R)
    aT = R.alloc()
    a(f'v_lshrrev_b32 v{t0}, 2, v0'); a(f'v_and_b32 v{t1}, 3, v0'); a(f'v_lshlrev_b32 v{t1}, 3, v{t1}'); a(f'v_lshl_add_u32 v{aT}, v{t0}, 6, v{t1}')
    a(f's_add_u32 s{sT}, s62, {L_P1X}'); a(f'v_add_u32 v{aT}, s{sT}, v{aT}')
    aZ = R.alloc()
    a(f'v_lshrrev_b32 v{t0}, 4, v0'); a(f'v_lshlrev_b32 v{t0}, 4, v{t0}'); a(f'v_lshl_add_u32 v{aZ}, v{vl15}, 6, v{t0}')
    a(f's_mul_i32 s{sT}, s{sW4}, {PS*4}'); a(f's_add_u32 s{sT}, s{sT}, {L_PL}'); a(f'v_add_u32 v{aZ}, s{sT}, v{aZ}')
    aO = R.alloc(4); stp = R.alloc()
    a(f's_lshl_b32 s{sT}, s{sW4}, 6'); a(f'v_lshrrev_b32 v{t0}, 2, v0'); a(f'v_add_u32 v{t0}, s{sT}, v{t0}')
    a(f'v_and_b32 v{t1}, 3, v0')
    a(f'v_cmp_eq_u32 vcc, 1, v{t1}')
    a(f'v_sub_u32 v{aO}, 512, v{t0}'); a(f'v_cndmask_b32 v{aO}, v{t0}, v{aO}, vcc')
    a(f'v_mov_b32 v{stp}, 64'); a(f'v_mov_b32 v{aO+1}, -64'); a(f'v_cndmask_b32 v{stp}, v{stp}, v{aO+1}, vcc')
    a(f'v_cmp_eq_u32 vcc, 2, v{t1}'); a(f'v_add_u32 v{aO+1}, 520, v{t0}'); a(f'v_cndmask_b32 v{aO}, v{aO}, v{aO+1}, vcc')
    a(f'v_cmp_eq_u32 vcc, 3, v{t1}'); a(f'v_add_u32 v{aO+1}, 784, v{t0}'); a(f'v_cndmask_b32 v{aO}, v{aO}, v{aO+1}, vcc')
    a(f'v_lshlrev_b32 v{aO}, 2, v{aO}'); a(f'v_add_u32 v{aO}, {L_PL}, v{aO}')
    for j in range(1,4): a(f'v_add_u32 v{aO+j}, v{aO+j-1}, v{stp}')
    a(f'v_cmp_eq_u32 vcc, {L_PL+2048}, v{aO}'); a(f'v_mov_b32 v{t0}, {L_PL+1024}'); a(f'v_cndmask_b32 v{aO}, v{aO}, v{t0}, vcc')
    X = R.alloc(8); Dr = R.alloc(8); Di = R.alloc(8); tmp = R.alloc(8); P = R.alloc(16)
    a('s_waitcnt vmcnt(1)')
    for t in range(2):
        for rho in range(2): a(f'ds_read_b64_tr_b16 {V(X+t*4+rho*2,2)}, v{aT} offset:{rho*1024+t*32}')
    for t in range(2):
        a(f's_waitcnt lgkmcnt({2-2*t})')
        a(f'{M16} {V(Dr+4*t,4)}, {V(X+4*t,4)}, {V(F16T+2,4)}, 0'); a(f'{M16} {V(Di+4*t,4)}, {V(X+4*t,4)}, {V(F16T,4)}, 0')
    for t in range(2): cmul_pack(a, Dr+4*t, Di+4*t, tc+4*t, ts+4*t, X+4*t, tmp)
    for t in range(2):
        for u in range(2):
            T = F32T + (u*2+t)*6
            a(f'{M16} {V(Dr+4*u,4)}, {V(X+4*t,4)}, {V(T+2,4)}, {"0" if t==0 else V(Dr+4*u,4)}')
            a(f'{M16} {V(Di+4*u,4)}, {V(X+4*t,4)}, {V(T,4)}, {"0" if t==0 else V(Di+4*u,4)}')
    for u in range(2):
        for r in range(4): a(f'v_cvt_pk_bf16_f32 v{P+4*u+r}, v{Dr+4*u+r}, v{Di+4*u+r}')
        a(f'ds_write_b128 v{aZ}, {V(P+4*u,4)} offset:{u*1024}')
    a('s_waitcnt lgkmcnt(0)'); a('s_barrier')
    for j in range(4):
        a(f'ds_read2st64_b32 {V(P+4*j,2)}, v{aO+j} offset0:0 offset1:17'); a(f'ds_read2st64_b32 {V(P+4*j+2,2)}, v{aO+j} offset0:34 offset1:51')
    a(f'v_and_b32 v{t0}, 1, v0'); a(f'v_lshlrev_b32 v{t0}, 2, v{t0}'); a(f'v_add_u32 v{t0}, {L_PL+1040*4}, v{t0}')
    a(f'ds_read2st64_b32 {V(X,2)}, v{t0} offset0:0 offset1:17'); a(f'ds_read2st64_b32 {V(X+2,2)}, v{t0} offset0:34 offset1:51')
    a(f's_mul_i32 s{sT}, s{sP}, {ZSTRIDE}'); a(f's_lshl_b32 s{sT+1}, s{sW4}, 12'); a(f's_add_u32 s{sT+1}, s{sT}, s{sT+1}'); a(f's_add_u32 s{sT}, s{sT}, 16384')
    for j in range(4):
        a(f's_waitcnt lgkmcnt({8-2*j})')
        a(f'buffer_store_dwordx4 {V(P+4*j,4)}, v{v16}, s[{sWS}:{sWS+3}], s{sT+1} offen offset:{j*1024}')
    a('s_waitcnt lgkmcnt(0)')
    a('s_mov_b64 exec, 3')
    a(f'buffer_store_dwordx4 {V(X,4)}, v{v16}, s[{sWS}:{sWS+3}], s{sT} offen')
    a('s_mov_b64 exec, -1')
    issued = {2: dma_group(a, 2, vx0, vx1, vw)}
    aGx, aGw, gacc, aGc = R.alloc(), R.alloc(), R.alloc(), R.alloc()
    a(f's_lshl_b32 s{sT}, s{sHH}, 12'); a(f's_lshl_b32 s{sT+1}, s{sW4}, 10'); a(f's_add_u32 s{sT}, s{sT}, s{sT+1}'); a(f'v_add_u32 v{aGx}, s{sT}, v{v16}')
    a(f'v_bfe_u32 v{t0}, v{aGx}, 8, 3'); a(f'v_and_b32 v{t1}, 7, v0'); a(f'v_xor_b32 v{t0}, v{t0}, v{t1}'); a(f'v_lshlrev_b32 v{t0}, 4, v{t0}'); a(f'v_add_u32 v{aGw}, {L_GW}, v{t0}')
    a(f'v_mov_b32 v{gacc}, 0')
    for c in range(8):
        slot = c % 5
        if c >= 2:
            younger = sum(n for g, n in issued.items() if g > c)
            a(f's_waitcnt vmcnt({younger})')
        elif c == 0:
            a(f's_waitcnt vmcnt({5+issued[2]})')
        a('s_barrier')
        a(f's_add_u32 s{sT+4}, s{sROT}, {c}'); a(f's_and_b32 s{sT+4}, s{sT+4}, 7'); a(f's_lshl_b32 s{sT+4}, s{sT+4}, 7')
        a(f'v_add_u32 v{aGc}, s{sT+4}, v{aGw}')
        a(f'ds_read_b128 {V(X,4)}, v{aGx} offset:{XR+slot*8192}'); a(f'ds_read_b128 {V(X+4,4)}, v{aGc}')
        issued[c+3] = dma_group(a, c+3, vx0, vx1, vw)
        a('s_waitcnt lgkmcnt(0)')
        for j in range(4): a(f'v_dot2_f32_bf16 v{gacc}, v{X+j}, v{X+4+j}, v{gacc}')
    a(f'v_add_f32_dpp v{gacc}, v{gacc}, v{gacc} quad_perm:[1,0,3,2] row_mask:0xf bank_mask:0xf')
    a(f'v_add_f32_dpp v{gacc}, v{gacc}, v{gacc} quad_perm:[2,3,0,1] row_mask:0xf bank_mask:0xf')
    a(f'v_add_f32_dpp v{gacc}, v{gacc}, v{gacc} row_half_mirror row_mask:0xf bank_mask:0xf')
    a(f'v_cvt_pk_bf16_f32 v{gacc}, v{gacc}, v{gacc}'); a(f'v_and_b32 v{gacc}, 0xffff0000, v{gacc}')
    a(f'v_mul_f32 v{gacc}, {F(-LOG2E)}, v{gacc}'); a(f'v_exp_f32 v{gacc}, v{gacc}'); a(f'v_add_f32 v{gacc}, 1.0, v{gacc}'); a(f'v_rcp_f32 v{gacc}, v{gacc}')
    a(f'v_cvt_pk_bf16_f32 v{gacc}, v{gacc}, v{gacc}'); a(f'v_and_b32 v{gacc}, 0xffff0000, v{gacc}')
    a(f'v_lshrrev_b32 v{t0}, 3, v0'); a(f'v_lshlrev_b32 v{t0}, 2, v{t0}')
    a(f's_lshl_b32 s{sT}, s2, 7'); a(f's_lshl_b32 s{sT+1}, s{sW4}, 5'); a(f's_add_u32 s{sT}, s{sT}, s{sT+1}'); a(f's_add_u32 s{sT}, s{sT}, {WS_G}')
    a('s_waitcnt vmcnt(0)')
    a(f'buffer_store_dword v{gacc}, v{t0}, s[{sWS}:{sWS+3}], s{sT} offen')
    a('s_barrier')
    a(f'v_lshlrev_b32 v{t0}, 2, v0'); a(f's_lshl_b32 s{sT}, s{sW4}, 8'); a(f'v_add_u32 v{t0}, s{sT}, v{t0}'); a(f'v_add_u32 v{t1}, {L_KVR}, v{t0}')
    for rnd in range(5): a(f'ds_read2st64_b32 {V(P+2*rnd,2)}, v{t1} offset0:{4*rnd} offset1:{4*rnd+17}')
    a(f's_mul_i32 s{sT}, s{sHG}, 4352'); a(f's_add_u32 s{sT}, s{sT}, {WS_KV}')
    a('s_waitcnt lgkmcnt(0)')
    for rnd in range(5): a(f'v_add_f32 v{P+2*rnd}, v{P+2*rnd}, v{P+2*rnd+1}')
    for rnd in range(4): a(f'buffer_atomic_add_f32 v{P+2*rnd}, v{t0}, s[{sWS}:{sWS+3}], s{sT} offen offset:{rnd*1024}')
    a(f's_cmp_lg_u32 s{sW4}, 0'); a(f's_cbranch_scc1 {name}_done')
    a(f's_add_u32 s{sT}, s{sT}, 4096')
    a(f'buffer_atomic_add_f32 v{P+8}, v{t0}, s[{sWS}:{sWS+3}], s{sT} offen')
    a.label(f'{name}_done'); a('s_endpgm')
    return a, max(hiG, R.hi)

if __name__ == '__main__':
    from gen23 import k2, k3
    ks = [('k0_kernel', k0, 9, 256, 0), ('k1_kernel', k1, 256, 512, 163840), ('k2_kernel', k2, 256, 256, 65536), ('k3_kernel', k3, 256, 512, 163840)]
    out = ''
    for n, f, g, b, l in ks: out += f'; @launch kernel={n} grid=({g},1,1) block=({b},1,1) lds={l}\n'
    out += '.amdgcn_target "amdgcn-amd-amdhsa--gfx950"\n.text\n'
    desc = ''
    for n, f, g, b, l in ks:
        a, nv = f(n)
        print(n, 'instrs', a.count, 'nops', a.nops, 'vgprs', nv, file=sys.stderr)
        out += kernel_header(n) + a.text()
        desc += '.p2align 6\n' + kernel_desc(n, nv, 96)
    out += '.section .rodata,"a"\n' + desc
    open(sys.argv[1] if len(sys.argv) > 1 else 'v1.s', 'w').write(out)
```

```python
import sys, math, os
sys.path.insert(0,'lib')
from asmgen import *
NAME='gated_mix__spectral_gfnet__linear_attn_block__prompt_kernel'
STAMP = int(os.environ.get('STAMP','0'))
OPT = dict(x.split('=') for x in os.environ.get('OPT','').split(',') if x)
def opt(k, d): return int(OPT.get(k, d))

WS_Z=0; ZSTRIDE=16640; WS_PQ=0x480000; WS_Y=0x680000; WS_KV=0x880000; WS_F1=0x890000; WS_F2=0x8a0000; WS_GEN=0x8b0000; WS_ST=0x8c0000; WS_SIZE=0x900000
XR=0; KR=40960; VR=81920; SC=122880
PS=1088
L_SY=SC; L_GP=SC+256; L_GW=SC+768; L_A=L_GW+1024; L_B=L_A+16384; L_END=L_B+4*PS*4
L_P1X=L_A; L_WRAW=L_A+8192; L_IN=L_A; L_OT=L_A; L_PL=L_B; L_EX=L_B; L_KVR=L_B+8192
assert L_END <= 163840 and L_KVR+8704 <= L_END and L_A % 256 == 0
L_Y=0; L_O=32768; L_EP=65536; RS=528
LOG2E=1.4426950408889634
TAGC=0x9E3779B9
sX,sWR,sWI,sWQ,sWO,sGW,sOUT,sWS = 8,12,16,20,24,28,32,36
sXCD,sIDX,sP,sHG,sROW0,sROT,sWV,sW4,sHH,sHL = 40,41,42,43,44,45,46,47,48,49
sT=50; sSC=58; sL2E=60; sLW=62; sTAG=63; sAT=64; sKH=65; sCNT=66
M16 = 'v_mfma_f32_16x16x32_bf16'; M32 = 'v_mfma_f32_32x32x16_bf16'
def SR(d): return f's[{d}:{d+3}]'

class Stamps:
    def __init__(self, a, names=()): self.a = a; self.names = list(names)
    def __call__(self, name):
        if not STAMP: return
        n = len(self.names); assert n < 16, name
        self.a(f's_memrealtime s[{68+2*n}:{69+2*n}]'); self.names.append(name)
def stamp_flush(a, n):
    if not STAMP: return
    L = a.newlabel('stf')
    a('s_waitcnt lgkmcnt(0)')
    a(f's_cmp_lg_u32 s{sW4}, 0'); a(f's_cbranch_scc1 {L}')
    a(f's_lshl_b32 s{sT}, s2, 8'); a(f's_add_u32 s{sT}, s{sT}, {WS_ST}')
    a(f's_lshr_b32 s{sT+1}, s{sWV}, 2'); a(f's_lshl_b32 s{sT+1}, s{sT+1}, 7'); a(f's_add_u32 s{sT}, s{sT}, s{sT+1}')
    a('s_mov_b64 exec, 1'); a('v_mov_b32 v4, 0')
    for i in range(n):
        a(f'v_mov_b32 v2, s{68+2*i}'); a(f'v_mov_b32 v3, s{69+2*i}')
        a(f'buffer_store_dwordx2 v[2:3], v4, {SR(sWS)}, s{sT} offen offset:{8*i}'); a('s_nop 1')
    a.label(L)

vL16=1; vPA=2; vSY=3; vS=4; VBASE=10
def arrive(a, stage):
    a(f'v_mov_b32 v{vS+4}, {stage}'); a(f'ds_write_b32 v{vPA}, v{vS+4}')
def sync_read(a, grp): a(f'ds_read_b128 {V(vS,4)}, v{vSY} offset:{16*grp}')
def sync_check(a, grp, stage):
    L = a.newlabel('sw'); L2 = a.newlabel('sd')
    a.label(L)
    a('s_waitcnt lgkmcnt(0)')
    a(f'v_min3_u32 v{vS}, v{vS}, v{vS+1}, v{vS+2}'); a(f'v_min_u32 v{vS}, v{vS}, v{vS+3}')
    a(f'v_readfirstlane_b32 s{sT+7}, v{vS}')
    a(f's_cmp_ge_u32 s{sT+7}, {stage}'); a(f's_cbranch_scc1 {L2}')
    sync_read(a, grp); a(f's_branch {L}')
    a.label(L2)
def sync_wait(a, grp, stage): sync_read(a, grp); sync_check(a, grp, stage)
GRP_H=0; GRP_G=1

def signal_flag(a, cnt_off, last, ws_off):
    L = a.newlabel('sig')
    a('s_mov_b64 exec, 1')
    a(f'v_mov_b32 v{vS+4}, 1'); a(f'ds_add_rtn_u32 v{vS}, v{vSY}, v{vS+4} offset:{cnt_off}')
    a('s_waitcnt lgkmcnt(0)')
    a(f'v_readfirstlane_b32 s{sT+7}, v{vS}')
    a('s_mov_b64 exec, 0xff')
    a(f's_cmp_lg_u32 s{sT+7}, {last}'); a(f's_cbranch_scc1 {L}')
    a(f's_lshr_b32 s{sT+6}, s{sP}, 4'); a(f's_lshl_b32 s{sT+6}, s{sT+6}, 8'); a(f's_and_b32 s{sT+7}, s{sP}, 15'); a(f's_lshl_b32 s{sT+7}, s{sT+7}, 2')
    a(f's_add_u32 s{sT+6}, s{sT+6}, s{sT+7}'); a(f's_add_u32 s{sT+6}, s{sT+6}, {ws_off}')
    a(f'v_lshlrev_b32 v{vS}, 13, v0'); a(f'v_mov_b32 v{vS+1}, s{sTAG}')
    a(f'buffer_store_dword v{vS+1}, v{vS}, {SR(sWS)}, s{sT+6} offen sc1')
    a.label(L)
    a('s_mov_b64 exec, -1')

def wq_unit(j):
    g = 8 + j//3; slot = g % 5
    return [XR, KR, VR][j % 3] + slot*8192
def wo_unit(u):
    if u < 6: return [XR, KR, VR][u % 3] + (1 + u//3)*8192
    if u == 6: return VR
    if u == 7: return L_KVR
    return wq_unit(u-8)

def dma_group(a, g, vx0, vx1, vw):
    B = []; pre = []
    def one(v, srdr, soff, lds):
        nonlocal pre
        B.append(pre + [f's_add_u32 m0, s{sLW}, {lds}', f'buffer_load_dwordx4 v{v}, {SR(srdr)}, s{soff} offen lds']); pre = []
    if g < 8:
        slot = g % 5
        pre += [f's_add_u32 s{sT}, s{sROT}, {g}', f's_and_b32 s{sT}, s{sT}, 7', f's_lshl_b32 s{sT+1}, s{sT}, 7', f's_mul_i32 s{sT+2}, s{sT}, {64*3072}']
        one(vx0, sX, sT+1, XR+slot*8192); one(vx1, sX, sT+1, XR+slot*8192+1024)
        for part, base in ((1, KR), (2, VR)):
            for ii in range(2):
                pre += [f's_add_u32 s{sT+3+ii}, s{sT+2}, {part*1024 + ii*8*3072}']
                one(vw, sWQ, sT+3+ii, base+slot*8192+ii*1024)
    else:
        for j in range((g-8)*3, min(8, (g-8)*3+3)):
            pre += [f's_add_u32 s{sT}, s{sROT}, {j}', f's_and_b32 s{sT}, s{sT}, 7', f's_mul_i32 s{sT+2}, s{sT}, {64*3072}']
            one(vw, sWQ, sT+2, wq_unit(j))
            pre += [f's_add_u32 s{sT+3}, s{sT+2}, {8*3072}']
            one(vw, sWQ, sT+3, wq_unit(j)+1024)
    return B
def emit(a, bundles):
    for b in bundles:
        for l in b: a(l)

def phi_pack(a, acc, n, out, tmp):
    for j in range(0, n, 2): a(f'v_pk_mul_f32 {V(tmp+j,2)}, {V(acc+j,2)}, s[{sL2E}:{sL2E+1}]')
    for j in range(n):
        a(f'v_exp_f32_e64 v{tmp+j}, v{tmp+j} clamp')
        a(f'v_max_f32 v{acc+j}, {F(1e-6)}, v{acc+j}')
    for j in range(0, n, 2): a(f'v_pk_add_f32 {V(tmp+j,2)}, {V(tmp+j,2)}, {V(acc+j,2)}')
    for j in range(0, n, 2): a(f'v_cvt_pk_bf16_f32 v{out+j//2}, v{tmp+j}, v{tmp+j+1}')

def sincos4(a, base, step, r0, c, s):
    for r in range(4):
        k = r0 + r
        if k == 0: a(f'v_mov_b32 v{s+r}, v{base}')
        else: a(f'v_fmamk_f32 v{s+r}, v{step}, {F(float(k))}, v{base}')
    for r in range(4): a(f'v_cos_f32 v{c+r}, v{s+r}')
    for r in range(4): a(f'v_sin_f32 v{s+r}, v{s+r}')
def mat6(a, dst, c, s):
    a(f'v_cvt_pk_bf16_f32 v{dst+2}, v{c}, v{c+1}'); a(f'v_cvt_pk_bf16_f32 v{dst+3}, v{c+2}, v{c+3}')
    a(f'v_cvt_pk_bf16_f32 v{dst+4}, v{s}, v{s+1}'); a(f'v_cvt_pk_bf16_f32 v{dst+5}, v{s+2}, v{s+3}')
    a(f'v_xor_b32 v{dst+0}, 0x80008000, v{dst+4}'); a(f'v_xor_b32 v{dst+1}, 0x80008000, v{dst+5}')
def cmul_pack(a, re, im, tc, ts, out, tmp, conj_out=False):
    for j in (0, 2):
        a(f'v_pk_mul_f32 {V(tmp+j,2)}, {V(re+j,2)}, {V(tc+j,2)}')
        a(f'v_pk_mul_f32 {V(tmp+4+j,2)}, {V(re+j,2)}, {V(ts+j,2)}')
    for j in (0, 2):
        a(f'v_pk_fma_f32 {V(tmp+j,2)}, {V(im+j,2)}, {V(ts+j,2)}, {V(tmp+j,2)} neg_lo:[1,0,0] neg_hi:[1,0,0]')
        a(f'v_pk_fma_f32 {V(tmp+4+j,2)}, {V(im+j,2)}, {V(tc+j,2)}, {V(tmp+4+j,2)}')
    n = '-' if conj_out else ''
    a(f'v_cvt_pk_bf16_f32 v{out}, v{tmp}, v{tmp+1}'); a(f'v_cvt_pk_bf16_f32 v{out+1}, v{tmp+2}, v{tmp+3}')
    a(f'v_cvt_pk_bf16_f32 v{out+2}, {n}v{tmp+4}, {n}v{tmp+5}'); a(f'v_cvt_pk_bf16_f32 v{out+3}, {n}v{tmp+6}, {n}v{tmp+7}')

TF=10; WF=74; ACA=138; ACB=154; PQ=170; KVF=186; YL=218; FT=234
def fin_table(a, part=None):
    P = FT; T = FT+8; D = FT+16; step = FT+18; base = FT+19; t0 = FT+20; t1 = FT+21
    a(f's_lshl_b32 s{sT}, s{sHL}, 7'); a(f's_lshl_b32 s{sT+1}, s{sW4}, 5'); a(f's_add_u32 s{sT}, s{sT}, s{sT+1}')
    a(f'v_and_b32 v{t0}, 31, v0'); a(f'v_add_u32 v{t0}, s{sT}, v{t0}'); a(f'v_cvt_f32_u32 v{step}, v{t0}'); a(f'v_mul_f32 v{step}, {F(1/512)}, v{step}')
    a(f'v_lshrrev_b32 v{t1}, 5, v0'); a(f'v_lshlrev_b32 v{t1}, 2, v{t1}'); a(f's_lshl_b32 s{sT}, s{sKH}, 7'); a(f'v_add_u32 v{t1}, s{sT}, v{t1}')
    a(f'v_cvt_f32_u32 v{base}, v{t1}'); a(f'v_mul_f32 v{base}, v{base}, v{step}')
    for j in range(4):
        if j == 0: a(f'v_mov_b32 v{P+1}, v{base}')
        else: a(f'v_fmamk_f32 v{P+2*j+1}, v{step}, {F(float(j))}, v{base}')
    a(f'v_mul_f32 v{D+1}, {F(8.0)}, v{step}')
    for j in range(4): a(f'v_cos_f32 v{P+2*j}, v{P+2*j+1}'); a(f'v_sin_f32 v{P+2*j+1}, v{P+2*j+1}')
    a(f'v_cos_f32 v{D}, v{D+1}'); a(f'v_sin_f32 v{D+1}, v{D+1}')
    for k in range(16):
        for j in range(4): a(f'v_cvt_pk_bf16_f32 v{TF+4*k+j}, v{P+2*j}, v{P+2*j+1}')
        if k < 15:
            for j in range(4): a(f'v_pk_mul_f32 {V(T+2*j,2)}, {V(P+2*j,2)}, {V(D,2)} op_sel_hi:[1,0]')
            for j in range(4): a(f'v_pk_fma_f32 {V(P+2*j,2)}, {V(P+2*j,2)}, {V(D,2)}, {V(T+2*j,2)} op_sel:[1,1,0] op_sel_hi:[0,1,1] neg_lo:[0,1,0]')
        if part is not None and k == part[0]: part[1]()
    a(f'v_lshlrev_b32 v{t0}, 31, v{t0}'); a(f'v_xor_b32 v{t0}, 0xbf003f00, v{t0}')
    a(f'v_cmp_eq_u32 vcc, 0, v{t1}'); a(f'v_cndmask_b32 v{TF}, v{TF}, v{t0}, vcc')

def pull_wo(a, kh):
    B = FT; t0 = FT+4; t1 = FT+5
    a(f'v_bfe_u32 v{t0}, v0, 2, 2'); a(f'v_lshrrev_b32 v{t1}, 5, v0'); a(f'v_lshl_add_u32 v{B}, v{t1}, 2, v{t0}'); a(f'v_lshlrev_b32 v{B}, 8, v{B}')
    a(f'v_xor_b32 v{t0}, s{sW4}, v{t0}'); a(f'v_lshl_add_u32 v{B}, v{t0}, 6, v{B}')
    a(f'v_bfe_u32 v{t0}, v0, 4, 1'); a(f'v_lshl_add_u32 v{B}, v{t0}, 5, v{B}')
    a(f'v_and_b32 v{t0}, 3, v0'); a(f'v_lshl_add_u32 v{B}, v{t0}, 3, v{B}')
    a(f'v_add_u32 v{B+1}, 57344, v{B}'); a(f'v_add_u32 v{B+2}, 114688, v{B}')
    a('s_barrier')
    for n in range(16):
        u = 8*kh + n//2
        for jj in range(2):
            ad = wo_unit(u) + ((n & 1)*16 + 8*jj)*256
            q = ad // 57344
            a(f'ds_read_b64_tr_b16 {V(WF+4*n+2*jj,2)}, v{B+q} offset:{ad - q*57344}')

def build():
    a = Asm(); ST = Stamps(a); ST('start')
    a('s_cmp_ge_u32 s2, 256'); a(f's_cbranch_scc1 L_done')
    for d, off in ((sX,0),(sWQ,32),(sWR,8),(sWI,16),(sWS,72),(sGW,48),(sWO,40),(sOUT,56)):
        a(f's_load_dwordx2 s[{d}:{d+1}], s[0:1], {off}')
    a('v_lshrrev_b32 v1, 6, v0'); a('v_and_b32 v0, 63, v0'); a(f'v_readfirstlane_b32 s{sWV}, v1')
    a(f's_and_b32 s{sXCD}, s2, 7'); a(f's_lshr_b32 s{sIDX}, s2, 3')
    a(f'v_mov_b32 v{vSY}, {L_SY}'); a(f'v_lshlrev_b32 v{vL16}, 4, v0')
    a(f's_and_b32 s{sW4}, s{sWV}, 3'); a(f's_lshl_b32 s{sLW}, s{sW4}, 11')
    a(f's_lshl_b32 s{sT}, s{sWV}, 2'); a(f'v_add_u32 v{vPA}, s{sT}, v{vSY}'); a(f'v_mov_b32 v{vS}, 0'); a(f'v_mov_b32 v{vS+1}, 0')
    a(f'ds_write_b32 v{vPA}, v{vS}'); a(f'ds_write_b64 v{vSY}, {V(vS,2)} offset:32')
    for d, n in ((sX,0x200000),(sWQ,512*3072),(sWR,2048*514),(sWI,2048*514),(sWS,WS_SIZE),(sGW,1024),(sWO,512*1024),(sOUT,0x200000)):
        a(f's_mov_b32 s{d+2}, {n}'); a(f's_mov_b32 s{d+3}, 0x20000')
    a(f's_lshl_b32 s{sP}, s{sXCD}, 5'); a(f's_add_u32 s{sP}, s{sP}, s{sIDX}')
    a(f's_and_b32 s{sHH}, s{sXCD}, 1'); a(f's_and_b32 s{sHL}, s{sIDX}, 3')
    a(f's_lshl_b32 s{sHG}, s{sHH}, 2'); a(f's_add_u32 s{sHG}, s{sHG}, s{sHL}')
    a(f's_lshr_b32 s{sT}, s{sIDX}, 2')
    a(f's_lshl_b32 s{sROT}, s{sHL}, 1'); a(f's_add_u32 s{sROT}, s{sROT}, s{sT}'); a(f's_and_b32 s{sROT}, s{sROT}, 7')
    a(f's_lshr_b32 s{sROW0}, s{sXCD}, 1'); a(f's_lshl_b32 s{sROW0}, s{sROW0}, 8')
    a(f's_and_b32 s{sT+1}, s{sT}, 3'); a(f's_lshl_b32 s{sT+1}, s{sT+1}, 6'); a(f's_add_u32 s{sROW0}, s{sROW0}, s{sT+1}')
    a(f's_lshr_b32 s{sT+1}, s{sT}, 2'); a(f's_lshl_b32 s{sT+1}, s{sT+1}, 10'); a(f's_add_u32 s{sROW0}, s{sROW0}, s{sT+1}')
    a(f's_lshr_b32 s{sAT}, s{sROW0}, 5'); a(f's_add_u32 s{sAT}, s{sAT}, s{sHH}'); a(f's_lshr_b32 s{sKH}, s{sWV}, 2')
    a(f's_cmp_ge_u32 s{sWV}, 4'); a('s_cbranch_scc1 L_G')
    names0 = list(ST.names)
    hiH = gen_H(a, ST)
    nH = list(ST.names)
    a('s_branch L_FIN')
    a.label('L_G'); a.hist = []
    ST.names = list(names0)
    hiG = gen_G(a, ST)
    nG = list(ST.names)
    assert len(nG) == len(nH), (nG, nH)
    a.label('L_FIN'); a.hist = []
    gen_FIN(a, ST)
    a.label('L_done'); a('s_endpgm')
    gen_special(a)
    if STAMP: print('H:', nH, '\nG:', ST.names, file=sys.stderr)
    print('instrs', a.count, 'nops', a.nops, 'vgprs', hiH, hiG, file=sys.stderr)
    return a

SP = {}
def gen_H(a, ST):
    R = Regs(VBASE)
    t0, t1 = R.alloc(), R.alloc()
    a(f's_lshl_b32 s{sT}, s{sXCD}, 7'); a(f's_lshl_b32 s{sT+1}, s{sW4}, 5'); a(f's_add_u32 s{sT}, s{sT}, s{sT+1}'); a(f's_add_u32 s{sT}, s{sT}, s{sIDX}')
    a(f's_lshl_b32 s{sT}, s{sT}, 10'); a(f's_add_u32 s{sT+1}, s{sT}, {1024*1024}')
    vWs = R.alloc(); vEx = R.alloc()
    a(f'v_lshrrev_b32 v{t0}, 4, v0'); a(f'v_mul_u32_u24 v{vWs}, {64*514}, v{t0}'); a(f'v_and_b32 v{t1}, 0xf0, v{vL16}'); a(f'v_add_u32 v{vWs}, v{vWs}, v{t1}')
    a(f's_and_b32 s{sT+2}, s{sP}, 63'); a(f's_lshr_b32 s{sT+3}, s{sP}, 6'); a(f's_lshl_b32 s{sT+3}, s{sT+3}, 8'); a(f's_add_u32 s{sT+2}, s{sT+2}, s{sT+3}')
    a(f's_mul_i32 s{sT+2}, s{sT+2}, 514')
    a(f's_and_b32 s{sT+3}, s{sW4}, 1'); a(f's_mul_i32 s{sT+3}, s{sT+3}, {1024*514}'); a(f's_add_u32 s{sT+2}, s{sT+2}, s{sT+3}')
    a(f's_lshr_b32 s{sT+3}, s{sW4}, 1'); a(f's_lshl_b32 s{sT+3}, s{sT+3}, 8'); a(f's_add_u32 s{sT+3}, s{sT+2}, s{sT+3}')
    a(f'v_and_b32 v{vEx}, 3, v0'); a(f'v_mul_u32_u24 v{vEx}, {64*514}, v{vEx}')
    vl15, fl15, fg4 = R.alloc(), R.alloc(), R.alloc()
    a(f'v_and_b32 v{vl15}, 15, v0'); a(f'v_cvt_f32_u32 v{fl15}, v{vl15}')
    a(f'v_lshlrev_b32 v{fg4}, 2, v{t0}'); a(f'v_cvt_f32_u32 v{fg4}, v{fg4}')
    F16T = R.alloc(6); tc = R.alloc(8); ts = R.alloc(8); base = R.alloc(); step = R.alloc()
    a(f'v_mul_f32 v{step}, {F(1/16)}, v{fl15}'); a(f'v_mul_f32 v{base}, v{fg4}, v{step}')
    sincos4(a, base, step, 0, tc, ts); mat6(a, F16T, tc, ts)
    a('s_waitcnt lgkmcnt(0)'); ST('karg')
    a(f's_add_u32 m0, s{sLW}, {L_P1X}'); a(f'buffer_load_dwordx4 v{vL16}, {SR(sX)}, s{sT} offen lds')
    a(f's_add_u32 m0, s{sLW}, {L_P1X+1024}'); a(f'buffer_load_dwordx4 v{vL16}, {SR(sX)}, s{sT+1} offen lds')
    a(f's_add_u32 m0, s{sLW}, {L_WRAW}'); a(f'buffer_load_dwordx4 v{vWs}, {SR(sWR)}, s{sT+3} offen lds')
    a(f's_add_u32 m0, s{sLW}, {L_WRAW+1024}'); a(f'buffer_load_dwordx4 v{vWs}, {SR(sWI)}, s{sT+3} offen lds')
    e0, e1 = R.alloc(), R.alloc()
    a(f'buffer_load_ushort v{e0}, v{vEx}, {SR(sWR)}, s{sT+2} offen offset:512')
    a(f'buffer_load_ushort v{e1}, v{vEx}, {SR(sWI)}, s{sT+2} offen offset:512')
    a(f's_add_u32 s4, s{sWS}, {WS_GEN}'); a(f's_addc_u32 s5, s{sWS+1}, 0'); a(f's_load_dword s{sTAG}, s[4:5], 0')
    a('s_barrier')
    F32T = R.alloc(24); m = R.alloc()
    a(f'v_mul_f32 v{step}, {F(1/32)}, v{fl15}'); a(f'v_mul_f32 v{base}, v{fg4}, v{step}')
    sincos4(a, base, step, 0, tc, ts); mat6(a, F32T, tc, ts)
    a(f'v_and_b32 v{m}, 1, v{vl15}'); a(f'v_sub_u32 v{m}, 0, v{m}'); a(f'v_and_b32 v{m}, 0x80008000, v{m}')
    for j in range(6):
        a(f'v_xor_b32 v{F32T+6+j}, v{m}, v{F32T+j}'); a(f'v_xor_b32 v{F32T+12+j}, 0x80000000, v{F32T+j}'); a(f'v_xor_b32 v{F32T+18+j}, 0x80000000, v{F32T+6+j}')
    a(f'v_mul_f32 v{step}, {F(-1/512)}, v{fl15}'); a(f'v_mul_f32 v{base}, v{fg4}, v{step}')
    sincos4(a, base, step, 0, tc, ts); sincos4(a, base, step, 16, tc+4, ts+4)
    aT = R.alloc(); aZ = R.alloc(); aO = R.alloc(4); stp = R.alloc(); aWt = R.alloc(); aWp = R.alloc()
    a(f'v_lshrrev_b32 v{t0}, 2, v0'); a(f'v_and_b32 v{t1}, 3, v0'); a(f'v_lshlrev_b32 v{aWt}, 3, v{t1}'); a(f'v_lshl_add_u32 v{aT}, v{t0}, 6, v{aWt}')
    a(f's_add_u32 s{sT}, s{sLW}, {L_P1X}'); a(f'v_add_u32 v{aT}, s{sT}, v{aT}')
    a(f'v_bfe_u32 v{m}, v0, 2, 1'); a(f'v_lshl_add_u32 v{aWt}, v{m}, 10, v{aWt}')
    a(f'v_bfe_u32 v{m}, v0, 3, 1'); a(f'v_lshl_add_u32 v{aWt}, v{m}, 8, v{aWt}')
    a(f'v_lshrrev_b32 v{m}, 4, v0'); a(f'v_lshl_add_u32 v{aWt}, v{m}, 5, v{aWt}')
    a(f's_add_u32 s{sT}, s{sLW}, {L_WRAW}'); a(f'v_add_u32 v{aWt}, s{sT}, v{aWt}')
    a(f's_and_b32 s{sT}, s{sW4}, 1'); a(f's_mul_i32 s{sT+1}, s{sT}, {264*4}'); a(f's_lshr_b32 s{sT+2}, s{sW4}, 1'); a(f's_lshl_b32 s{sT+2}, s{sT+2}, 9')
    a(f's_add_u32 s{sT+1}, s{sT+1}, s{sT+2}'); a(f's_add_u32 s{sT+1}, s{sT+1}, {L_PL+520*4}'); a(f'v_lshl_add_u32 v{aWp}, v0, 2, s{sT+1}')
    a(f's_lshl_b32 s{sT}, s{sT}, 2'); a(f's_add_u32 s{sT}, s{sT}, {L_PL+1040*4}'); a(f'v_mul_u32_u24 v{vEx}, {PS*4}, v{t1}'); a(f'v_add_u32 v{vEx}, s{sT}, v{vEx}')
    a(f'v_lshlrev_b32 v{m}, 4, v{m}'); a(f'v_lshl_add_u32 v{aZ}, v{vl15}, 6, v{m}')
    a(f's_mul_i32 s{sT}, s{sW4}, {PS*4}'); a(f's_add_u32 s{sT}, s{sT}, {L_PL}'); a(f'v_add_u32 v{aZ}, s{sT}, v{aZ}')
    a(f's_lshl_b32 s{sT}, s{sW4}, 6'); a(f'v_add_u32 v{t0}, s{sT}, v{t0}')
    a(f'v_cmp_eq_u32 vcc, 1, v{t1}')
    a(f'v_sub_u32 v{aO}, 512, v{t0}'); a(f'v_mov_b32 v{stp}, 64'); a(f'v_mov_b32 v{aO+1}, -64')
    a(f'v_cndmask_b32 v{aO}, v{t0}, v{aO}, vcc'); a(f'v_cndmask_b32 v{stp}, v{stp}, v{aO+1}, vcc')
    a(f'v_cmp_eq_u32 vcc, 2, v{t1}'); a(f'v_add_u32 v{aO+1}, 520, v{t0}'); a(f'v_add_u32 v{aO+2}, 784, v{t0}'); a(f'v_cndmask_b32 v{aO}, v{aO}, v{aO+1}, vcc')
    a(f'v_cmp_eq_u32 vcc, 3, v{t1}'); a(f'v_mov_b32 v{t0}, {L_PL+1024}'); a(f's_mov_b32 s{sT}, {L_PL}'); a(f'v_cndmask_b32 v{aO}, v{aO}, v{aO+2}, vcc')
    a(f'v_lshl_add_u32 v{aO}, v{aO}, 2, s{sT}')
    for j in range(1,4): a(f'v_add_u32 v{aO+j}, v{aO+j-1}, v{stp}')
    a(f'v_cmp_eq_u32 vcc, {L_PL+2048}, v{aO}'); a(f'v_and_b32 v{t1}, 1, v0'); a(f's_mov_b32 s{sT}, {L_PL+1040*4}'); a(f'v_cndmask_b32 v{aO}, v{aO}, v{t0}, vcc')
    a(f'v_lshl_add_u32 v{stp}, v{t1}, 2, s{sT}')
    X = R.alloc(8); Dr = R.alloc(8); Di = R.alloc(8); tmp = R.alloc(8); IN = R.alloc(32); P = IN; Wt = IN+16
    a('s_waitcnt lgkmcnt(0)')
    a(f's_add_u32 s{sTAG}, s{sTAG}, {TAGC}')
    ST('const'); a('s_waitcnt vmcnt(4)'); ST('rows')
    for t in range(2):
        for rho in range(2): a(f'ds_read_b64_tr_b16 {V(X+t*4+rho*2,2)}, v{aT} offset:{rho*1024+t*32}')
    for t in range(2):
        a(f's_waitcnt lgkmcnt({2-2*t})' if not STAMP else 's_waitcnt lgkmcnt(0)')
        a(f'{M16} {V(Dr+4*t,4)}, {V(X+4*t,4)}, {V(F16T+2,4)}, 0'); a(f'{M16} {V(Di+4*t,4)}, {V(X+4*t,4)}, {V(F16T,4)}, 0')
    for t in range(2): cmul_pack(a, Dr+4*t, Di+4*t, tc+4*t, ts+4*t, X+4*t, tmp)
    for t in range(2):
        for u in range(2):
            T = F32T + (u*2+t)*6
            a(f'{M16} {V(Dr+4*u,4)}, {V(X+4*t,4)}, {V(T+2,4)}, {"0" if t==0 else V(Dr+4*u,4)}')
            a(f'{M16} {V(Di+4*u,4)}, {V(X+4*t,4)}, {V(T,4)}, {"0" if t==0 else V(Di+4*u,4)}')
    a('s_waitcnt vmcnt(2)')
    for cg in range(2):
        for hf in range(2): a(f'ds_read_b64_tr_b16 {V(Wt+4*cg+2*hf,2)}, v{aWt} offset:{cg*128+hf*512}')
    for u in range(2):
        for r in range(4): a(f'v_cvt_pk_bf16_f32 v{P+4*u+r}, v{Dr+4*u+r}, v{Di+4*u+r}')
        a(f'ds_write_b128 v{aZ}, {V(P+4*u,4)} offset:{u*1024}')
    a('s_waitcnt lgkmcnt(2)')
    for cg in range(2):
        for r in range(4): a(f'ds_write_b32 v{aWp}, v{Wt+4*cg+r} offset:{r*PS*4+cg*256}')
    a('s_waitcnt vmcnt(0)')
    a(f'v_lshl_or_b32 v{e0}, v{e1}, 16, v{e0}'); a(f'ds_write_b32 v{vEx}, v{e0}')
    arrive(a, 1)
    ST('p1')
    sync_wait(a, GRP_H, 1)
    for j in range(4):
        a(f'ds_read2st64_b32 {V(P+4*j,2)}, v{aO+j} offset0:0 offset1:17'); a(f'ds_read2st64_b32 {V(P+4*j+2,2)}, v{aO+j} offset0:34 offset1:51')
    a(f'ds_read2st64_b32 {V(X,2)}, v{stp} offset0:0 offset1:17'); a(f'ds_read2st64_b32 {V(X+2,2)}, v{stp} offset0:34 offset1:51')
    a(f's_mul_i32 s{sT}, s{sP}, {ZSTRIDE}'); a(f's_lshl_b32 s{sT+1}, s{sW4}, 12'); a(f's_add_u32 s{sT+1}, s{sT}, s{sT+1}'); a(f's_add_u32 s{sT}, s{sT}, 16384')
    for j in range(4):
        a(f's_waitcnt lgkmcnt({8-2*j})')
        a(f'buffer_store_dwordx4 {V(P+4*j,4)}, v{vL16}, {SR(sWS)}, s{sT+1} offen offset:{j*1024} sc1')
    Lx = a.newlabel('x')
    a(f's_cmp_lg_u32 s{sW4}, 0'); a(f's_cbranch_scc1 {Lx}')
    a('s_waitcnt lgkmcnt(0)'); a('s_mov_b64 exec, 3')
    a(f'buffer_store_dwordx4 {V(X,4)}, v{vL16}, {SR(sWS)}, s{sT} offen sc1')
    a('s_mov_b64 exec, -1')
    a(f's_cmp_ge_u32 s{sP}, 34'); a(f's_cbranch_scc1 {Lx}')
    for j in range(4): a(f'v_mov_b32 v{tmp+j}, 0')
    a(f's_lshl_b32 s{sT}, s{sP}, 10'); a(f's_add_u32 s{sT}, s{sT}, {WS_KV}')
    a(f'buffer_store_dwordx4 {V(tmp,4)}, v{vL16}, {SR(sWS)}, s{sT} offen sc1'); a('s_nop 1')
    a.label(Lx)
    ST('zst')
    for r, n in ((F16T,6),(aT,1),(aZ,1),(aO,4),(stp,1),(aWt,1),(aWp,1),(vWs,1),(vEx,1),(e0,1),(e1,1)): R.free(r, n)
    B1 = R.alloc(32); tw2c = R.alloc(8); tw2s = R.alloc(8); F64 = R.alloc(24); tw1c = tc; tw1s = ts
    c = Dr; s = Dr+4; fk = R.alloc()
    a(f's_lshl_b32 s{sT}, s{sW4}, 4'); a(f'v_add_u32 v{t0}, s{sT}, v{vl15}'); a(f'v_cvt_f32_u32 v{fk}, v{t0}')
    a(f'v_mul_f32 v{step}, {F(1/64)}, v{fk}'); a(f'v_mul_f32 v{base}, v{fg4}, v{step}')
    for k in range(4):
        sincos4(a, base, step, 16*k, c, s); mat6(a, F64+6*k, c, s)
    a(f'v_cvt_f32_u32 v{t0}, s{sT}'); a(f'v_add_f32 v{t0}, v{t0}, v{fg4}')
    for t in range(2):
        if t == 0: a(f'v_mul_f32 v{step}, {F(-1/2048)}, v{fl15}')
        else: a(f'v_add_f32 v{step}, {F(-16/2048)}, v{step}')
        a(f'v_mul_f32 v{base}, v{t0}, v{step}')
        sincos4(a, base, step, 0, tw2c+4*t, tw2s+4*t)
    a('s_waitcnt vmcnt(0)')
    signal_flag(a, 32, 3, WS_F1)
    ST('f1')
    a(f'v_mul_f32 v{step}, {F(-1/64)}, v{fk}')
    a(f'v_lshrrev_b32 v{t0}, 5, v0'); a(f'v_lshlrev_b32 v{t0}, 2, v{t0}'); a(f'v_cvt_f32_u32 v{t0}, v{t0}')
    a(f'v_bfe_u32 v{t1}, v0, 4, 1')
    a(f's_cmp_eq_u32 s{sP}, 0'); a('s_cbranch_scc1 L_sp1')
    a(f'v_xor_b32 v{m}, v{t1}, v0'); a(f'v_lshlrev_b32 v{m}, 31, v{m}'); a(f'v_xor_b32 v{base}, {F(-0.125)}, v{m}')
    a(f'v_fmac_f32 v{base}, v{t0}, v{step}')
    a(f'v_lshlrev_b32 v{m}, 31, v{t1}')
    for k in range(4):
        sincos4(a, base, step, 8*k, c, s)
        for i in range(4):
            a(f'v_cvt_pk_bf16_f32 v{B1+k*8+i}, v{c+i}, -v{s+i}'); a(f'v_cvt_pk_bf16_f32 v{B1+k*8+4+i}, v{s+i}, v{c+i}')
    a(f's_mov_b32 s{sSC}, {F(math.sqrt(0.5))}')
    a.label('L_sp1r')
    a(f's_mov_b32 s{sSC+1}, s{sSC}')
    for j in range(32): a(f'v_xor_b32 v{B1+j}, v{m}, v{B1+j}')
    a(f'v_mul_f32 v{step}, {F(-1/2048)}, v{fk}'); a(f'v_mul_f32 v{base}, v{fg4}, v{step}')
    sincos4(a, base, step, 0, tw1c, tw1s); sincos4(a, base, step, 16, tw1c+4, tw1s+4)
    for j in range(0, 8, 2):
        a(f'v_pk_mul_f32 {V(tw1c+j,2)}, {V(tw1c+j,2)}, s[{sSC}:{sSC+1}]'); a(f'v_pk_mul_f32 {V(tw1s+j,2)}, {V(tw1s+j,2)}, s[{sSC}:{sSC+1}]')
    vA, aW, aWr, aE, aI, aO1, aO2, aOr, vY, vF = [R.alloc() for _ in range(10)]
    a(f'v_lshrrev_b32 v{t0}, 2, v0'); a(f'v_and_b32 v{t1}, 3, v0')
    a(f'v_mul_u32_u24 v{vA}, {ZSTRIDE}, v{t0}'); a(f'v_lshl_add_u32 v{vA}, v{t1}, 4, v{vA}')
    a(f'v_lshlrev_b32 v{aW}, 4, v{t0}'); a(f'v_and_b32 v{t0}, 1, v{t1}'); a(f'v_lshl_add_u32 v{aW}, v{t0}, 8, v{aW}')
    a(f'v_lshrrev_b32 v{t0}, 1, v{t1}'); a(f'v_lshl_add_u32 v{aW}, v{t0}, 13, v{aW}')
    a(f's_lshl_b32 s{sT}, s{sW4}, 10'); a(f's_add_u32 s{sT+1}, s{sT}, {L_IN}'); a(f'v_add_u32 v{aW}, s{sT+1}, v{aW}')
    a(f's_add_u32 s{sT+1}, s{sT}, {L_EX}'); a(f'v_add_u32 v{aE}, s{sT+1}, v{vL16}')
    a(f'v_add_u32 v{aI}, {L_IN}, v{vL16}')
    a(f'v_lshrrev_b32 v{t0}, 4, v0'); a(f'v_lshlrev_b32 v{aWr}, 10, v{t0}'); a(f'v_lshl_add_u32 v{aWr}, v{vl15}, 4, v{aWr}')
    a(f's_and_b32 s{sT}, s{sW4}, 1'); a(f's_lshl_b32 s{sT}, s{sT}, 12'); a(f's_lshr_b32 s{sT+1}, s{sW4}, 1'); a(f's_lshl_b32 s{sT+1}, s{sT+1}, 9')
    a(f's_add_u32 s{sT}, s{sT}, s{sT+1}'); a(f's_add_u32 s{sT}, s{sT}, {L_IN+8192}'); a(f'v_add_u32 v{aWr}, s{sT}, v{aWr}')
    a(f'v_lshlrev_b32 v{vF}, 8, v{t0}'); a(f'v_lshl_add_u32 v{vF}, v{vl15}, 2, v{vF}')
    a(f'v_and_b32 v{t1}, 7, v0'); a(f'v_xor_b32 v{t0}, v{t0}, v{t1}'); a(f'v_lshlrev_b32 v{t0}, 4, v{t0}')
    a(f'v_lshl_add_u32 v{aO1}, v{vl15}, 7, v{t0}'); a(f's_add_u32 s{sT}, s{sLW}, {L_OT}'); a(f'v_add_u32 v{aO1}, s{sT}, v{aO1}'); a(f'v_xor_b32 v{aO2}, 64, v{aO1}')
    a(f'v_lshrrev_b32 v{t0}, 3, v0'); a(f'v_xor_b32 v{aOr}, v{t1}, v{t0}'); a(f'v_lshlrev_b32 v{aOr}, 4, v{aOr}'); a(f'v_lshl_add_u32 v{aOr}, v{t0}, 7, v{aOr}'); a(f'v_add_u32 v{aOr}, s{sT}, v{aOr}')
    a(f'v_lshlrev_b32 v{t0}, 15, v{t0}'); a(f'v_lshl_add_u32 v{vY}, v{t1}, 4, v{t0}')
    ST('c2')
    a(f's_lshl_b32 s{sT}, s{sXCD}, 13'); a(f's_lshl_b32 s{sT+1}, s{sW4}, 10'); a(f's_add_u32 s{sT}, s{sT}, s{sT+1}'); a(f's_add_u32 s{sT}, s{sT}, {WS_F1}')
    a(f's_mov_b32 s{sCNT}, 0x20000')
    Lp = a.newlabel('p'); Lq = a.newlabel('q')
    a.label(Lp)
    a(f'buffer_load_dword v{t0}, v{vF}, {SR(sWS)}, s{sT} offen sc1')
    a(f's_sub_u32 s{sCNT}, s{sCNT}, 1'); a(f's_cbranch_scc1 {Lq}')
    a('s_waitcnt vmcnt(0)')
    a(f'v_cmp_ne_u32 vcc, s{sTAG}, v{t0}'); a('s_nop 4'); a(f's_cbranch_vccnz {Lp}')
    a.label(Lq)
    a(f's_mul_i32 s{sT}, s{sW4}, {64*ZSTRIDE}'); a(f's_lshl_b32 s{sT+1}, s{sP}, 6'); a(f's_add_u32 s{sT}, s{sT}, s{sT+1}')
    for j in range(4):
        if j: a(f's_add_u32 s{sT}, s{sT}, {16*ZSTRIDE}')
        a(f'buffer_load_dwordx4 {V(IN+4*j,4)}, v{vA}, {SR(sWS)}, s{sT} offen sc1')
    arrive(a, 3)
    ST('poll')
    for j in range(4):
        a(f's_waitcnt vmcnt({3-j})')
        a(f'ds_write_b128 v{aW}, {V(IN+4*j,4)} offset:{(j&1)*4096 + (j>>1)*512}')
    arrive(a, 4); sync_wait(a, GRP_H, 4)
    ST('in')
    Wv = R.alloc(8); wc = R.alloc(8); wsn = R.alloc(8)
    for n in range(8): a(f'ds_read_b128 {V(IN+4*n,4)}, v{aI} offset:{n*1024}')
    for t in range(2): a(f'ds_read_b128 {V(Wv+4*t,4)}, v{aWr} offset:{t*256}')
    for t in range(2):
        for k in range(4):
            n = t*4+k
            a(f's_waitcnt lgkmcnt({9-n})' if not (STAMP and n == 0) else 's_waitcnt lgkmcnt(0)')
            a(f'{M16} {V(Dr+4*t,4)}, {V(IN+4*n,4)}, {V(B1+8*k,4)}, {"0" if k==0 else V(Dr+4*t,4)}')
            a(f'{M16} {V(Di+4*t,4)}, {V(IN+4*n,4)}, {V(B1+8*k+4,4)}, {"0" if k==0 else V(Di+4*t,4)}')
    for t in range(2): cmul_pack(a, Dr+4*t, Di+4*t, tw1c+4*t, tw1s+4*t, X+4*t, tmp)
    for t in range(2):
        for u in range(2):
            T = F32T + (u*2+t)*6
            a(f'{M16} {V(Dr+4*u,4)}, {V(T+2,4)}, {V(X+4*t,4)}, {"0" if t==0 else V(Dr+4*u,4)}')
            a(f'{M16} {V(Di+4*u,4)}, {V(T,4)}, {V(X+4*t,4)}, {"0" if t==0 else V(Di+4*u,4)}')
    a('s_waitcnt lgkmcnt(0)')
    a(f's_cmp_eq_u32 s{sP}, 0'); a('s_cbranch_scc1 L_sp2')
    for j in range(8):
        a(f'v_lshlrev_b32 v{wc+j}, 16, v{Wv+j}'); a(f'v_and_b32 v{wsn+j}, 0xffff0000, v{Wv+j}')
    for u in range(2): cmul_pack(a, Dr+4*u, Di+4*u, wc+4*u, wsn+4*u, X+4*u, tmp, conj_out=True)
    a.label('L_sp2r')
    for u in range(2):
        for t in range(2):
            T = F32T + (t*2+u)*6
            a(f'{M16} {V(Dr+4*t,4)}, {V(X+4*u,4)}, {V(T+2,4)}, {"0" if u==0 else V(Dr+4*t,4)}')
            a(f'{M16} {V(Di+4*t,4)}, {V(X+4*u,4)}, {V(T,4)}, {"0" if u==0 else V(Di+4*t,4)}')
    for t in range(2):
        cmul_pack(a, Dr+4*t, Di+4*t, tw2c+4*t, tw2s+4*t, X+4*t, tmp)
        a(f'ds_write_b128 v{aE}, {V(X+4*t,4)} offset:{t*4096}')
    arrive(a, 7); sync_wait(a, GRP_H, 7)
    for n in range(8): a(f'ds_read_b128 {V(IN+4*n,4)}, v{aI} offset:{L_EX-L_IN + n*1024}')
    for t in range(2):
        for k in range(4):
            n = t*4+k; T = F64 + 6*k
            a(f's_waitcnt lgkmcnt({7-n})')
            a(f'{M16} {V(Dr+4*t,4)}, {V(IN+4*n,4)}, {V(T+2,4)}, {"0" if k==0 else V(Dr+4*t,4)}')
            a(f'{M16} {V(Di+4*t,4)}, {V(IN+4*n,4)}, {V(T,4)}, {"0" if k==0 else V(Di+4*t,4)}')
    a(f's_lshl_b32 s{sT}, s{sW4}, 19'); a(f's_lshl_b32 s{sT+1}, s{sP}, 7'); a(f's_add_u32 s{sT}, s{sT}, s{sT+1}'); a(f's_add_u32 s{sT}, s{sT}, {WS_Y}')
    a(f's_add_u32 s{sT+1}, s{sT}, {8*32768}')
    for t in range(2):
        a(f'v_cvt_pk_bf16_f32 v{X+4*t}, v{Dr+4*t}, v{Dr+4*t+1}'); a(f'v_cvt_pk_bf16_f32 v{X+4*t+1}, v{Dr+4*t+2}, v{Dr+4*t+3}')
        a(f'v_cvt_pk_bf16_f32 v{X+4*t+2}, v{Di+4*t}, v{Di+4*t+1}'); a(f'v_cvt_pk_bf16_f32 v{X+4*t+3}, v{Di+4*t+2}, v{Di+4*t+3}')
        a(f'ds_write_b128 v{aO1 if t==0 else aO2}, {V(X+4*t,4)}')
    YO = IN
    a(f'ds_read_b128 {V(YO,4)}, v{aOr}'); a(f'ds_read_b128 {V(YO+4,4)}, v{aOr} offset:1024')
    a('s_waitcnt lgkmcnt(1)'); a(f'buffer_store_dwordx4 {V(YO,4)}, v{vY}, {SR(sWS)}, s{sT} offen sc1')
    a('s_waitcnt lgkmcnt(0)'); a(f'buffer_store_dwordx4 {V(YO+4,4)}, v{vY}, {SR(sWS)}, s{sT+1} offen sc1')
    ST('yst')
    def sig():
        a('s_waitcnt vmcnt(0)'); signal_flag(a, 36, 7, WS_F2)
    fin_table(a, (opt('hsig', 10), sig))
    ST('tab')
    pull_wo(a, 0)
    SP.update(locals())
    return R.hi

def gen_special(a):
    g = SP
    base, step, m, t0, t1, c, s, B1 = [g[k] for k in ('base','step','m','t0','t1','c','s','B1')]
    a.label('L_sp1'); a.hist = []
    a(f'v_cvt_f32_u32 v{base}, v{t1}'); a(f'v_mul_f32 v{base}, 0x3e800000, v{base}')
    a(f'v_fmac_f32 v{base}, v{t0}, v{step}')
    a(f'v_lshlrev_b32 v{m}, 31, v0')
    for k in range(4):
        sincos4(a, base, step, 8*k, c, s)
        for i in range(4):
            a(f'v_cvt_pk_bf16_f32 v{B1+k*8+i}, v{c+i}, v{c+i}'); a(f'v_cvt_pk_bf16_f32 v{B1+k*8+4+i}, v{s+i}, v{s+i}')
    a(f's_mov_b32 s{sSC}, {F(0.25)}')
    a('s_branch L_sp1r')
    IN, Dr, Di, Wv, tmp, wc, wsn, X, vl15 = [g[k] for k in ('IN','Dr','Di','Wv','tmp','wc','wsn','X','vl15')]
    a.label('L_sp2'); a.hist = []
    arrive(a, 5)
    W6 = IN; W0n = IN+8; W6n = IN+16; AD = IN+24; N = B1
    a(f'v_lshrrev_b32 v{t0}, 4, v0'); a(f'v_lshl_add_u32 v{t1}, v{t0}, 6, v{vl15}'); a(f's_lshl_b32 s{sT}, s{sW4}, 4'); a(f'v_add_u32 v{t1}, s{sT}, v{t1}')
    a(f'v_mul_u32_u24 v{t1}, {ZSTRIDE}, v{t1}'); a(f's_mov_b32 s{sT+1}, {WS_Z+16384}')
    a(f'buffer_load_dwordx4 {V(W6,4)}, v{t1}, {SR(sWS)}, s{sT+1} offen sc1'); a(f'buffer_load_dwordx4 {V(W6+4,4)}, v{t1}, {SR(sWS)}, s{sT+1} offen offset:16 sc1')
    a(f'v_lshl_add_u32 v{t0}, v{t0}, 8, v{vl15}'); a(f'v_add_u32 v{t0}, s{sT}, v{t0}')
    a(f's_mov_b32 s{sT+2}, {WS_Z+32}')
    for j in range(8):
        off = (16*(j//4) + j%4)*64
        a(f'v_sub_u32 v{AD+j}, {2048-off}, v{t0}'); a(f'v_and_b32 v{AD+j}, 2047, v{AD+j}')
        a(f'v_bfe_u32 v{tmp}, v{AD+j}, 8, 2'); a(f'v_and_b32 v{tmp+1}, 63, v{AD+j}'); a(f'v_lshl_add_u32 v{tmp}, v{tmp}, 6, v{tmp+1}'); a(f'v_mul_u32_u24 v{tmp}, {ZSTRIDE}, v{tmp}')
        a(f'v_lshrrev_b32 v{tmp+1}, 10, v{AD+j}'); a(f'v_lshl_add_u32 v{tmp}, v{tmp+1}, 4, v{tmp}'); a(f'v_bfe_u32 v{tmp+1}, v{AD+j}, 6, 2'); a(f'v_lshl_add_u32 v{tmp}, v{tmp+1}, 2, v{tmp}')
        a(f'buffer_load_dword v{W0n+j}, v{tmp}, {SR(sWS)}, s{sT+2} offen sc1'); a(f'buffer_load_dword v{W6n+j}, v{tmp}, {SR(sWS)}, s{sT+1} offen sc1')
        a(f'v_lshlrev_b32 v{AD+j}, 2, v{AD+j}'); a(f'v_add_u32 v{AD+j}, {L_IN}, v{AD+j}')
    a(f'v_lshlrev_b32 v{t0}, 2, v{t0}'); a(f'v_add_u32 v{t0}, {L_IN}, v{t0}')
    sync_wait(a, GRP_H, 5)
    for j in range(8):
        off = (16*(j//4) + j%4)*256
        a(f'ds_write_b32 v{t0}, v{Dr+j} offset:{off}'); a(f'ds_write_b32 v{t0}, v{Di+j} offset:{8192+off}')
    arrive(a, 6); sync_wait(a, GRP_H, 6)
    for j in range(8): a(f'ds_read2st64_b32 {V(N+2*j,2)}, v{AD+j} offset0:0 offset1:32')
    a('s_waitcnt vmcnt(0) lgkmcnt(0)')
    p = tmp
    for j in range(8):
        a(f'v_lshlrev_b32 v{p}, 16, v{Wv+j}'); a(f'v_lshlrev_b32 v{p+4}, 16, v{W0n+j}'); a(f'v_add_f32 v{p}, v{p}, v{p+4}')
        a(f'v_and_b32 v{p+1}, 0xffff0000, v{Wv+j}'); a(f'v_and_b32 v{p+4}, 0xffff0000, v{W0n+j}'); a(f'v_sub_f32 v{p+1}, v{p+1}, v{p+4}')
        a(f'v_lshlrev_b32 v{p+2}, 16, v{W6+j}'); a(f'v_lshlrev_b32 v{p+4}, 16, v{W6n+j}'); a(f'v_add_f32 v{p+2}, v{p+2}, v{p+4}')
        a(f'v_and_b32 v{p+3}, 0xffff0000, v{W6+j}'); a(f'v_and_b32 v{p+4}, 0xffff0000, v{W6n+j}'); a(f'v_sub_f32 v{p+3}, v{p+3}, v{p+4}')
        a(f'v_pk_add_f32 {V(p+4,2)}, {V(p,2)}, {V(p+2,2)}')
        a(f'v_pk_add_f32 {V(p+6,2)}, {V(p,2)}, {V(p+2,2)} neg_lo:[0,1] neg_hi:[0,1]')
        a(f'v_mul_f32 v{wc+j}, v{Dr+j}, v{p+4}'); a(f'v_fma_f32 v{wc+j}, -v{Di+j}, v{p+5}, v{wc+j}')
        a(f'v_fmac_f32 v{wc+j}, v{N+2*j}, v{p+6}'); a(f'v_fmac_f32 v{wc+j}, v{N+2*j+1}, v{p+7}')
        a(f'v_mul_f32 v{wsn+j}, v{Dr+j}, v{p+5}'); a(f'v_fmac_f32 v{wsn+j}, v{Di+j}, v{p+4}')
        a(f'v_fmac_f32 v{wsn+j}, v{N+2*j}, v{p+7}'); a(f'v_fma_f32 v{wsn+j}, -v{N+2*j+1}, v{p+6}, v{wsn+j}')
    for u in range(2):
        a(f'v_cvt_pk_bf16_f32 v{X+4*u}, v{wc+4*u}, v{wc+4*u+1}'); a(f'v_cvt_pk_bf16_f32 v{X+4*u+1}, v{wc+4*u+2}, v{wc+4*u+3}')
        a(f'v_cvt_pk_bf16_f32 v{X+4*u+2}, -v{wsn+4*u}, -v{wsn+4*u+1}'); a(f'v_cvt_pk_bf16_f32 v{X+4*u+3}, -v{wsn+4*u+2}, -v{wsn+4*u+3}')
    a('s_nop 1'); a('s_branch L_sp2r')

def gen_G(a, ST):
    bf = 10; xf = 74; accK = 202; accV = 218
    R = Regs(234)
    vx0, vx1, vw, t0, t1 = [R.alloc() for _ in range(5)]
    a(f'v_lshrrev_b32 v{t0}, 3, v0'); a(f'v_and_b32 v{t1}, 7, v0'); a(f'v_lshrrev_b32 v{vw}, 1, v{t0}')
    a(f'v_xor_b32 v{vx0}, v{t1}, v{vw}'); a(f'v_lshlrev_b32 v{vx0}, 4, v{vx0}')
    a(f's_lshl_b32 s{sT}, s{sW4}, 4'); a(f's_add_u32 s{sT+1}, s{sT}, s{sROW0}')
    a(f'v_add_u32 v{vx1}, s{sT+1}, v{t0}'); a(f'v_lshl_add_u32 v{vx0}, v{vx1}, 10, v{vx0}')
    a(f'v_xor_b32 v{vx1}, 64, v{vx0}'); a(f'v_add_u32 v{vx1}, 8192, v{vx1}')
    a(f'v_and_b32 v{vw}, 1, v{vw}'); a(f'v_lshlrev_b32 v{vw}, 2, v{vw}'); a(f'v_xor_b32 v{vw}, v{vw}, v{t1}'); a(f'v_lshlrev_b32 v{vw}, 4, v{vw}')
    a(f'v_add_u32 v{t0}, s{sT}, v{t0}'); a(f'v_mul_u32_u24 v{t0}, 3072, v{t0}'); a(f's_lshl_b32 s{sT+1}, s{sHG}, 7')
    a(f'v_add3_u32 v{vw}, v{vw}, v{t0}, s{sT+1}')
    if opt('cpf', 1):
        Lc = a.newlabel('c')
        a(f's_cmp_lg_u32 s{sW4}, 0'); a(f's_cbranch_scc1 {Lc}')
        a('s_getpc_b64 s[4:5]'); a.label('L_pc')
        a(f's_sub_u32 s4, s4, L_pc-{NAME}'); a('s_subb_u32 s5, s5, 0')
        a(f's_lshl_b32 s{sT+2}, s{sIDX}, 10'); a(f'v_lshl_add_u32 v{t0}, v0, 7, s{sT+2}')
        a('s_mov_b64 exec, 0xff'); a(f'global_load_dword v{bf}, v{t0}, s[4:5]'); a('s_mov_b64 exec, -1')
        a.label(Lc)
    aA = R.alloc(4); aBX, aBK, aBV = R.alloc(), R.alloc(), R.alloc()
    a(f's_lshr_b32 s{sT}, s{sW4}, 1'); a(f's_and_b32 s{sT+1}, s{sW4}, 1'); a(f's_lshl_b32 s{sT+2}, s{sT}, 5')
    a(f'v_and_b32 v{t0}, 31, v0'); a(f'v_add_u32 v{t0}, s{sT+2}, v{t0}')
    a(f'v_bfe_u32 v{t1}, v{t0}, 1, 3'); a(f'v_lshrrev_b32 v{aA}, 5, v0'); a(f'v_xor_b32 v{t1}, v{t1}, v{aA}')
    a(f'v_lshlrev_b32 v{t1}, 4, v{t1}'); a(f'v_lshl_add_u32 v{aA}, v{t0}, 7, v{t1}')
    for k in range(1,4): a(f'v_xor_b32 v{aA+k}, {32*k}, v{aA}')
    a(f'v_lshrrev_b32 v{t0}, 5, v0'); a(f'v_lshlrev_b32 v{t0}, 3, v{t0}'); a(f'v_bfe_u32 v{t1}, v0, 2, 2'); a(f'v_add_u32 v{t0}, v{t0}, v{t1}')
    a(f'v_lshlrev_b32 v{aBX}, 7, v{t0}')
    a(f'v_bfe_u32 v{t1}, v0, 3, 1'); a(f'v_xor_b32 v{t1}, s{sT+1}, v{t1}'); a(f'v_lshl_add_u32 v{aBX}, v{t1}, 6, v{aBX}')
    a(f'v_bfe_u32 v{t1}, v0, 4, 1'); a(f'v_lshl_add_u32 v{aBX}, v{t1}, 5, v{aBX}')
    a(f'v_and_b32 v{t1}, 3, v0'); a(f'v_lshl_add_u32 v{aBX}, v{t1}, 3, v{aBX}')
    a(f'v_add_u32 v{aBK}, {KR}, v{aBX}'); a(f'v_add_u32 v{aBV}, {VR}, v{aBX}')
    vgw = R.alloc()
    a(f's_lshl_b32 s{sT+5}, s{sW4}, 8'); a(f's_lshl_b32 s{sT+1}, s{sROT}, 7'); a(f's_add_u32 s{sT+1}, s{sT+1}, s{sT+5}')
    a(f'v_lshl_add_u32 v{vgw}, v0, 2, s{sT+1}'); a(f'v_and_b32 v{vgw}, 1023, v{vgw}')
    a(f's_mov_b32 s{sL2E}, {F(LOG2E)}'); a(f's_mov_b32 s{sL2E+1}, {F(LOG2E)}')
    a('s_waitcnt lgkmcnt(0)'); ST('karg')
    a('s_barrier')
    a(f's_add_u32 s4, s{sWS}, {WS_GEN}'); a(f's_addc_u32 s5, s{sWS+1}, 0'); a(f's_load_dword s{sTAG}, s[4:5], 0')
    sizes = {}
    for g in range(5):
        B = dma_group(a, g, vx0, vx1, vw); emit(a, B); sizes[g] = len(B)
    a(f's_add_u32 m0, s{sT+5}, {L_GW}'); a(f'buffer_load_dword v{vgw}, {SR(sGW)}, 0 offen lds'); sizes[4] += 1
    for g in range(5, 11): sizes[g] = 6 if g < 10 else 4
    ST('iss')
    def reads(c, ks):
        slot = c % 5; b = bf + (c & 1)*32
        for k in ks:
            a(f'ds_read_b128 {V(xf+(c*4+k)*4,4)}, v{aA+k} offset:{XR+slot*8192}')
            for jj in range(2): a(f'ds_read_b64_tr_b16 {V(b+k*8+jj*2,2)}, v{aBK} offset:{slot*8192+(16*k+4*jj)*128}')
            for jj in range(2): a(f'ds_read_b64_tr_b16 {V(b+k*8+4+jj*2,2)}, v{aBV} offset:{slot*8192+(16*k+4*jj)*128}')
    a(f's_waitcnt vmcnt({sum(sizes[g] for g in range(1,5))}) lgkmcnt(0)')
    a(f's_add_u32 s{sTAG}, s{sTAG}, {TAGC}')
    arrive(a, 1); sync_wait(a, GRP_G, 1)
    ST('c0')
    reads(0, range(4))
    for c in range(8):
        b = bf + (c & 1)*32
        def mm(k):
            z = (c == 0 and k == 0)
            a(f'{M32} {V(accK,16)}, {V(xf+(c*4+k)*4,4)}, {V(b+k*8,4)}, {"0" if z else V(accK,16)}')
            a(f'{M32} {V(accV,16)}, {V(xf+(c*4+k)*4,4)}, {V(b+k*8+4,4)}, {"0" if z else V(accV,16)}')
        if c < 7:
            n = sum(sizes[g] for g in range(c+2, min(c+5, 11)))
            a(f's_waitcnt vmcnt({n}) lgkmcnt(0)')
            arrive(a, c+2); sync_read(a, GRP_G)
            mm(0)
            sync_check(a, GRP_G, c+2)
            if c in (2, 6): ST(f'c{c+1}')
            mm(1)
            reads(c+1, (0, 1))
            mm(2)
            reads(c+1, (2, 3))
            B = dma_group(a, c+5, vx0, vx1, vw) if c+5 <= 10 else []
            emit(a, B[:2])
            mm(3)
            emit(a, B[2:])
        else:
            for k in range(4):
                a(f's_waitcnt lgkmcnt({15-5*k})' if not STAMP else 's_waitcnt lgkmcnt(0)')
                mm(k)
    pk = bf; vv = bf+8; tmp = bf+16; ones = bf+32
    sync_read(a, GRP_H)
    for j in range(4): a(f'v_mov_b32 v{ones+j}, 0x3f803f80')
    a(f's_lshr_b32 s{sT}, s{sW4}, 1'); a(f's_and_b32 s{sT+1}, s{sW4}, 1')
    a(f's_mul_i32 s{sT}, s{sT}, 4352'); a(f's_mul_i32 s{sT+1}, s{sT+1}, 2176'); a(f's_add_u32 s{sT}, s{sT}, s{sT+1}'); a(f's_add_u32 s{sT}, s{sT}, {L_KVR}')
    a(f'v_bfe_u32 v{t0}, v0, 4, 1'); a(f'v_mul_u32_u24 v{t0}, 1088, v{t0}'); a(f'v_lshrrev_b32 v{t1}, 5, v0'); a(f'v_lshl_add_u32 v{t0}, v{t1}, 5, v{t0}')
    a(f'v_add_u32 v{t0}, s{sT}, v{t0}')
    a(f'v_and_b32 v{t1}, 15, v0'); a(f'v_lshl_add_u32 v{t1}, v{t1}, 6, v{t0}')
    phi_pack(a, accK, 16, pk, tmp)
    for j in range(8): a(f'v_cvt_pk_bf16_f32 v{vv+j}, v{accV+2*j}, v{accV+2*j+1}')
    a(f'{M32} {V(accK,16)}, {V(pk,4)}, {V(vv,4)}, 0'); a(f'{M32} {V(accV,16)}, {V(pk,4)}, {V(ones,4)}, 0')
    a(f'{M32} {V(accK,16)}, {V(pk+4,4)}, {V(vv+4,4)}, {V(accK,16)}'); a(f'{M32} {V(accV,16)}, {V(pk+4,4)}, {V(ones,4)}, {V(accV,16)}')
    ST('kvm')
    sync_check(a, GRP_H, 3)
    a.fence(6)
    a('s_mov_b32 exec_lo, 0x0000ffff'); a('s_mov_b32 exec_hi, 0x0000ffff')
    a(f'ds_write_b128 v{t1}, {V(accK,4)}'); a(f'ds_write_b128 v{t1}, {V(accK+4,4)} offset:16')
    a('s_mov_b32 exec_lo, 0xffff0000'); a('s_mov_b32 exec_hi, 0xffff0000')
    a(f'ds_write_b128 v{t1}, {V(accK+8,4)}'); a(f'ds_write_b128 v{t1}, {V(accK+12,4)} offset:16')
    a('s_mov_b32 exec_lo, 0x00000001'); a('s_mov_b32 exec_hi, 0x00000001')
    a(f'ds_write_b128 v{t0}, {V(accV,4)} offset:1024'); a(f'ds_write_b128 v{t0}, {V(accV+4,4)} offset:1040')
    a('s_mov_b32 exec_lo, 0x00010000'); a('s_mov_b32 exec_hi, 0x00010000')
    a(f'ds_write_b128 v{t0}, {V(accV+8,4)} offset:1024'); a(f'ds_write_b128 v{t0}, {V(accV+12,4)} offset:1040')
    a('s_mov_b64 exec, -1')
    arrive(a, 10); sync_read(a, GRP_G)
    a(f's_lshl_b32 s{sT}, s{sW4}, 8'); a(f'v_lshl_add_u32 v{t0}, v0, 2, s{sT}'); a(f'v_add_u32 v{t1}, {L_KVR}, v{t0}')
    a(f's_mul_i32 s{sT}, s{sHG}, 4352'); a(f's_add_u32 s{sT}, s{sT}, {WS_KV}')
    a(f's_add_u32 s{sT+1}, s{sT}, 4096'); a(f's_cmp_eq_u32 s{sW4}, 0'); a(f's_cselect_b32 s{sT+1}, s{sT+1}, {WS_SIZE}')
    sync_check(a, GRP_G, 10)
    Pp = accV
    for rnd in range(5): a(f'ds_read2st64_b32 {V(Pp+2*rnd,2)}, v{t1} offset0:{4*rnd} offset1:{4*rnd+17}')
    for rnd in range(5):
        a(f's_waitcnt lgkmcnt({4-rnd})')
        a(f'v_add_f32 v{Pp+2*rnd}, v{Pp+2*rnd}, v{Pp+2*rnd+1}')
        if rnd < 4: a(f'buffer_atomic_add_f32 v{Pp+2*rnd}, v{t0}, {SR(sWS)}, s{sT} offen offset:{rnd*1024}')
        else: a(f'buffer_atomic_add_f32 v{Pp+2*rnd}, v{t0}, {SR(sWS)}, s{sT+1} offen')
    ST('atom')
    a('s_waitcnt vmcnt(5)')
    arrive(a, 11); sync_read(a, GRP_G)
    vwo = vx0
    a(f'v_lshrrev_b32 v{t0}, 4, v0'); a(f'v_and_b32 v{t1}, 15, v0'); a(f'v_lshlrev_b32 v{vwo}, 2, v{t0}'); a(f'v_xor_b32 v{t1}, v{t1}, v{vwo}')
    a(f'v_lshlrev_b32 v{t1}, 4, v{t1}'); a(f'v_lshl_add_u32 v{vwo}, v{t0}, 10, v{t1}')
    a(f's_lshl_b32 s{sT+4}, s{sW4}, 13'); a(f's_lshl_b32 s{sT+1}, s{sHL}, 8'); a(f's_add_u32 s{sT+4}, s{sT+4}, s{sT+1}')
    def wo_dma(u, ii):
        a(f's_add_u32 s{sT+ii}, s{sT+4}, {u*32768+ii*4096}'); a(f's_add_u32 m0, s{sLW}, {wo_unit(u)+ii*1024}')
        a(f'buffer_load_dwordx4 v{vwo}, {SR(sWO)}, s{sT+ii} offen lds')
    sync_check(a, GRP_G, 11)
    ST('wq')
    def qread(n):
        j, k = n//4, n%4
        u = wq_unit(j); base, off = (aBX, u-XR) if u < KR else ((aBK, u-KR) if u < VR else (aBV, u-VR))
        for jj in range(2): a(f'ds_read_b64_tr_b16 {V(bf+(n%8)*4+jj*2,2)}, v{base} offset:{off+(16*k+4*jj)*128}')
    PF = 6
    for n in range(PF): qread(n)
    for n in range(32):
        left = min(PF-1, 31-n)
        a(f's_waitcnt lgkmcnt({2*left})' if not (STAMP and n == 0) else 's_waitcnt lgkmcnt(0)')
        a(f'{M32} {V(accK,16)}, {V(bf+(n%8)*4,4)}, {V(xf+n*4,4)}, {"0" if n==0 else V(accK,16)}')
        if n+PF < 32: qread(n+PF)
        if n % 2 == 0 and n//2 < 16: wo_dma(n//4, (n//2) & 1)
    arrive(a, 12); sync_read(a, GRP_G)
    a(f's_lshr_b32 s{sT}, s{sROW0}, 5'); a(f's_lshr_b32 s{sT+1}, s{sW4}, 1'); a(f's_add_u32 s{sT}, s{sT}, s{sT+1}'); a(f's_lshl_b32 s{sT}, s{sT}, 15')
    a(f's_lshl_b32 s{sT+1}, s{sHG}, 12'); a(f's_add_u32 s{sT}, s{sT}, s{sT+1}')
    a(f's_and_b32 s{sT+1}, s{sW4}, 1'); a(f's_lshl_b32 s{sT+1}, s{sT+1}, 11'); a(f's_add_u32 s{sT}, s{sT}, s{sT+1}'); a(f's_add_u32 s{sT+2}, s{sT}, {WS_PQ}')
    pk = accV
    phi_pack(a, accK, 16, pk, tmp)
    a(f'buffer_store_dwordx4 {V(pk,4)}, v{vL16}, {SR(sWS)}, s{sT+2} offen sc1')
    a(f'buffer_store_dwordx4 {V(pk+4,4)}, v{vL16}, {SR(sWS)}, s{sT+2} offen offset:1024 sc1')
    ST('qst')
    sync_check(a, GRP_G, 12)
    for u in range(8, 16):
        for ii in range(2): wo_dma(u, ii)
    a('s_waitcnt vmcnt(16)')
    signal_flag(a, 36, 7, WS_F2)
    ST('f2')
    Lg = a.newlabel('g'); Lg1 = a.newlabel('g'); Lg2 = a.newlabel('g')
    a(f's_lshr_b32 s{sT}, s{sW4}, 1'); a(f's_cmp_lg_u32 s{sT}, s{sHH}'); a(f's_cbranch_scc1 {Lg}')
    a(f'v_lshrrev_b32 v{t0}, 5, v0'); a(f'v_lshlrev_b32 v{t0}, 4, v{t0}'); a(f'v_add_u32 v{t0}, {L_GW}, v{t0}')
    ga = accK
    for j in range(4): a(f'v_mov_b32 v{ga+j}, 0')
    a(f's_and_b32 s{sT}, s{sW4}, 1'); a(f's_cmp_eq_u32 s{sT}, 1'); a(f's_cbranch_scc1 {Lg1}')
    for hp in range(2):
        if hp: a.label(Lg1)
        for n in range(16): a(f'ds_read_b128 {V(bf+4*n,4)}, v{t0} offset:{(16*hp+n)*32}')
        a('s_waitcnt lgkmcnt(0)')
        for n in range(16):
            for j in range(4): a(f'v_dot2_f32_bf16 v{ga+j}, v{xf+(16*hp+n)*4+j}, v{bf+4*n+j}, v{ga+j}')
        if not hp: a(f's_branch {Lg2}')
    a.label(Lg2); a.fence(3)
    a(f'v_pk_add_f32 {V(ga,2)}, {V(ga,2)}, {V(ga+2,2)}'); a(f'v_add_f32 v{ga}, v{ga}, v{ga+1}')
    a(f's_lshl_b32 s{sT}, s{sT}, 8'); a(f's_add_u32 s{sT}, s{sT}, {L_GP}'); a(f'v_lshl_add_u32 v{t0}, v0, 2, s{sT}')
    a(f'ds_write_b32 v{t0}, v{ga}')
    a.label(Lg)
    fin_table(a)
    ST('tab')
    a('s_waitcnt vmcnt(0) lgkmcnt(0)')
    pull_wo(a, 1)
    return R.hi

def gen_FIN(a, ST):
    t0, t1, vg, vomg, aYw, aY, aO, aE, aF, vOut, vKV = [FT+6+i for i in range(11)]
    c = FT+18
    a(f'v_and_b32 v{t0}, 31, v0'); a(f'v_lshlrev_b32 v{t1}, 2, v{t0}'); a(f'v_add_u32 v{t1}, {L_GP}, v{t1}')
    a(f'ds_read2_b32 {V(ACA,2)}, v{t1} offset0:0 offset1:32'); a(f'ds_read2_b32 {V(ACA+2,2)}, v{t1} offset0:64 offset1:96')
    a(f'v_min_u32 v{vKV}, 16, v{t0}'); a(f'v_lshlrev_b32 v{vKV}, 6, v{vKV}'); a(f'v_lshrrev_b32 v{t1}, 5, v0'); a(f'v_lshl_add_u32 v{vKV}, v{t1}, 5, v{vKV}')
    a(f'v_mul_u32_u24 v{aE}, {RS}, v{t0}'); a(f'v_lshl_add_u32 v{aE}, v{t1}, 4, v{aE}')
    a(f's_mul_i32 s{sT}, s{sKH}, {32*RS}'); a(f's_lshl_b32 s{sT+1}, s{sW4}, 7'); a(f's_add_u32 s{sT}, s{sT}, s{sT+1}'); a(f's_add_u32 s{sT}, s{sT}, {L_EP}'); a(f'v_add_u32 v{aE}, s{sT}, v{aE}')
    a(f'v_lshlrev_b32 v{aY}, 9, v{t1}')
    a(f'v_bfe_u32 v{t0}, v0, 4, 1'); a(f'v_lshl_add_u32 v{aY}, v{t0}, 6, v{aY}')
    a(f'v_and_b32 v{t0}, 3, v0'); a(f'v_lshl_add_u32 v{aY}, v{t0}, 4, v{aY}')
    a(f'v_bfe_u32 v{t0}, v0, 3, 1'); a(f'v_lshl_add_u32 v{aY}, v{t0}, 7, v{aY}')
    a(f'v_bfe_u32 v{t0}, v0, 2, 1'); a(f'v_lshl_add_u32 v{aY}, v{t0}, 3, v{aY}')
    a(f's_lshl_b32 s{sT}, s{sKH}, 14'); a(f'v_add_u32 v{aY}, s{sT}, v{aY}'); a(f'v_add_u32 v{aO}, s{sT}, v{vL16}')
    a(f's_lshl_b32 s{sT}, s{sWV}, 12'); a(f'v_add_u32 v{aYw}, s{sT}, v{vL16}')
    a(f'v_lshrrev_b32 v{t0}, 4, v0'); a(f's_lshl_b32 s{sT}, s{sWV}, 2'); a(f'v_add_u32 v{t0}, s{sT}, v{t0}'); a(f'v_and_b32 v{t1}, 15, v0')
    a(f'v_mul_u32_u24 v{aF}, {RS}, v{t0}'); a(f'v_lshl_add_u32 v{aF}, v{t1}, 5, v{aF}'); a(f'v_add_u32 v{aF}, {L_EP}, v{aF}')
    a(f'v_lshlrev_b32 v{t0}, 10, v{t0}'); a(f'v_lshl_add_u32 v{vOut}, v{t1}, 4, v{t0}')
    a('s_waitcnt lgkmcnt(0)')
    a(f'v_pk_add_f32 {V(ACA,2)}, {V(ACA,2)}, {V(ACA+2,2)}'); a(f'v_add_f32 v{vg}, v{ACA}, v{ACA+1}')
    a(f'v_cvt_pk_bf16_f32 v{vg}, v{vg}, v{vg}'); a(f'v_and_b32 v{vg}, 0xffff0000, v{vg}')
    a(f'v_mul_f32 v{vg}, {F(-LOG2E)}, v{vg}'); a(f'v_exp_f32 v{vg}, v{vg}'); a(f'v_add_f32 v{vg}, 1.0, v{vg}'); a(f'v_rcp_f32 v{vg}, v{vg}')
    a(f'v_cvt_pk_bf16_f32 v{vg}, v{vg}, v{vg}'); a(f'v_and_b32 v{vg}, 0xffff0000, v{vg}')
    a(f'v_sub_f32 v{vomg}, 1.0, v{vg}'); a(f'v_cvt_pk_bf16_f32 v{vomg}, v{vomg}, v{vomg}'); a(f'v_and_b32 v{vomg}, 0xffff0000, v{vomg}')
    a(f'v_mul_f32 v{vg}, {F(2.0**-19)}, v{vg}')
    a(f's_lshl_b32 s{sT}, s{sAT}, 15'); a(f's_lshl_b32 s{sT+1}, s{sWV}, 12'); a(f's_add_u32 s{sT+1}, s{sT}, s{sT+1}')
    a(f's_add_u32 s{sT+2}, s{sT+1}, {WS_PQ}'); a(f's_add_u32 s{sT+1}, s{sT+1}, {WS_Y}')
    a(f's_mul_i32 s{sT+3}, s{sWV}, 4352'); a(f's_add_u32 s{sT+3}, s{sT+3}, {WS_KV}')
    a(f's_lshl_b32 s{sT+4}, s{sHL}, 8'); a(f's_add_u32 s{sT+4}, s{sT+4}, s{sT}')
    ST('rdy')
    Lp = a.newlabel('p'); Lq = a.newlabel('q')
    a(f's_cmp_lg_u32 s{sWV}, 0'); a(f's_cbranch_scc1 {Lq}')
    a(f'v_lshrrev_b32 v{t0}, 2, v0'); a(f'v_and_b32 v{t1}, 0x30, v{vL16}'); a(f'v_lshl_add_u32 v{t0}, v{t0}, 8, v{t1}')
    a(f's_lshl_b32 s{sT+5}, s{sXCD}, 13'); a(f's_add_u32 s{sT+5}, s{sT+5}, {WS_F2}')
    a(f's_mov_b32 s{sCNT}, 0x20000')
    a.label(Lp)
    a(f'buffer_load_dwordx4 {V(ACA,4)}, v{t0}, {SR(sWS)}, s{sT+5} offen sc1')
    a(f's_sub_u32 s{sCNT}, s{sCNT}, 1'); a(f's_cbranch_scc1 {Lq}')
    a('s_waitcnt vmcnt(0)')
    a(f'v_xor_b32 v{ACA}, s{sTAG}, v{ACA}'); a(f'v_xor_b32 v{ACA+1}, s{sTAG}, v{ACA+1}'); a(f'v_xor_b32 v{ACA+2}, s{sTAG}, v{ACA+2}'); a(f'v_xor_b32 v{ACA+3}, s{sTAG}, v{ACA+3}')
    a(f'v_or3_b32 v{ACA}, v{ACA}, v{ACA+1}, v{ACA+2}'); a(f'v_or_b32 v{ACA}, v{ACA}, v{ACA+3}')
    a(f'v_cmp_ne_u32 vcc, 0, v{ACA}'); a('s_nop 4'); a(f's_cbranch_vccnz {Lp}')
    a.label(Lq)
    a('s_waitcnt vmcnt(0)')
    a('s_barrier')
    ST('J2')
    for j in range(4):
        for q in range(2): a(f'buffer_load_dwordx4 {V(KVF+8*j+4*q,4)}, v{vKV}, {SR(sWS)}, s{sT+3} offen offset:{j*1088+q*16} sc1')
        a(f'buffer_load_dwordx4 {V(PQ+4*j,4)}, v{vL16}, {SR(sWS)}, s{sT+2} offen offset:{j*1024} sc1')
    for j in range(4): a(f'buffer_load_dwordx4 {V(YL+4*j,4)}, v{vL16}, {SR(sWS)}, s{sT+1} offen offset:{j*1024} sc1')
    for j in range(4):
        D = ACA if j % 2 == 0 else ACB
        a(f's_waitcnt vmcnt({13-3*j})')
        for q in range(4): a(f'v_cvt_pk_bf16_f32 v{KVF+8*j+q}, v{KVF+8*j+2*q}, v{KVF+8*j+2*q+1}')
        a(f'{M32} {V(D,16)}, {V(KVF+8*j,4)}, {V(PQ+4*j,4)}, 0')
        if j > 0: fin_o(a, j-1, t0, c, vomg, aYw)
    fin_o(a, 3, t0, c, vomg, aYw)
    for j in range(4):
        a(f's_waitcnt vmcnt({3-j})'); a(f'ds_write_b128 v{aYw}, {V(YL+4*j,4)} offset:{L_Y+j*1024}')
    Lu = a.newlabel('u')
    a(f's_or_b32 s{sT}, s{sP}, s{sWV}'); a(f's_cbranch_scc1 {Lu}')
    a(f'v_mov_b32 v{t0}, s{sTAG}'); a(f'v_mov_b32 v{t1}, 0'); a(f's_mov_b32 s{sT}, {WS_GEN}'); a('s_mov_b64 exec, 1')
    a(f'buffer_store_dword v{t0}, v{t1}, {SR(sWS)}, s{sT} offen sc1'); a('s_mov_b64 exec, -1')
    a.label(Lu)
    a('s_waitcnt lgkmcnt(0)'); a('s_barrier')
    ST('J3')
    BF = KVF; NB = 12; PF = 3
    def rd(n):
        b = BF + (n % 4)*8
        for jj in range(2): a(f'ds_read_b64_tr_b16 {V(b+2*jj,2)}, v{aY} offset:{L_Y+(8*n+2*jj)*128}')
        a(f'ds_read_b128 {V(b+4,4)}, v{aO} offset:{L_O+n*1024}')
    for n in range(PF): rd(n)
    for n in range(16):
        b = BF + (n % 4)*8
        left = min(PF-1, 15-n)
        a(f's_waitcnt lgkmcnt({3*left})' if not (STAMP and n == 0) else 's_waitcnt lgkmcnt(0)')
        a(f'{M32} {V(ACA,16)}, {V(TF+4*n,4)}, {V(b,4)}, {"0" if n==0 else V(ACA,16)}')
        if n+PF < 16: rd(n+PF)
        a(f'{M32} {V(ACB,16)}, {V(WF+4*n,4)}, {V(b+4,4)}, {"0" if n==0 else V(ACB,16)}')
    for q in range(4):
        for r in range(4): a(f'v_fmac_f32 v{ACB+4*q+r}, v{vg}, v{ACA+4*q+r}')
        a(f'ds_write_b128 v{aE}, {V(ACB+4*q,4)} offset:{q*32}')
    a('s_waitcnt lgkmcnt(0)'); a('s_barrier')
    for kh in range(2):
        for q in range(2): a(f'ds_read_b128 {V(ACA+8*kh+4*q,4)}, v{aF} offset:{kh*32*RS+q*16}')
    a('s_waitcnt lgkmcnt(0)')
    for q in range(0, 8, 2): a(f'v_pk_add_f32 {V(ACA+q,2)}, {V(ACA+q,2)}, {V(ACA+8+q,2)}')
    for q in range(4): a(f'v_cvt_pk_bf16_f32 v{ACB+q}, v{ACA+2*q}, v{ACA+2*q+1}')
    a(f'buffer_store_dwordx4 {V(ACB,4)}, v{vOut}, {SR(sOUT)}, s{sT+4} offen')
    ST('end')
    stamp_flush(a, len(ST.names))

def fin_o(a, j, t0, c, vomg, aYw):
    D = ACA if j % 2 == 0 else ACB
    a(f'v_add_f32 v{t0}, {F(1e-6)}, v{D+8}'); a(f'v_rcp_f32 v{t0}, v{t0}'); a(f'v_mul_f32 v{c}, v{t0}, v{vomg}')
    for q in range(0, 8, 2): a(f'v_pk_mul_f32 {V(D+q,2)}, {V(D+q,2)}, {V(c,2)} op_sel_hi:[1,0]')
    for q in range(4): a(f'v_cvt_pk_bf16_f32 v{KVF+8*j+4+q}, v{D+2*q}, v{D+2*q+1}')
    a(f'ds_write_b128 v{aYw}, {V(KVF+8*j+4,4)} offset:{L_O+j*1024}')

if __name__ == '__main__':
    a = build()
    out = '; @launch grid=(256,1,1) block=(512,1,1) lds=163840\n.amdgcn_target "amdgcn-amd-amdhsa--gfx950"\n.text\n'
    out += kernel_header(NAME) + a.text()
    out += f'.p2align 8\n.fill (32768 - (. - {NAME})) / 4, 4, 0xbf800000\n'
    out += '.section .rodata,"a"\n.p2align 6\n' + kernel_desc(NAME, 256, 102)
    open(sys.argv[1], 'w').write(out)
```

```python
import sys, math, os
sys.path.insert(0,'lib')
from asmgen import *
NAME='gated_mix__spectral_gfnet__linear_attn_block__prompt_kernel'
STAMP = int(os.environ.get('STAMP','0'))
STSEL = [x for x in os.environ.get('STSEL','').split(',') if x]
OPT = dict(x.split('=') for x in os.environ.get('OPT','').split(',') if x)
def opt(k, d): return int(OPT.get(k, d))

WS_Z=0; ZSTRIDE=16640; WS_PQ=0x480000; WS_Y=0x680000; WS_KV=0x880000; WS_F1=0x890000; WS_FY=0x8a0000; WS_FK=0x8b0000; WS_GEN=16512; WS_ST=0x8c0000; WS_SIZE=0x900000
SLOT=32768; BLK=8192; oQ=0; oV=2048; oK=4096; oX=6144
SC=3*SLOT; PS=1088
L_SY=SC; L_GP=SC+256; L_GW=SC+768; L_A=L_GW+2048; L_B=L_A+16384; L_XT=L_B+4*PS*4; L_END=L_XT+3*8192
L_P1X=L_A; L_WRAW=L_A+8192; L_IN=L_A; L_OT=L_A; L_PL=L_B; L_EX=L_B; L_KVR=L_B+8192
assert L_END <= 163840 and L_KVR+8704 <= L_XT and L_A % 256 == 0 and L_XT % 256 == 0, L_END
L_Y=0; L_O=32768; L_EP=65536; RS=528
LOG2E=1.4426950408889634
TAGC=0x9E3779B9
sX,sWR,sWI,sWQ,sWO,sGW,sOUT,sWS = 8,12,16,20,24,28,32,36
sXCD,sIDX,sP,sHG,sROW0,sROT,sWV,sW4,sHH,sHL = 40,41,42,43,44,45,46,47,48,49
sT=50; sSC=58; sL2E=60; sLW=62; sTAG=63; sAT=64; sKH=65; sCNT=66; sLB=67; sSX=6; sSW=7; sU=3
M16 = 'v_mfma_f32_16x16x32_bf16'; M32 = 'v_mfma_f32_32x32x16_bf16'
def SR(d): return f's[{d}:{d+3}]'

class Stamps:
    def __init__(self, a): self.a = a; self.names = []
    def __call__(self, name):
        if not STAMP: return
        if STSEL and name not in STSEL: return
        if not STSEL and name.startswith('_'): return
        n = len(self.names); assert n < 16, name
        self.a(('s_memtime' if name.startswith('_T') else 's_memrealtime') + f' s[{68+2*n}:{69+2*n}]'); self.names.append(name)
def stamp_flush(a, n):
    if not STAMP: return
    L = a.newlabel('stf')
    a('s_waitcnt lgkmcnt(0)')
    a(f's_cmp_lg_u32 s{sW4}, {opt("stw",0)}'); a(f's_cbranch_scc1 {L}')
    a(f's_lshl_b32 s{sT}, s2, 8'); a(f's_add_u32 s{sT}, s{sT}, {WS_ST}')
    a(f's_lshr_b32 s{sT+1}, s{sWV}, 2'); a(f's_lshl_b32 s{sT+1}, s{sT+1}, 7'); a(f's_add_u32 s{sT}, s{sT}, s{sT+1}')
    a('s_mov_b64 exec, 1'); a('v_mov_b32 v4, 0')
    for i in range(n):
        a(f'v_mov_b32 v2, s{68+2*i}'); a(f'v_mov_b32 v3, s{69+2*i}')
        a(f'buffer_store_dwordx2 v[2:3], v4, {SR(sWS)}, s{sT} offen offset:{8*i}'); a('s_nop 1')
    a.label(L)
def LG(n): return f's_waitcnt lgkmcnt({0 if STAMP else n})'

class Rec:
    def __init__(self): self.l = []
    def __call__(self, s): self.l.append(s)

vL16=1; vPA=2; vSY=3; vS=4; VBASE=10
def arrive(a, stage):
    a(f'v_mov_b32 v{vS+4}, {stage}'); a(f'ds_write_b32 v{vPA}, v{vS+4}')
def sync_read(a, grp): a(f'ds_read_b128 {V(vS,4)}, v{vSY} offset:{16*grp}')
def sync_check(a, grp, stage):
    L = a.newlabel('sw'); L2 = a.newlabel('sd')
    a.label(L)
    a('s_waitcnt lgkmcnt(0)')
    a(f'v_min3_u32 v{vS}, v{vS}, v{vS+1}, v{vS+2}'); a(f'v_min_u32 v{vS}, v{vS}, v{vS+3}')
    a(f'v_readfirstlane_b32 s{sT+7}, v{vS}')
    a(f's_cmp_ge_u32 s{sT+7}, {stage}'); a(f's_cbranch_scc1 {L2}')
    sync_read(a, grp); a(f's_branch {L}')
    a.label(L2)
def sync_wait(a, grp, stage): sync_read(a, grp); sync_check(a, grp, stage)
GRP_H=0; GRP_G=1
def flag_store(a, ws_off, sidx):
    a('s_mov_b64 exec, 0xff')
    a(f's_lshr_b32 s{sT+6}, s{sidx}, 4'); a(f's_lshl_b32 s{sT+6}, s{sT+6}, 8'); a(f's_and_b32 s{sT+7}, s{sidx}, 15'); a(f's_lshl_b32 s{sT+7}, s{sT+7}, 2')
    a(f's_add_u32 s{sT+6}, s{sT+6}, s{sT+7}'); a(f's_add_u32 s{sT+6}, s{sT+6}, {ws_off}')
    a(f'v_lshlrev_b32 v{vS}, 13, v0'); a(f'v_mov_b32 v{vS+1}, s{sTAG}')
    a(f'buffer_store_dword v{vS+1}, v{vS}, {SR(sWS)}, s{sT+6} offen sc1')
    a('s_mov_b64 exec, -1')
def signal_flag(a, cnt_off, last, ws_off, sidx):
    L = a.newlabel('sig')
    a('s_mov_b64 exec, 1')
    a(f'v_mov_b32 v{vS+4}, 1'); a(f'ds_add_rtn_u32 v{vS}, v{vSY}, v{vS+4} offset:{cnt_off}')
    a('s_waitcnt lgkmcnt(0)')
    a(f'v_readfirstlane_b32 s{sT+7}, v{vS}')
    a('s_mov_b64 exec, -1')
    a(f's_cmp_lg_u32 s{sT+7}, {last}'); a(f's_cbranch_scc1 {L}')
    flag_store(a, ws_off, sidx)
    a.label(L)

WO_ORDER = [0, 8, 1, 9, 2, 10, 3, 11, 4, 12, 5, 13, 6, 14, 7, 15]
_places = [i*8192 for i in range(4)] + [2*SLOT + i*8192 for i in range(4)] + [L_XT + i*8192 for i in range(3)] + [SLOT + i*8192 for i in range(4)] + [L_KVR]
def wo_unit(u): return _places[WO_ORDER.index(u)]
WIN = opt('win', 12)
def rot_calc(a):
    RM = opt('rot', 104)
    a(f's_lshr_b32 s{sT}, s{sIDX}, 2')
    if RM == 8: a(f's_lshl_b32 s{sROT}, s{sHL}, 1'); a(f's_add_u32 s{sROT}, s{sROT}, s{sT}'); a(f's_and_b32 s{sROT}, s{sROT}, 7')
    elif RM == 1: a(f's_mov_b32 s{sROT}, 0')
    elif RM > 100:
        a(f's_add_u32 s{sT}, s{sT}, s{sHL}'); a(f's_and_b32 s{sT}, s{sT}, 1'); a(f's_mul_i32 s{sT}, s{sT}, {RM-100}')
        a(f's_lshl_b32 s{sROT}, s{sHH}, 2'); a(f's_add_u32 s{sROT}, s{sROT}, s{sXCD}'); a(f's_add_u32 s{sROT}, s{sROT}, s{sT}'); a(f's_and_b32 s{sROT}, s{sROT}, 7')
    else: a(f's_add_u32 s{sROT}, s{sHL}, s{sT}'); a(f's_and_b32 s{sROT}, s{sROT}, {RM-1}'); a(f's_lshl_b32 s{sROT}, s{sROT}, {1 if RM == 4 else 2}')
def dma_setup(a, vd, t0, t1):
    rot_calc(a)
    a(f's_lshl_b32 s{sLB}, s{sW4}, 13')
    a(f'v_lshrrev_b32 v{t0}, 3, v0'); a(f'v_and_b32 v{t1}, 0x70, v{vL16}'); a(f'v_and_b32 v{vd+2}, 0x30, v0')
    a(f'v_xor_b32 v{vd+4}, v{t1}, v{vd+2}')
    a(f's_lshl_b32 s{sT}, s{sW4}, 4'); a(f's_add_u32 s{sT+1}, s{sT}, s{sROW0}')
    a(f'v_add_u32 v{vd+5}, s{sT+1}, v{t0}'); a(f'v_lshl_add_u32 v{vd+4}, v{vd+5}, 10, v{vd+4}')
    a(f'v_xor_b32 v{vd+5}, 64, v{vd+4}'); a(f'v_add_u32 v{vd+5}, {8192-1024}, v{vd+5}')
    a(f'v_and_b32 v{vd+2}, 16, v0'); a(f'v_lshlrev_b32 v{vd+2}, 1, v{vd+2}'); a(f'v_xor_b32 v{vd+2}, v{vd+2}, v{t1}')
    a(f'v_add_u32 v{t0}, s{sT}, v{t0}'); a(f'v_mul_u32_u24 v{t0}, 3072, v{t0}'); a(f's_lshl_b32 s{sT+1}, s{sHG}, 7')
    a(f'v_add3_u32 v{vd+2}, v{vd+2}, v{t0}, s{sT+1}')
    a(f'v_xor_b32 v{t0}, 64, v{vd+2}')
    a(f'v_add_u32 v{vd}, 1024, v{vd+2}'); a(f'v_add_u32 v{vd+1}, 24576, v{t0}'); a(f'v_add_u32 v{vd+3}, 23552, v{t0}')
def dma_group(g, vd):
    base = (g % 3)*SLOT
    adv = [f's_add_u32 s{sSX}, s{sROT}, {g}', f's_and_b32 s{sSX}, s{sSX}, 7', f's_lshl_b32 s{sSX}, s{sSX}, 7', f's_mul_i32 s{sSW}, s{sSX}, 1536']
    ld = lambda v, srdr, so, off: f'buffer_load_dwordx4 v{v}, {SR(srdr)}, s{so} offen' + (f' offset:{off}' if off else '') + ' lds'
    return [[f's_add_u32 m0, s{sLB}, {base+oX}'] + adv + [ld(vd+4, sX, sSX, 0)], [ld(vd+5, sX, sSX, 1024)],
            [f's_add_u32 m0, s{sLB}, {base+oK}', ld(vd, sWQ, sSW, 0)], [ld(vd+1, sWQ, sSW, 1024)],
            [f's_add_u32 m0, s{sLB}, {base}', ld(vd+2, sWQ, sSW, 2048)], [ld(vd+3, sWQ, sSW, 3072)],
            [ld(vd+2, sWQ, sSW, 0)], [ld(vd+3, sWQ, sSW, 1024)]]
def emit(a, b, thr=None):
    for l in b[:-1]: a(l)
    if thr is not None: a(f's_waitcnt vmcnt({thr})')
    a(b[-1])

def phi_pack(a, acc, n, out, tmp):
    for j in range(0, n, 2): a(f'v_pk_mul_f32 {V(tmp+j,2)}, {V(acc+j,2)}, s[{sL2E}:{sL2E+1}]')
    for j in range(n):
        a(f'v_exp_f32_e64 v{tmp+j}, v{tmp+j} clamp')
        a(f'v_max_f32 v{acc+j}, {F(1e-6)}, v{acc+j}')
    for j in range(0, n, 2): a(f'v_pk_add_f32 {V(tmp+j,2)}, {V(tmp+j,2)}, {V(acc+j,2)}')
    for j in range(0, n, 2): a(f'v_cvt_pk_bf16_f32 v{out+j//2}, v{tmp+j}, v{tmp+j+1}')
def sincos4(a, base, step, r0, c, s):
    for r in range(4):
        k = r0 + r
        if k == 0: a(f'v_mov_b32 v{s+r}, v{base}')
        else: a(f'v_fmamk_f32 v{s+r}, v{step}, {F(float(k))}, v{base}')
    for r in range(4): a(f'v_cos_f32 v{c+r}, v{s+r}')
    for r in range(4): a(f'v_sin_f32 v{s+r}, v{s+r}')
def mat6(a, dst, c, s):
    a(f'v_cvt_pk_bf16_f32 v{dst+2}, v{c}, v{c+1}'); a(f'v_cvt_pk_bf16_f32 v{dst+3}, v{c+2}, v{c+3}')
    a(f'v_cvt_pk_bf16_f32 v{dst+4}, v{s}, v{s+1}'); a(f'v_cvt_pk_bf16_f32 v{dst+5}, v{s+2}, v{s+3}')
    a(f'v_xor_b32 v{dst+0}, 0x80008000, v{dst+4}'); a(f'v_xor_b32 v{dst+1}, 0x80008000, v{dst+5}')
def cmul_pack(a, re, im, tc, ts, out, tmp, conj_out=False):
    for j in (0, 2):
        a(f'v_pk_mul_f32 {V(tmp+j,2)}, {V(re+j,2)}, {V(tc+j,2)}')
        a(f'v_pk_mul_f32 {V(tmp+4+j,2)}, {V(re+j,2)}, {V(ts+j,2)}')
    for j in (0, 2):
        a(f'v_pk_fma_f32 {V(tmp+j,2)}, {V(im+j,2)}, {V(ts+j,2)}, {V(tmp+j,2)} neg_lo:[1,0,0] neg_hi:[1,0,0]')
        a(f'v_pk_fma_f32 {V(tmp+4+j,2)}, {V(im+j,2)}, {V(tc+j,2)}, {V(tmp+4+j,2)}')
    n = '-' if conj_out else ''
    a(f'v_cvt_pk_bf16_f32 v{out}, v{tmp}, v{tmp+1}'); a(f'v_cvt_pk_bf16_f32 v{out+1}, v{tmp+2}, v{tmp+3}')
    a(f'v_cvt_pk_bf16_f32 v{out+2}, {n}v{tmp+4}, {n}v{tmp+5}'); a(f'v_cvt_pk_bf16_f32 v{out+3}, {n}v{tmp+6}, {n}v{tmp+7}')

TF=10; WF=74; ACA=138; ACB=154; PQ=170; KVF=186; YL=218; FT=234
def fin_table(a, hook=None):
    P = YL; T = FT; D = FT+8; step = FT+16; base = FT+17; t0 = FT+18; t1 = FT+19; fk = FT+20
    a(f's_lshl_b32 s{sT}, s{sHL}, 7'); a(f's_lshl_b32 s{sT+1}, s{sW4}, 5'); a(f's_add_u32 s{sT}, s{sT}, s{sT+1}')
    a(f'v_and_b32 v{t0}, 15, v0'); a(f'v_add_u32 v{t0}, s{sT}, v{t0}'); a(f'v_cvt_f32_u32 v{step}, v{t0}'); a(f'v_mul_f32 v{step}, {F(1/512)}, v{step}')
    a(f'v_lshrrev_b32 v{t1}, 4, v0'); a(f'v_lshlrev_b32 v{t1}, 2, v{t1}'); a(f's_lshl_b32 s{sT}, s{sKH}, 7'); a(f'v_add_u32 v{t1}, s{sT}, v{t1}')
    a(f'v_cvt_f32_u32 v{fk}, v{t1}')
    cur = [P, P+8]; free = T
    for cu in range(2):
        if cu: a(f'v_add_f32 v{step}, {F(16/512)}, v{step}')
        a(f'v_mul_f32 v{base}, v{fk}, v{step}')
        a(f'v_mul_f32 v{D+4*cu+2}, {F(16.0)}, v{step}')
        sincos4(a, base, step, 0, cur[cu], cur[cu]+4)
        a(f'v_cos_f32 v{D+4*cu}, v{D+4*cu+2}'); a(f'v_sin_f32 v{D+4*cu+2}, v{D+4*cu+2}')
        a(f'v_mov_b32 v{D+4*cu+1}, v{D+4*cu}'); a(f'v_mov_b32 v{D+4*cu+3}, v{D+4*cu+2}')
    for k in range(16):
        n, cu = k//2, k & 1; C = cur[cu]; S_ = C+4; Dc = D + 4*cu
        for j in range(4): a(f'v_cvt_pk_bf16_f32 v{TF+4*k+j}, v{C+j}, v{S_+j}')
        if hook: hook(2*k)
        if n < 7:
            for j in (0, 2, 4, 6): a(f'v_pk_mul_f32 {V(free+j,2)}, {V(C+j,2)}, {V(Dc,2)}')
            for j in (0, 2):
                a(f'v_pk_fma_f32 {V(free+j,2)}, {V(S_+j,2)}, {V(Dc+2,2)}, {V(free+j,2)} neg_lo:[1,0,0] neg_hi:[1,0,0]')
                a(f'v_pk_fma_f32 {V(free+4+j,2)}, {V(C+j,2)}, {V(Dc+2,2)}, {V(free+4+j,2)}')
            cur[cu], free = free, C
        if hook: hook(2*k+1)
    a(f'v_lshlrev_b32 v{t0}, 31, v{t0}'); a(f'v_xor_b32 v{t0}, 0xbf003f00, v{t0}')
    a(f'v_cmp_eq_u32 vcc, 0, v{t1}'); a(f'v_cndmask_b32 v{TF}, v{TF}, v{t0}, vcc'); a(f'v_cndmask_b32 v{TF+4}, v{TF+4}, v{t0}, vcc')

def pull_wo(a, kh):
    B = ACA; t0 = ACA+6; t1 = ACA+7
    a(f'v_bfe_u32 v{t0}, v0, 2, 3'); a(f'v_lshrrev_b32 v{t1}, 5, v0'); a(f'v_lshl_add_u32 v{B}, v{t1}, 4, v{t0}'); a(f'v_lshlrev_b32 v{B}, 8, v{B}')
    a(f's_lshl_b32 s{sT}, s{sW4}, 1'); a(f'v_xor_b32 v{t0}, s{sT}, v{t0}'); a(f'v_lshl_add_u32 v{B}, v{t0}, 5, v{B}')
    a(f'v_and_b32 v{t0}, 3, v0'); a(f'v_lshl_add_u32 v{B}, v{t0}, 3, v{B}')
    a(f'v_xor_b32 v{B+1}, 32, v{B}')
    for q in (1, 2):
        for cu in range(2): a(f'v_add_u32 v{B+2*q+cu}, {57344*q}, v{B+cu}')
    a('s_barrier')
    for n in range(8):
        for cu in range(2):
            for jj in range(2):
                ad = wo_unit(8*kh+n) + jj*2048
                q = ad // 57344
                a(f'ds_read_b64_tr_b16 {V(WF+8*n+4*cu+2*jj,2)}, v{B+2*q+cu} offset:{ad - q*57344}')

def srdc(a, d):
    n = {sX:0x200000, sWQ:512*3072, sWR:2048*514, sWI:2048*514, sWS:WS_SIZE, sGW:1024, sWO:512*1024, sOUT:0x200000}[d]
    a(f's_mov_b32 s{d+2}, {n}'); a(f's_mov_b32 s{d+3}, 0x20000')
def ids_gemm(a):
    a(f's_and_b32 s{sHH}, s2, 1'); a(f's_and_b32 s{sHL}, s{sIDX}, 3')
    a(f's_lshl_b32 s{sHG}, s{sHH}, 2'); a(f's_add_u32 s{sHG}, s{sHG}, s{sHL}')
    a(f's_and_b32 s{sROW0}, s2, 6'); a(f's_lshl_b32 s{sROW0}, s{sROW0}, 7')
    a(f's_and_b32 s{sT}, s{sIDX}, 12'); a(f's_lshl_b32 s{sT}, s{sT}, 4'); a(f's_add_u32 s{sROW0}, s{sROW0}, s{sT}')
    a(f's_and_b32 s{sT}, s{sIDX}, 16'); a(f's_lshl_b32 s{sT}, s{sT}, 6'); a(f's_add_u32 s{sROW0}, s{sROW0}, s{sT}')
def late_common(a):
    for d in (sWS, sWO, sOUT): srdc(a, d)
    a(f's_lshr_b32 s{sAT}, s{sROW0}, 5'); a(f's_add_u32 s{sAT}, s{sAT}, s{sHH}'); a(f's_lshr_b32 s{sKH}, s{sWV}, 2')

def build():
    a = Asm(); ST = Stamps(a); ST('start')
    a('s_cmp_ge_u32 s2, 256'); a(f's_cbranch_scc1 L_done')
    for d, off in ((sX,0),(sWQ,32),(sWR,8),(sWI,16),(sWS,72),(sGW,48),(sWO,40),(sOUT,56)):
        a(f's_load_dwordx2 s[{d}:{d+1}], s[0:1], {off}')
    a(f'v_readfirstlane_b32 s{sWV}, v0'); a('v_and_b32 v0, 63, v0')
    a(f's_and_b32 s{sXCD}, s2, 7'); a(f's_lshr_b32 s{sIDX}, s2, 3')
    a('s_getpc_b64 s[4:5]')
    a(f's_lshl_b32 s{sT}, s{sIDX}, 10'); a(f's_lshl_b32 s{sT+1}, s{sWV}, 1'); a(f's_add_u32 s{sT}, s{sT}, s{sT+1}')
    CP = opt('cp', 3)
    if CP in (1, 2): a(f's_load_dword s{sU}, s[4:5], s{sT}')
    if CP == 2: a(f's_add_u32 s{sT}, s{sT}, 64'); a(f's_load_dword s{sU}, s[4:5], s{sT}')
    if CP == 3:
        a(f'v_mov_b32 v{vS+5}, s{sT}'); a('s_mov_b64 exec, 1'); a(f'global_load_dword v{vS+5}, v{vS+5}, s[4:5]'); a('s_mov_b64 exec, -1')
    if CP == 4:
        a(f's_lshl_b32 s{sT+1}, s{sWV}, 4'); a(f'v_lshl_add_u32 v{vS+5}, v0, 7, s{sT+1}'); a(f'v_writelane_b32 v{vS+5}, s{sT}, 8')
        a('s_mov_b64 exec, 0x1ff'); a(f'global_load_dword v{vS+5}, v{vS+5}, s[4:5]'); a('s_mov_b64 exec, -1')
    a(f's_lshr_b32 s{sWV}, s{sWV}, 6'); a(f'v_lshlrev_b32 v{vL16}, 4, v0')
    a(f's_and_b32 s{sW4}, s{sWV}, 3'); a(f's_lshl_b32 s{sLW}, s{sW4}, 11')
    a(f'v_mov_b32 v{vSY}, {L_SY}'); a(f'v_mov_b32 v{vS}, 0'); a(f'v_mov_b32 v{vS+1}, 0')
    a(f'v_lshl_add_u32 v{vPA}, s{sWV}, 2, v{vSY}')
    a(f'ds_write_b32 v{vPA}, v{vS}'); a(f'ds_write_b64 v{vSY}, {V(vS,2)} offset:32')
    srdc(a, sX)
    a(f's_lshl_b32 s{sP}, s{sXCD}, 5'); a(f's_add_u32 s{sP}, s{sP}, s{sIDX}')
    a(f's_cmp_ge_u32 s{sWV}, 4'); a('s_cbranch_scc1 L_G0')
    names0 = list(ST.names)
    H = gen_H0(a, ST); nH = list(ST.names)
    a('s_branch L_H1')
    a.label('L_G0'); a.hist = []; ST.names = list(names0)
    G = gen_G0(a, ST); nG = list(ST.names)
    a('s_branch L_G1')
    a.label('L_H1'); a.hist = []; ST.names = nH
    hiH = gen_H(a, ST, H); nH = list(ST.names)
    a('s_branch L_FIN')
    a.label('L_G1'); a.hist = []; ST.names = nG
    hiG = gen_G(a, ST, G)
    while len(ST.names) < len(nH): ST.names.append('-')
    a.label('L_FIN'); a.hist = []
    gen_FIN(a, ST)
    a.label('L_done'); a('s_endpgm')
    gen_special(a)
    if STAMP: print('H:', nH, '\nG:', ST.names, file=sys.stderr)
    print('instrs', a.count, 'nops', a.nops, 'vgprs', hiH, hiG, file=sys.stderr)
    return a

SP = {}
def wloads(a, vWs, e0, e1, e3):
    a(f's_add_u32 m0, s{sLW}, {L_WRAW}'); a(f'buffer_load_dwordx4 v{vWs}, {SR(sWR)}, s{sT+3} offen lds')
    a(f's_add_u32 m0, s{sLW}, {L_WRAW+1024}'); a(f'buffer_load_dwordx4 v{vWs}, {SR(sWI)}, s{sT+3} offen lds')
    a('s_mov_b64 exec, 0xffff')
    a(f'buffer_load_ushort v{e0}, v{e3}, {SR(sWR)}, 0 offen')
    a(f'buffer_load_ushort v{e1}, v{e3}, {SR(sWI)}, 0 offen')
    a('s_mov_b64 exec, -1')
def gen_H0(a, ST):
    R = Regs(VBASE)
    t0, t1, vWs = R.alloc(), R.alloc(), R.alloc()
    srdc(a, sWR); srdc(a, sWI)
    a(f's_lshl_b32 s{sT}, s{sXCD}, 17'); a(f's_lshl_b32 s{sT+1}, s{sW4}, 15'); a(f's_add_u32 s{sT}, s{sT}, s{sT+1}')
    a(f's_lshl_b32 s{sT+1}, s{sIDX}, 10'); a(f's_add_u32 s{sT}, s{sT}, s{sT+1}'); a(f's_add_u32 s{sT+1}, s{sT}, {1024*1024-1024}')
    a(f'v_lshrrev_b32 v{t0}, 4, v0'); a(f'v_mul_u32_u24 v{vWs}, {64*514-256}, v{t0}'); a(f'v_add_u32 v{vWs}, v{vWs}, v{vL16}')
    a(f's_and_b32 s{sT+2}, s{sP}, 63'); a(f's_and_b32 s{sT+3}, s{sP}, 0xc0'); a(f's_lshl_b32 s{sT+3}, s{sT+3}, 2'); a(f's_add_u32 s{sT+2}, s{sT+2}, s{sT+3}')
    a(f's_and_b32 s{sT+3}, s{sW4}, 1'); a(f's_lshl_b32 s{sT+3}, s{sT+3}, 10'); a(f's_add_u32 s{sT+2}, s{sT+2}, s{sT+3}')
    a(f's_mul_i32 s{sT+3}, s{sT+2}, 514')
    a(f's_and_b32 s{sT+4}, s{sW4}, 2'); a(f's_lshl_b32 s{sT+4}, s{sT+4}, 7'); a(f's_add_u32 s{sT+3}, s{sT+3}, s{sT+4}')
    e0, e1, e2, e3 = [R.alloc() for _ in range(4)]
    a(f'v_and_b32 v{t1}, 3, v0'); a(f'v_lshl_add_u32 v{e0}, v{t1}, 6, s{sT+2}')
    a(f'v_sub_u32 v{e1}, 0x800, v{e0}'); a(f'v_and_b32 v{e1}, 0x7ff, v{e1}')
    a(f'v_and_b32 v{e2}, 8, v0'); a(f'v_cmp_eq_u32 vcc, 0, v{e2}'); a(f'v_and_b32 v{e2}, 4, v0'); a(f'v_lshlrev_b32 v{e2}, 7, v{e2}')
    a(f'v_cndmask_b32 v{e0}, v{e1}, v{e0}, vcc'); a(f'v_mul_u32_u24 v{e0}, 514, v{e0}'); a(f'v_add_u32 v{e3}, v{e0}, v{e2}')
    srdc(a, sGW)
    a(f's_lshr_b32 s{sT+5}, s{sLW}, 2'); a(f's_and_b32 s{sT+4}, s{sT+5}, 512')
    a(f's_add_u32 m0, s{sLW}, {L_P1X}')
    a('s_waitcnt lgkmcnt(0)'); ST('karg')
    a(f's_load_dword s{sTAG}, s[{sWS}:{sWS+1}], {WS_GEN}')
    a(f'buffer_load_dwordx4 v{vL16}, {SR(sX)}, s{sT} offen lds')
    a(f'buffer_load_dwordx4 v{vL16}, {SR(sX)}, s{sT+1} offen offset:1024 lds')
    a(f's_add_u32 m0, s{sT+5}, {L_GW}'); a('s_mov_b32 exec_hi, 0')
    a(f'buffer_load_dwordx4 v{vL16}, {SR(sGW)}, s{sT+4} offen lds'); a('s_mov_b32 exec_hi, -1')
    if opt('wpos', 2) == 0: wloads(a, vWs, e0, e1, e3)
    return R, t0, t1, vWs, e0, e1, e2, e3

def gen_H(a, ST, H):
    R, t0, t1, vWs, e0, e1, e2, e3 = H
    vl15, fl15, fg4 = R.alloc(), R.alloc(), R.alloc()
    a(f'v_and_b32 v{vl15}, 15, v0'); a(f'v_cvt_f32_u32 v{fl15}, v{vl15}')
    a(f'v_lshlrev_b32 v{fg4}, 2, v{t0}'); a(f'v_cvt_f32_u32 v{fg4}, v{fg4}')
    F16T = R.alloc(6); tc = R.alloc(8); ts = R.alloc(8); base = R.alloc(); step = R.alloc()
    a(f'v_mul_f32 v{step}, {F(1/16)}, v{fl15}'); a(f'v_mul_f32 v{base}, v{fg4}, v{step}')
    sincos4(a, base, step, 0, tc, ts); mat6(a, F16T, tc, ts)
    F32T = R.alloc(24); m = R.alloc(); mo = R.alloc()
    a(f'v_mul_f32 v{step}, {F(1/32)}, v{fl15}'); a(f'v_mul_f32 v{base}, v{fg4}, v{step}')
    sincos4(a, base, step, 0, tc, ts); mat6(a, F32T, tc, ts)
    a(f'v_and_b32 v{mo}, 1, v{vl15}'); a(f'v_sub_u32 v{mo}, 0, v{mo}'); a(f'v_and_b32 v{mo}, 0x80008000, v{mo}')
    for j in range(6):
        a(f'v_xor_b32 v{F32T+6+j}, v{mo}, v{F32T+j}'); a(f'v_xor_b32 v{F32T+12+j}, 0x80000000, v{F32T+j}'); a(f'v_xor_b32 v{F32T+18+j}, 0x80000000, v{F32T+6+j}')
    a(f'v_mul_f32 v{step}, {F(-1/512)}, v{fl15}'); a(f'v_mul_f32 v{base}, v{fg4}, v{step}')
    sincos4(a, base, step, 0, tc, ts); sincos4(a, base, step, 16, tc+4, ts+4)
    if opt('wpos', 2) == 1: wloads(a, vWs, e0, e1, e3)
    aT = R.alloc(); aZ = R.alloc(); aO = R.alloc(4); stp = R.alloc(); aWt = R.alloc(); aWp = R.alloc()
    a(f'v_lshrrev_b32 v{t0}, 2, v0'); a(f'v_lshlrev_b32 v{aWt}, 3, v{t1}'); a(f'v_lshl_add_u32 v{aT}, v{t0}, 6, v{aWt}')
    a(f's_add_u32 s{sT}, s{sLW}, {L_P1X}'); a(f'v_add_u32 v{aT}, s{sT}, v{aT}')
    a(f'v_bfe_u32 v{m}, v0, 2, 1'); a(f'v_lshl_add_u32 v{aWt}, v{m}, 10, v{aWt}')
    a(f'v_bfe_u32 v{m}, v0, 3, 1'); a(f'v_lshl_add_u32 v{aWt}, v{m}, 8, v{aWt}')
    a(f'v_lshrrev_b32 v{m}, 4, v0'); a(f'v_lshl_add_u32 v{aWt}, v{m}, 5, v{aWt}')
    a(f's_add_u32 s{sT}, s{sLW}, {L_WRAW}'); a(f'v_add_u32 v{aWt}, s{sT}, v{aWt}')
    a(f's_and_b32 s{sT}, s{sW4}, 1'); a(f's_mul_i32 s{sT+1}, s{sT}, {264*4}'); a(f's_add_u32 s{sT+1}, s{sT+1}, {L_PL+520*4}')
    aA_, aB_ = R.alloc(), R.alloc()
    a(f'v_mul_u32_u24 v{aA_}, {PS*4}, v{t1}')
    a(f's_lshl_b32 s{sT+2}, s{sT}, 2'); a(f's_add_u32 s{sT+2}, s{sT+2}, {L_PL+1040*4}'); a(f'v_add_u32 v{aB_}, s{sT+2}, v{aA_}')
    a(f'v_add_u32 v{aA_}, s{sT+1}, v{aA_}')
    a(f's_and_b32 s{sT+2}, s{sW4}, 2'); a(f's_lshl_b32 s{sT+2}, s{sT+2}, 8'); a(f's_add_u32 s{sT+1}, s{sT+1}, s{sT+2}'); a(f'v_lshl_add_u32 v{aWp}, v0, 2, s{sT+1}')
    a(f'v_lshlrev_b32 v{m}, 4, v{m}'); a(f'v_lshl_add_u32 v{aZ}, v{vl15}, 6, v{m}')
    a(f's_mul_i32 s{sT}, s{sW4}, {PS*4}'); a(f's_add_u32 s{sT}, s{sT}, {L_PL}'); a(f'v_add_u32 v{aZ}, s{sT}, v{aZ}')
    a(f's_lshl_b32 s{sT}, s{sW4}, 6'); a(f'v_add_u32 v{t0}, s{sT}, v{t0}')
    a(f'v_cmp_eq_u32 vcc, 1, v{t1}')
    a(f'v_sub_u32 v{aO}, 512, v{t0}'); a(f'v_mov_b32 v{stp}, 64'); a(f'v_mov_b32 v{aO+1}, -64')
    a(f'v_cndmask_b32 v{aO}, v{t0}, v{aO}, vcc'); a(f'v_cndmask_b32 v{stp}, v{stp}, v{aO+1}, vcc')
    a(f'v_cmp_eq_u32 vcc, 2, v{t1}'); a(f'v_add_u32 v{aO+1}, 520, v{t0}'); a(f'v_add_u32 v{aO+2}, 784, v{t0}'); a(f'v_cndmask_b32 v{aO}, v{aO}, v{aO+1}, vcc')
    a(f'v_cmp_eq_u32 vcc, 3, v{t1}'); a(f'v_mov_b32 v{t0}, {L_PL+1024}'); a(f's_mov_b32 s{sT}, {L_PL}'); a(f'v_cndmask_b32 v{aO}, v{aO}, v{aO+2}, vcc')
    a(f'v_lshl_add_u32 v{aO}, v{aO}, 2, s{sT}')
    for j in range(1,4): a(f'v_add_u32 v{aO+j}, v{aO+j-1}, v{stp}')
    a(f'v_cmp_eq_u32 vcc, {L_PL+2048}, v{aO}'); a(f'v_and_b32 v{t1}, 1, v0'); a(f's_mov_b32 s{sT}, {L_PL+1040*4}'); a(f'v_cndmask_b32 v{aO}, v{aO}, v{t0}, vcc')
    a(f'v_lshl_add_u32 v{stp}, v{t1}, 2, s{sT}')
    if opt('wpos', 2) == 2: wloads(a, vWs, e0, e1, e3)
    ids_gemm(a); late_common(a); rot_calc(a)
    X = R.alloc(8); Dr = R.alloc(8); Di = R.alloc(8); tmp = R.alloc(8); IN = R.alloc(32); P = IN; Wt = IN+16
    a('s_waitcnt lgkmcnt(0)')
    a(f's_add_u32 s{sTAG}, s{sTAG}, {TAGC}')
    ST('const'); a('s_waitcnt vmcnt(4)'); ST('rows')
    for t in range(2):
        for rho in range(2): a(f'ds_read_b64_tr_b16 {V(X+t*4+rho*2,2)}, v{aT} offset:{rho*1024+t*32}')
    for t in range(2):
        a(LG(2-2*t))
        a(f'{M16} {V(Dr+4*t,4)}, {V(X+4*t,4)}, {V(F16T+2,4)}, 0'); a(f'{M16} {V(Di+4*t,4)}, {V(X+4*t,4)}, {V(F16T,4)}, 0')
    for t in range(2): cmul_pack(a, Dr+4*t, Di+4*t, tc+4*t, ts+4*t, X+4*t, tmp)
    for t in range(2):
        for u in range(2):
            T = F32T + (u*2+t)*6
            a(f'{M16} {V(Dr+4*u,4)}, {V(X+4*t,4)}, {V(T+2,4)}, {"0" if t==0 else V(Dr+4*u,4)}')
            a(f'{M16} {V(Di+4*u,4)}, {V(X+4*t,4)}, {V(T,4)}, {"0" if t==0 else V(Di+4*u,4)}')
    dp = 'row_mask:0xf bank_mask:0xf'
    for u in range(2):
        for r in range(4): a(f'v_cvt_pk_bf16_f32 v{P+4*u+r}, v{Dr+4*u+r}, v{Di+4*u+r}')
        a(f'ds_write_b128 v{aZ}, {V(P+4*u,4)} offset:{u*1024}')
    ST('p1')
    def wprep():
        a('s_waitcnt vmcnt(0)'); ST('_wv')
        for cg in range(2):
            for hf in range(2): a(f'ds_read_b64_tr_b16 {V(Wt+4*cg+2*hf,2)}, v{aWt} offset:{cg*128+hf*512}')
        a(f'v_lshlrev_b32 v{e0}, 16, v{e0}'); a(f'v_lshlrev_b32 v{e1}, 16, v{e1}')
        a(f'v_add_f32_dpp v{e2}, v{e0}, v{e0} row_ror:8 {dp}'); a(f'v_subrev_f32_dpp v{e3}, v{e1}, v{e1} row_ror:8 {dp}')
        a(f'v_add_f32_dpp v{e0}, v{e2}, v{e2} row_ror:12 {dp}'); a(f'v_add_f32_dpp v{e1}, v{e3}, v{e3} row_ror:12 {dp}')
        a(f'v_subrev_f32_dpp v{tmp}, v{e2}, v{e2} row_ror:12 {dp}'); a(f'v_subrev_f32_dpp v{tmp+1}, v{e3}, v{e3} row_ror:12 {dp}')
        a(f'v_cvt_pk_bf16_f32 v{e0}, v{e0}, v{e1}'); a(f'v_cvt_pk_bf16_f32 v{e1}, v{tmp}, v{tmp+1}')
        a('s_waitcnt lgkmcnt(0)')
        for r in range(4): a(f'ds_write2st64_b32 v{aWp}, v{Wt+r}, v{Wt+4+r} offset0:{r*17} offset1:{r*17+1}')
        a('s_mov_b64 exec, 15')
        a(f'ds_write_b32 v{aA_}, v{e0}'); a(f'ds_write_b32 v{aB_}, v{e1}')
        a('s_mov_b64 exec, -1')
    for r, n in ((F16T,6),(aT,1),(aZ,1),(vWs,1)): R.free(r, n)
    B1 = R.alloc(32); tw2c = R.alloc(8); tw2s = R.alloc(8); F64 = R.alloc(24); tw1c = tc; tw1s = ts
    c = Dr; s = Dr+4; fk = R.alloc(); m2 = R.alloc()
    vA, aW, aWr, aE, aI, aO1, aO2, aOr, vY, vF, aGx, aGw, gacc, vPoll = [R.alloc() for _ in range(14)]
    r = Rec()
    sR, sI = sT+4, sT+5
    a(f's_lshl_b32 s{sT}, s{sHH}, 14'); a(f's_and_b32 s{sT+1}, s{sW4}, 2'); a(f's_lshl_b32 s{sT+1}, s{sT+1}, 12'); a(f's_add_u32 s{sT}, s{sT}, s{sT+1}')
    a(f's_and_b32 s{sT+1}, s{sW4}, 1'); a(f's_lshl_b32 s{sT+1}, s{sT+1}, 10'); a(f's_add_u32 s{sT}, s{sT}, s{sT+1}'); a(f's_add_u32 s{sT}, s{sT}, {oX}')
    a(f'v_add_u32 v{aGx}, s{sT}, v{vL16}')
    a(f'v_lshrrev_b32 v{t0}, 4, v{aGx}'); a(f'v_xor_b32 v{t0}, v{t0}, v{aGx}'); a(f'v_and_b32 v{t0}, 0x70, v{t0}'); a(f's_lshl_b32 s{sT}, s{sROT}, 7'); a(f's_add_u32 s{sT}, s{sT}, {L_GW}'); a(f'v_add_u32 v{aGw}, s{sT}, v{t0}')
    a(f'v_mov_b32 v{gacc}, 0')
    r(f'v_lshrrev_b32 v{t0}, 4, v0'); r(f'v_lshlrev_b32 v{vF}, 8, v{t0}'); r(f'v_lshl_add_u32 v{vF}, v{vl15}, 2, v{vF}')
    r(f'v_lshrrev_b32 v{t0}, 2, v0'); r(f'v_and_b32 v{t1}, 3, v0')
    r(f'v_mul_u32_u24 v{vA}, {ZSTRIDE}, v{t0}'); r(f'v_lshl_add_u32 v{vA}, v{t1}, 4, v{vA}')
    r(f'v_lshlrev_b32 v{aW}, 4, v{t0}'); r(f'v_and_b32 v{t0}, 1, v{t1}'); r(f'v_lshl_add_u32 v{aW}, v{t0}, 8, v{aW}')
    r(f'v_lshrrev_b32 v{t0}, 1, v{t1}'); r(f'v_lshl_add_u32 v{aW}, v{t0}, 13, v{aW}')
    r(f's_lshl_b32 s{sT}, s{sW4}, 10'); r(f's_add_u32 s{sT+1}, s{sT}, {L_IN}'); r(f'v_add_u32 v{aW}, s{sT+1}, v{aW}')
    r(f's_add_u32 s{sT+1}, s{sT}, {L_EX}'); r(f'v_add_u32 v{aE}, s{sT+1}, v{vL16}')
    r(f'v_add_u32 v{aI}, {L_IN}, v{vL16}')
    r(f'v_lshrrev_b32 v{t0}, 4, v0'); r(f'v_lshlrev_b32 v{aWr}, 10, v{t0}'); r(f'v_lshl_add_u32 v{aWr}, v{vl15}, 4, v{aWr}')
    r(f's_and_b32 s{sT}, s{sW4}, 1'); r(f's_lshl_b32 s{sT}, s{sT}, 12'); r(f's_lshr_b32 s{sT+1}, s{sW4}, 1'); r(f's_lshl_b32 s{sT+1}, s{sT+1}, 9')
    r(f's_add_u32 s{sT}, s{sT}, s{sT+1}'); r(f's_add_u32 s{sT}, s{sT}, {L_IN+8192}'); r(f'v_add_u32 v{aWr}, s{sT}, v{aWr}')
    r(f'v_and_b32 v{t1}, 7, v0'); r(f'v_xor_b32 v{t0}, v{t0}, v{t1}'); r(f'v_lshlrev_b32 v{t0}, 4, v{t0}')
    r(f'v_lshl_add_u32 v{aO1}, v{vl15}, 7, v{t0}'); r(f's_add_u32 s{sT}, s{sLW}, {L_OT}'); r(f'v_add_u32 v{aO1}, s{sT}, v{aO1}'); r(f'v_xor_b32 v{aO2}, 64, v{aO1}')
    r(f'v_lshrrev_b32 v{t0}, 3, v0'); r(f'v_xor_b32 v{aOr}, v{t1}, v{t0}'); r(f'v_lshlrev_b32 v{aOr}, 4, v{aOr}'); r(f'v_lshl_add_u32 v{aOr}, v{t0}, 7, v{aOr}'); r(f'v_add_u32 v{aOr}, s{sT}, v{aOr}')
    r(f'v_lshlrev_b32 v{t0}, 15, v{t0}'); r(f'v_lshl_add_u32 v{vY}, v{t1}, 4, v{t0}')
    r(f's_lshl_b32 s{sT}, s{sW4}, 4'); r(f'v_add_u32 v{t0}, s{sT}, v{vl15}'); r(f'v_cvt_f32_u32 v{fk}, v{t0}')
    r(f'v_cvt_f32_u32 v{t0}, s{sT}'); r(f'v_add_f32 v{t0}, v{t0}, v{fg4}')
    for t in range(2):
        if t == 0: r(f'v_mul_f32 v{step}, {F(-1/2048)}, v{fl15}')
        else: r(f'v_add_f32 v{step}, {F(-16/2048)}, v{step}')
        r(f'v_mul_f32 v{base}, v{t0}, v{step}')
        sincos4(r, base, step, 0, tw2c+4*t, tw2s+4*t)
    r(f'v_mul_f32 v{step}, {F(-1/64)}, v{fk}')
    r(f'v_lshrrev_b32 v{t0}, 5, v0'); r(f'v_lshlrev_b32 v{t0}, 2, v{t0}'); r(f'v_cvt_f32_u32 v{t0}, v{t0}')
    r(f'v_bfe_u32 v{t1}, v0, 4, 1')
    r(f'v_xor_b32 v{m}, v{t1}, v0'); r(f'v_lshlrev_b32 v{m}, 31, v{m}'); r(f'v_xor_b32 v{base}, {F(-0.125)}, v{m}')
    r(f'v_cvt_f32_u32 v{m}, v{t1}'); r(f'v_mul_f32 v{m}, 0x3e800000, v{m}')
    r(f'v_cmp_eq_u32 vcc, s{sP}, 0' if False else f'v_cmp_eq_u32_e64 vcc, s{sP}, 0')
    r(f'v_cndmask_b32 v{base}, v{base}, v{m}, vcc')
    r(f'v_cndmask_b32 v{m}, v{t1}, v0, vcc'); r(f'v_lshlrev_b32 v{m}, 31, v{m}')
    r(f'v_xor_b32 v{m2}, 0x80000000, v{m}'); r(f'v_cndmask_b32 v{m2}, v{m2}, v{m}, vcc')
    r(f'v_fmac_f32 v{base}, v{t0}, v{step}')
    r([f's_cmp_eq_u32 s{sP}, 0', f's_cselect_b32 s{sR}, 0x01000100, 0x03020100' if False else f's_mov_b32 s{sR}, 0x03020100', f's_cmov_b32 s{sR}, 0x01000100',
       f's_mov_b32 s{sI}, 0x01000302', f's_cmov_b32 s{sI}, 0x03020302', f's_mov_b32 s{sSC}, {F(math.sqrt(0.5))}', f's_cmov_b32 s{sSC}, {F(0.25)}', f's_mov_b32 s{sSC+1}, s{sSC}'])
    for k in range(2):
        sincos4(r, base, step, 8*k, c, s)
        for i in range(4): r(f'v_cvt_pk_bf16_f32 v{c+i}, v{c+i}, v{s+i}')
        for i in range(4):
            r(f'v_perm_b32 v{B1+k*8+i}, v{c+i}, v{c+i}, s{sR}'); r(f'v_perm_b32 v{B1+k*8+4+i}, v{c+i}, v{c+i}, s{sI}')
        for i in range(4):
            r(f'v_xor_b32 v{B1+k*8+i}, v{m2}, v{B1+k*8+i}'); r(f'v_xor_b32 v{B1+k*8+4+i}, v{m}, v{B1+k*8+4+i}')
    r('s_mov_b32 s4, 0xaaaaaaaa'); r('s_mov_b32 s5, 0xaaaaaaaa')
    r(f'v_bfe_i32 v{m2}, v0, 1, 1'); r(f'v_and_b32 v{m2}, 0x80008000, v{m2}'); r(f'v_xor_b32 v{m}, v{m2}, v{mo}')
    for k in range(2):
        for i in range(4):
            re_, im_ = B1+k*8+i, B1+k*8+4+i
            r(f'v_cndmask_b32 v{re_+16}, v{re_}, v{im_}, s[4:5]'); r(f'v_cndmask_b32 v{im_+16}, v{im_}, v{re_}, s[4:5]')
            r(f'v_xor_b32 v{re_+16}, v{m2}, v{re_+16}'); r(f'v_xor_b32 v{im_+16}, v{m}, v{im_+16}')
    r(f'v_mul_f32 v{step}, {F(-1/2048)}, v{fk}'); r(f'v_mul_f32 v{base}, v{fg4}, v{step}')
    sincos4(r, base, step, 0, tw1c, tw1s); sincos4(r, base, step, 16, tw1c+4, tw1s+4)
    for j in range(0, 8, 2):
        r(f'v_pk_mul_f32 {V(tw1c+j,2)}, {V(tw1c+j,2)}, s[{sSC}:{sSC+1}]'); r(f'v_pk_mul_f32 {V(tw1s+j,2)}, {V(tw1s+j,2)}, s[{sSC}:{sSC+1}]')
    r(f'v_mul_f32 v{step}, {F(1/64)}, v{fk}'); r(f'v_mul_f32 v{base}, v{fg4}, v{step}')
    for k in range(2):
        sincos4(r, base, step, 16*k, c, s); mat6(r, F64+6*k, c, s)
    for j in range(12): r(f'v_xor_b32 v{F64+12+j}, v{mo}, v{F64+j}')
    pend = list(r.l)
    def fill(n):
        while n > 0 and pend:
            x = pend.pop(0)
            for y in (x if isinstance(x, list) else [x]): a(y)
            n -= 1
    print('H const entries', len(pend), file=sys.stderr)
    def readout():
        for j in range(4):
            a(f'ds_read2st64_b32 {V(P+4*j,2)}, v{aO+j} offset0:0 offset1:17'); a(f'ds_read2st64_b32 {V(P+4*j+2,2)}, v{aO+j} offset0:34 offset1:51')
        a(f'ds_read2st64_b32 {V(Wt,2)}, v{stp} offset0:0 offset1:17'); a(f'ds_read2st64_b32 {V(Wt+2,2)}, v{stp} offset0:34 offset1:51')
        a(f's_mul_i32 s{sT}, s{sP}, {ZSTRIDE}'); a(f's_lshl_b32 s{sT+1}, s{sW4}, 12'); a(f's_add_u32 s{sT+1}, s{sT}, s{sT+1}'); a(f's_add_u32 s{sT}, s{sT}, 16384')
        for j in range(4):
            a(LG(8-2*j))
            a(f'buffer_store_dwordx4 {V(P+4*j,4)}, v{vL16}, {SR(sWS)}, s{sT+1} offen offset:{j*1024} sc1')
        Lx = a.newlabel('x')
        a(f's_cmp_lg_u32 s{sW4}, 0'); a(f's_cbranch_scc1 {Lx}')
        a('s_waitcnt lgkmcnt(0)'); a('s_mov_b64 exec, 3')
        a(f'buffer_store_dwordx4 {V(Wt,4)}, v{vL16}, {SR(sWS)}, s{sT} offen sc1')
        a('s_mov_b64 exec, -1')
        a(f's_cmp_ge_u32 s{sP}, 34'); a(f's_cbranch_scc1 {Lx}')
        for j in range(4): a(f'v_mov_b32 v{tmp+j}, 0')
        a(f's_lshl_b32 s{sT}, s{sP}, 10'); a(f's_add_u32 s{sT}, s{sT}, {WS_KV}')
        a(f'buffer_store_dwordx4 {V(tmp,4)}, v{vL16}, {SR(sWS)}, s{sT} offen sc1'); a('s_nop 1')
        a.label(Lx)
        ST('zst')
    per = opt('hfill', 32)
    FB = opt('fb', 3)
    PI = opt('pi', 5)
    sPo = sT+2; sMs = sT+3
    a(f's_lshl_b32 s{sPo}, s{sXCD}, 13'); a(f's_lshl_b32 s{sT+1}, s{sW4}, 10'); a(f's_add_u32 s{sPo}, s{sPo}, s{sT+1}'); a(f's_add_u32 s{sPo}, s{sPo}, {WS_F1}')
    a(f's_mul_i32 s{sMs}, s{sW4}, {64*ZSTRIDE}'); a(f's_lshl_b32 s{sT+1}, s{sP}, 6'); a(f's_add_u32 s{sMs}, s{sMs}, s{sT+1}')
    def msgs():
        for j in range(4):
            if j: a(f's_add_u32 s{sMs}, s{sMs}, {16*ZSTRIDE}')
            a(f'buffer_load_dwordx4 {V(IN+4*j,4)}, v{vA}, {SR(sWS)}, s{sMs} offen sc1')
        arrive(a, 3)
    poll = f'buffer_load_dword v{vPoll}, v{vF}, {SR(sWS)}, s{sPo} offen sc1'
    WI = opt('wi', 0)
    for cch in range(7):
        if cch == FB: a('s_waitcnt vmcnt(0)')
        ST(f'_hb{cch}')
        a('s_barrier')
        ST(f'_hc{cch}')
        if cch in (1, 2, 4, 6): ST(f'B{cch}')
        if cch == FB:
            Lf = a.newlabel('f')
            a(f's_cmp_lg_u32 s{sW4}, 0'); a(f's_cbranch_scc1 {Lf}'); flag_store(a, WS_F1, sP); a.label(Lf)
        if cch == PI: a(poll)
        if cch == WI+1: readout()
        if cch % 3 < 2: a(f'ds_read_b128 {V(X,4)}, v{aGx} offset:{(cch%3)*SLOT}')
        else: a(f'v_add_u32 v{tmp}, {2*SLOT}, v{aGx}'); a(f'ds_read_b128 {V(X,4)}, v{tmp}')
        a(f'ds_read_b128 {V(X+4,4)}, v{aGw} offset:{cch*128}')
        if cch == 6:
            Ll = a.newlabel('late')
            a(f's_mov_b32 s{sCNT}, 0x20000')
            a('s_waitcnt vmcnt(0)')
            a(f'v_cmp_ne_u32 vcc, s{sTAG}, v{vPoll}'); a('s_nop 4'); a(f's_cbranch_vccnz {Ll}')
            msgs()
            a(f's_mov_b32 s{sCNT}, 0')
            a.label(Ll)
            fill(opt('h6', 16))
        elif cch == 0: fill(opt('h0', 56))
        elif cch != WI+1: fill(per)
        if cch == WI: wprep()
        a('s_waitcnt lgkmcnt(0)')
        for j in range(4): a(f'v_dot2_f32_bf16 v{gacc}, v{X+j}, v{X+4+j}, v{gacc}')
    a('s_barrier')
    ST('B7')
    a(f'ds_read_b128 {V(X,4)}, v{aGx} offset:{(7%3)*SLOT}'); a(f'ds_read_b128 {V(X+4,4)}, v{aGw} offset:{7*128}')
    Lp = a.newlabel('p'); Lq = a.newlabel('q'); Lok = a.newlabel('ok')
    a(f's_cmp_eq_u32 s{sCNT}, 0'); a(f's_cbranch_scc1 {Lok}')
    a.label(Lp)
    a(poll)
    a(f's_sub_u32 s{sCNT}, s{sCNT}, 1'); a(f's_cbranch_scc1 {Lq}')
    a('s_waitcnt vmcnt(0)')
    a(f'v_cmp_ne_u32 vcc, s{sTAG}, v{vPoll}'); a('s_nop 4'); a(f's_cbranch_vccnz {Lp}')
    a.label(Lq)
    msgs()
    a.label(Lok)
    a(f's_cmp_eq_u32 s{sP}, 0'); a('s_cbranch_scc1 L_sp3')
    a.label('L_sp3r')
    fill(10000)
    a('s_waitcnt lgkmcnt(0)')
    for j in range(4): a(f'v_dot2_f32_bf16 v{gacc}, v{X+j}, v{X+4+j}, v{gacc}')
    ST('c2')
    for j in range(4):
        a(f's_waitcnt vmcnt({3-j})')
        a(f'ds_write_b128 v{aW}, {V(IN+4*j,4)} offset:{(j&1)*4096 + (j>>1)*512}')
    arrive(a, 4); sync_wait(a, GRP_H, 4)
    ST('in')
    Wv = R.alloc(8); wc = R.alloc(8); wsn = R.alloc(8)
    for n in range(8): a(f'ds_read_b128 {V(IN+4*n,4)}, v{aI} offset:{n*1024}')
    for t in range(2): a(f'ds_read_b128 {V(Wv+4*t,4)}, v{aWr} offset:{t*256}')
    for t in range(2):
        for k in range(4):
            n = t*4+k
            a(LG(9-n))
            a(f'{M16} {V(Dr+4*t,4)}, {V(IN+4*n,4)}, {V(B1+8*k,4)}, {"0" if k==0 else V(Dr+4*t,4)}')
            a(f'{M16} {V(Di+4*t,4)}, {V(IN+4*n,4)}, {V(B1+8*k+4,4)}, {"0" if k==0 else V(Di+4*t,4)}')
    for t in range(2): cmul_pack(a, Dr+4*t, Di+4*t, tw1c+4*t, tw1s+4*t, X+4*t, tmp)
    for t in range(2):
        for u in range(2):
            T = F32T + (u*2+t)*6
            a(f'{M16} {V(Dr+4*u,4)}, {V(T+2,4)}, {V(X+4*t,4)}, {"0" if t==0 else V(Dr+4*u,4)}')
            a(f'{M16} {V(Di+4*u,4)}, {V(T,4)}, {V(X+4*t,4)}, {"0" if t==0 else V(Di+4*u,4)}')
    a('s_waitcnt lgkmcnt(0)')
    a(f's_cmp_eq_u32 s{sP}, 0'); a('s_cbranch_scc1 L_sp2')
    for j in range(8):
        a(f'v_lshlrev_b32 v{wc+j}, 16, v{Wv+j}'); a(f'v_and_b32 v{wsn+j}, 0xffff0000, v{Wv+j}')
    for u in range(2): cmul_pack(a, Dr+4*u, Di+4*u, wc+4*u, wsn+4*u, X+4*u, tmp, conj_out=True)
    a.label('L_sp2r')
    for u in range(2):
        for t in range(2):
            T = F32T + (t*2+u)*6
            a(f'{M16} {V(Dr+4*t,4)}, {V(X+4*u,4)}, {V(T+2,4)}, {"0" if u==0 else V(Dr+4*t,4)}')
            a(f'{M16} {V(Di+4*t,4)}, {V(X+4*u,4)}, {V(T,4)}, {"0" if u==0 else V(Di+4*t,4)}')
    for t in range(2):
        cmul_pack(a, Dr+4*t, Di+4*t, tw2c+4*t, tw2s+4*t, X+4*t, tmp)
        a(f'ds_write_b128 v{aE}, {V(X+4*t,4)} offset:{t*4096}')
    ST('_e0')
    arrive(a, 7); sync_wait(a, GRP_H, 7)
    ST('_e1')
    for n in range(8): a(f'ds_read_b128 {V(IN+4*n,4)}, v{aI} offset:{L_EX-L_IN + n*1024}')
    for t in range(2):
        for k in range(4):
            n = t*4+k; T = F64 + 6*k
            a(LG(7-n))
            a(f'{M16} {V(Dr+4*t,4)}, {V(IN+4*n,4)}, {V(T+2,4)}, {"0" if k==0 else V(Dr+4*t,4)}')
            a(f'{M16} {V(Di+4*t,4)}, {V(IN+4*n,4)}, {V(T,4)}, {"0" if k==0 else V(Di+4*t,4)}')
    a(f's_lshl_b32 s{sT}, s{sW4}, 19'); a(f's_lshl_b32 s{sT+1}, s{sP}, 7'); a(f's_add_u32 s{sT}, s{sT}, s{sT+1}'); a(f's_add_u32 s{sT}, s{sT}, {WS_Y}')
    a(f's_add_u32 s{sT+1}, s{sT}, {8*32768}')
    for t in range(2):
        a(f'v_cvt_pk_bf16_f32 v{X+4*t}, v{Dr+4*t}, v{Dr+4*t+1}'); a(f'v_cvt_pk_bf16_f32 v{X+4*t+1}, v{Dr+4*t+2}, v{Dr+4*t+3}')
        a(f'v_cvt_pk_bf16_f32 v{X+4*t+2}, v{Di+4*t}, v{Di+4*t+1}'); a(f'v_cvt_pk_bf16_f32 v{X+4*t+3}, v{Di+4*t+2}, v{Di+4*t+3}')
        a(f'ds_write_b128 v{aO1 if t==0 else aO2}, {V(X+4*t,4)}')
    a(f'ds_read_b128 {V(IN,4)}, v{aOr}'); a(f'ds_read_b128 {V(IN+4,4)}, v{aOr} offset:1024')
    a(LG(1)); a(f'buffer_store_dwordx4 {V(IN,4)}, v{vY}, {SR(sWS)}, s{sT} offen sc1')
    a('s_waitcnt lgkmcnt(0)'); a(f'buffer_store_dwordx4 {V(IN+4,4)}, v{vY}, {SR(sWS)}, s{sT+1} offen sc1')
    ST('yst')
    a(f'v_add_f32_dpp v{gacc}, v{gacc}, v{gacc} quad_perm:[1,0,3,2] {dp}')
    a(f'v_add_f32_dpp v{gacc}, v{gacc}, v{gacc} quad_perm:[2,3,0,1] {dp}')
    a(f'v_add_f32_dpp v{gacc}, v{gacc}, v{gacc} row_half_mirror {dp}')
    a(f'v_lshrrev_b32 v{t0}, 3, v0'); a(f's_lshl_b32 s{sT}, s{sW4}, 5'); a(f's_add_u32 s{sT}, s{sT}, {L_GP}'); a(f'v_lshl_add_u32 v{t0}, v{t0}, 2, s{sT}')
    a(f'v_cvt_pk_bf16_f32 v{gacc}, v{gacc}, v{gacc}'); a(f'v_and_b32 v{gacc}, 0xffff0000, v{gacc}')
    a(f'v_mul_f32 v{gacc}, {F(-LOG2E)}, v{gacc}'); a(f'v_exp_f32 v{gacc}, v{gacc}'); a(f'v_add_f32 v{gacc}, 1.0, v{gacc}'); a(f'v_rcp_f32 v{gacc}, v{gacc}')
    a(f'v_cvt_pk_bf16_f32 v{gacc}, v{gacc}, v{gacc}'); a(f'v_and_b32 v{gacc}, 0xffff0000, v{gacc}')
    a(f'ds_write_b32 v{t0}, v{gacc}')
    def hook(i):
        if i == opt('hsig', 16):
            a('s_waitcnt vmcnt(0)'); signal_flag(a, 36, 3, WS_FY, sP); ST('fy')
    fin_table(a, hook)
    ST('tab')
    a('s_waitcnt lgkmcnt(0)')
    pull_wo(a, 0)
    SP.update(locals())
    return R.hi

def gen_special(a):
    g = SP
    t0, t1, B1 = [g[k] for k in ('t0','t1','B1')]
    IN, Dr, Di, Wv, tmp, wc, wsn, X, vl15, aWr = [g[k] for k in ('IN','Dr','Di','Wv','tmp','wc','wsn','X','vl15','aWr')]
    a.label('L_sp3'); a.hist = []
    u0, u1 = Wv, Wv+1
    a(f'v_mul_u32_u24 v{u1}, {ZSTRIDE}, v0'); a(f's_mul_i32 s{sT+6}, s{sW4}, {64*ZSTRIDE}'); a(f's_add_u32 s{sT+6}, s{sT+6}, {WS_Z+16384}')
    a(f'buffer_load_dwordx4 {V(IN+16,4)}, v{u1}, {SR(sWS)}, s{sT+6} offen sc1'); a(f'buffer_load_dwordx4 {V(IN+20,4)}, v{u1}, {SR(sWS)}, s{sT+6} offen offset:16 sc1')
    a(f'v_bfe_u32 v{u0}, v0, 4, 1'); a(f'v_lshlrev_b32 v{u0}, 12, v{u0}'); a(f'v_lshl_add_u32 v{u0}, v{vl15}, 4, v{u0}')
    a(f'v_lshrrev_b32 v{u1}, 5, v0'); a(f'v_lshl_add_u32 v{u0}, v{u1}, 9, v{u0}')
    a(f's_lshl_b32 s{sT+6}, s{sW4}, 10'); a(f's_add_u32 s{sT+6}, s{sT+6}, {L_EX}'); a(f'v_add_u32 v{u0}, s{sT+6}, v{u0}')
    a('s_waitcnt vmcnt(0)')
    a(f'ds_write_b128 v{u0}, {V(IN+16,4)}'); a(f'ds_write_b128 v{u0}, {V(IN+20,4)} offset:256')
    a('s_branch L_sp3r')
    a.label('L_sp2'); a.hist = []
    Bv = IN; bc = IN+8; bs = IN+16; Nr = B1; Ni = B1+8; Yr = B1+16; Yi = B1+24; t2 = IN+24
    for t in range(2): a(f'ds_read_b128 {V(Bv+4*t,4)}, v{aWr} offset:{L_EX-(L_IN+8192)+t*256}')
    a(f'v_lshrrev_b32 v{t0}, 4, v0'); a(f's_lshl_b32 s{sT}, s{sW4}, 4'); a(f'v_lshl_add_u32 v{t0}, v{t0}, 8, v{vl15}'); a(f'v_add_u32 v{t0}, s{sT}, v{t0}')
    a(f'v_sub_u32 v{t1}, {2047-64*19}, v{t0}'); a(f'v_lshlrev_b32 v{t1}, 2, v{t1}'); a(f'v_add_u32 v{t1}, {L_IN}, v{t1}')
    a(f'v_subrev_u32 v{t0}, 1, v{t0}'); a(f'v_and_b32 v{t2}, 2047, v{t0}')
    a(f'v_lshlrev_b32 v{t0}, 2, v{t0}'); a(f'v_add_u32 v{t0}, {L_IN}, v{t0}'); a(f'v_lshlrev_b32 v{t2}, 2, v{t2}'); a(f'v_add_u32 v{t2}, {L_IN}, v{t2}')
    a('s_waitcnt lgkmcnt(0)')
    arrive(a, 5); sync_read(a, GRP_H)
    for j in range(8):
        a(f'v_lshlrev_b32 v{wc+j}, 16, v{Wv+j}'); a(f'v_and_b32 v{wsn+j}, 0xffff0000, v{Wv+j}')
    sync_check(a, GRP_H, 5)
    for j in range(8):
        o = 16*(j//4) + j%4
        a(f'ds_write2st64_b32 v{t2 if j==0 else t0}, v{Dr+j}, v{Di+j} offset0:{o} offset1:{o+32}')
    arrive(a, 6); sync_read(a, GRP_H)
    for j in range(8):
        a(f'v_lshlrev_b32 v{bc+j}, 16, v{Bv+j}'); a(f'v_and_b32 v{bs+j}, 0xffff0000, v{Bv+j}')
    sync_check(a, GRP_H, 6)
    for j in range(0, 8, 2):
        o = 19 - 16*(j//4) - j%4
        a(f'ds_read2st64_b32 {V(Nr+j,2)}, v{t1} offset0:{o} offset1:{o-1}'); a(f'ds_read2st64_b32 {V(Ni+j,2)}, v{t1} offset0:{o+32} offset1:{o+31}')
    ng = 'neg_lo:[1,0,0] neg_hi:[1,0,0]'
    for j in range(0, 8, 2):
        a(f'v_pk_mul_f32 {V(Yr+j,2)}, {V(Dr+j,2)}, {V(wc+j,2)}'); a(f'v_pk_mul_f32 {V(Yi+j,2)}, {V(Dr+j,2)}, {V(wsn+j,2)}')
    for j in range(0, 8, 2):
        a(f'v_pk_fma_f32 {V(Yr+j,2)}, {V(Di+j,2)}, {V(wsn+j,2)}, {V(Yr+j,2)} {ng}'); a(f'v_pk_fma_f32 {V(Yi+j,2)}, {V(Di+j,2)}, {V(wc+j,2)}, {V(Yi+j,2)}')
    a('s_waitcnt lgkmcnt(0)')
    for j in range(0, 8, 2):
        a(f'v_pk_fma_f32 {V(Yr+j,2)}, {V(Nr+j,2)}, {V(bc+j,2)}, {V(Yr+j,2)}'); a(f'v_pk_fma_f32 {V(Yi+j,2)}, {V(Nr+j,2)}, {V(bs+j,2)}, {V(Yi+j,2)}')
    for j in range(0, 8, 2):
        a(f'v_pk_fma_f32 {V(Yr+j,2)}, {V(Ni+j,2)}, {V(bs+j,2)}, {V(Yr+j,2)}'); a(f'v_pk_fma_f32 {V(Yi+j,2)}, {V(Ni+j,2)}, {V(bc+j,2)}, {V(Yi+j,2)} {ng}')
    for u in range(2):
        a(f'v_cvt_pk_bf16_f32 v{X+4*u}, v{Yr+4*u}, v{Yr+4*u+1}'); a(f'v_cvt_pk_bf16_f32 v{X+4*u+1}, v{Yr+4*u+2}, v{Yr+4*u+3}')
        a(f'v_cvt_pk_bf16_f32 v{X+4*u+2}, -v{Yi+4*u}, -v{Yi+4*u+1}'); a(f'v_cvt_pk_bf16_f32 v{X+4*u+3}, -v{Yi+4*u+2}, -v{Yi+4*u+3}')
    a('s_nop 1'); a('s_branch L_sp2r')

def gen_G0(a, ST):
    R = Regs(186)
    vd = R.alloc(6); t0, t1 = R.alloc(), R.alloc()
    srdc(a, sWQ); ids_gemm(a)
    dma_setup(a, vd, t0, t1)
    B0 = dma_group(0, vd)
    for l in B0[0][:-1]: a(l)
    a('s_waitcnt lgkmcnt(0)'); ST('karg')
    a(f's_load_dword s{sTAG}, s[{sWS}:{sWS+1}], {WS_GEN}')
    a(B0[0][-1])
    for b in B0[1:]: emit(a, b)
    return R, vd, t0, t1

def gen_G(a, ST, G):
    R, vd, t0, t1 = G
    bf = 10; NB = 3; BS = 28; tmp = 94; misc = 110; accK = 138; accV = 154; accQ = 170
    late_common(a)
    n_iss = 8
    rest = dma_group(1, vd)
    while rest and n_iss < opt('w0', 10): emit(a, rest.pop(0)); n_iss += 1
    aA = R.alloc(4); aB = R.alloc(2)
    a(f'v_bfe_u32 v{t1}, v0, 1, 3'); a(f'v_lshrrev_b32 v{t0}, 4, v0'); a(f'v_xor_b32 v{t1}, v{t1}, v{t0}'); a(f'v_lshlrev_b32 v{t1}, 4, v{t1}')
    a(f'v_and_b32 v{aA}, 15, v0'); a(f'v_lshl_add_u32 v{aA}, v{aA}, 7, v{t1}')
    a(f'v_xor_b32 v{aA+1}, 64, v{aA}'); a(f'v_add_u32 v{aA+2}, 65536, v{aA}'); a(f'v_add_u32 v{aA+3}, 65536, v{aA+1}')
    a(f'v_lshrrev_b32 v{t0}, 5, v0'); a(f'v_lshlrev_b32 v{aB}, 13, v{t0}')
    a(f'v_bfe_u32 v{t1}, v0, 4, 1'); a(f'v_lshl_add_u32 v{aB}, v{t1}, 10, v{aB}')
    a(f'v_bfe_u32 v{t1}, v0, 2, 2'); a(f'v_lshl_add_u32 v{aB}, v{t1}, 7, v{aB}')
    a(f'v_bfe_u32 v{t1}, v0, 3, 2'); a(f'v_xor_b32 v{t1}, s{sW4}, v{t1}'); a(f'v_lshl_add_u32 v{aB}, v{t1}, 5, v{aB}')
    a(f'v_and_b32 v{t1}, 3, v0'); a(f'v_lshl_add_u32 v{aB}, v{t1}, 3, v{aB}')
    a(f'v_add_u32 v{aB+1}, 65536, v{aB}')
    a(f's_mov_b32 s{sL2E}, {F(LOG2E)}'); a(f's_mov_b32 s{sL2E+1}, {F(LOG2E)}')
    aK, aR, vAt, vPq, vTo, vwo = R.alloc(), R.alloc(), R.alloc(), R.alloc(), R.alloc(), R.alloc(2)
    a(f's_mul_i32 s{sT}, s{sW4}, 1088'); a(f's_add_u32 s{sT+1}, s{sT}, {L_KVR}')
    a(f'v_lshrrev_b32 v{t0}, 4, v0'); a(f'v_mul_u32_u24 v{t0}, 272, v{t0}'); a(f'v_and_b32 v{t1}, 0xf0, v{vL16}'); a(f'v_add3_u32 v{aK}, v{t0}, v{t1}, s{sT+1}')
    a(f'v_lshlrev_b32 v{vAt}, 2, v0'); a(f'v_add_u32 v{aR}, s{sT+1}, v{vAt}')
    a(f'v_bfe_u32 v{t0}, v0, 4, 1'); a(f'v_lshl_add_u32 v{vPq}, v{t0}, 9, v{t1}'); a(f'v_lshrrev_b32 v{t0}, 5, v0'); a(f'v_lshl_add_u32 v{vPq}, v{t0}, 8, v{vPq}')
    a(f'v_lshrrev_b32 v{t0}, 4, v0'); a(f'v_lshlrev_b32 v{vwo}, 5, v{t0}'); a(f'v_xor_b32 v{t1}, v{t1}, v{vwo}')
    a(f'v_lshl_add_u32 v{vwo}, v{t0}, 10, v{t1}'); a(f'v_xor_b32 v{vwo+1}, 128, v{vwo}'); a(f'v_add_u32 v{vwo+1}, 3072, v{vwo+1}')
    sA0, sFK, sPq, sWu, sWo, sTo = sT, sCNT, sT+2, sT+3, sT+4, sT+5
    a(f's_mul_i32 s{sT+1}, s{sHG}, 4352'); a(f's_add_u32 s{sA0}, s{sT}, s{sT+1}'); a(f's_add_u32 s{sA0}, s{sA0}, {WS_KV}')
    a(f's_lshl_b32 s{sPq}, s{sROW0}, 10'); a(f's_lshl_b32 s{sT+1}, s{sHG}, 12'); a(f's_add_u32 s{sPq}, s{sPq}, s{sT+1}')
    a(f's_lshl_b32 s{sT+1}, s{sW4}, 10'); a(f's_add_u32 s{sPq}, s{sPq}, s{sT+1}'); a(f's_add_u32 s{sPq}, s{sPq}, {WS_PQ}')
    a(f's_lshl_b32 s{sT+1}, s{sHL}, 8'); a(f's_add_u32 s{sWo}, s{sLB}, s{sT+1}')
    a(f's_lshr_b32 s{sTo}, s{sIDX}, 2')
    a(f's_lshl_b32 s{sFK}, s{sHG}, 5'); a(f's_lshr_b32 s{sT+1}, s{sROW0}, 6'); a(f's_add_u32 s{sFK}, s{sFK}, s{sT+1}')
    ones = misc+16
    for j in range(4): a(f'v_mov_b32 v{ones+j}, 0x3f803f80')
    a('s_waitcnt lgkmcnt(0)')
    a(f's_add_u32 s{sTAG}, s{sTAG}, {TAGC}')
    ST('iss')
    def buf(c, k): return bf + ((c*2+k) % NB)*BS
    def rdlist(c, k):
        slot = c % 3; b = buf(c, k); L = []
        def tr(dst, ad):
            q = ad // 65536; L.append(f'ds_read_b64_tr_b16 {V(dst,2)}, v{aB+q} offset:{ad-q*65536}')
        def xr(t):
            ad = slot*SLOT + t*BLK + oX; q = ad // 65536
            L.append(f'ds_read_b128 {V(b+4*t,4)}, v{aA+2*q+k} offset:{ad-q*65536}')
        def wr(i):
            for jj in range(2): tr(b+16+4*i+2*jj, slot*SLOT + 2*k*BLK + (oK, oV, oQ)[i] + jj*512)
        wr(0); xr(0); xr(1); wr(1); xr(2); xr(3); wr(2)
        if opt('nord', 0) and 0 < c < 7: L = ['s_nop 0']*10
        return L
    def mm(c, k, i, t):
        if opt('nomm', 0) and 0 < c < 7: return
        b = buf(c, k); acc = (accK, accV, accQ)[i] + 4*t; C = "0" if (c == 0 and k == 0) else V(acc,4)
        if i < 2: a(f'{M16} {V(acc,4)}, {V(b+4*t,4)}, {V(b+16+4*i,4)}, {C}')
        else: a(f'{M16} {V(acc,4)}, {V(b+24,4)}, {V(b+4*t,4)}, {C}')
    nwo = [0]
    def wo_dma(thr=None):
        i = nwo[0]
        if i >= 32: return
        u, ii = WO_ORDER[i//2], i & 1
        if ii == 0:
            a(f's_add_u32 m0, s{sLW}, {wo_unit(u)}')
            a(f's_add_u32 s{sWu}, s{sTo}, {u & 7}'); a(f's_and_b32 s{sWu}, s{sWu}, 7')
            if u >= 8: a(f's_or_b32 s{sWu}, s{sWu}, 8')
            a(f's_lshl_b32 s{sWu}, s{sWu}, 15'); a(f's_add_u32 s{sWu}, s{sWu}, s{sWo}')
        if thr is not None: a(f's_waitcnt vmcnt({thr})')
        a(f'buffer_load_dwordx4 v{vwo+ii}, {SR(sWO)}, s{sWu} offen' + (' offset:1024' if ii else '') + ' lds')
        nwo[0] += 1
    order = [(i, t) for i in range(3) for t in range(4)]
    LAG = 6
    for c in range(8):
        ST(f'_ga{c}')
        a(f's_waitcnt vmcnt({n_iss-8 if c == 0 else (8 if c < 7 else 0)}) lgkmcnt(0)')
        ST(f'_gb{c}')
        a('s_barrier')
        ST(f'_gc{c}'); ST(f'_T{c}')
        if c in (0, 1, 2, 4, 7): ST(f'B{c}')
        D = dma_group(c+2, vd) if c+2 < 8 else []
        infl = 8
        if c == 0: D = rest + D; infl = n_iss-8
        nd = [0]
        def dma():
            if nd[0] < len(D):
                emit(a, D[nd[0]], WIN-1 if nd[0] >= WIN-infl else None); nd[0] += 1
        last = c == 7
        for l in rdlist(c, 0): a(l)
        r1 = rdlist(c, 1)
        for l in r1[:5]: a(l)
        if last:
            for _ in range(opt('wa', 2)): wo_dma()
        if c > 0:
            for n, (i, t) in enumerate(order[12-LAG:]):
                mm(c-1, 1, i, t)
                if n % 3 == 0: dma()
        else:
            for _ in range(4): dma()
        a(LG(5))
        for n, (i, t) in enumerate(order[:8] if last else order):
            mm(c, 0, i, t)
            if n < 5: a(r1[5+n])
            elif n % 2 == 1: dma()
        a('s_waitcnt lgkmcnt(0)')
        for n, (i, t) in enumerate(order[:8] if last else order[:12-LAG]):
            mm(c, 1, i, t)
            if n % 3 == 0: dma()
        while nd[0] < len(D): dma()
    arrive(a, 9)
    sync_read(a, GRP_H)
    for k in range(2):
        for t in range(4): mm(7, k, 2, t)
    pk = misc; vv = misc+8; Dk = misc+20; Dz = misc+24
    rr = Rec(); phi_pack(rr, accK, 16, pk, tmp)
    WB = opt('wb', 2)
    for n, l in enumerate(rr.l):
        a(l)
        if WB and n % (len(rr.l)//WB) == 4: wo_dma()
    for j in range(8): a(f'v_cvt_pk_bf16_f32 v{vv+j}, v{accV+2*j}, v{accV+2*j+1}')
    a(f'{M16} {V(Dk,4)}, {V(pk,4)}, {V(vv,4)}, 0'); a(f'{M16} {V(Dz,4)}, {V(pk,4)}, {V(ones,4)}, 0')
    a(f'{M16} {V(Dk,4)}, {V(pk+4,4)}, {V(vv+4,4)}, {V(Dk,4)}'); a(f'{M16} {V(Dz,4)}, {V(pk+4,4)}, {V(ones,4)}, {V(Dz,4)}')
    ST('kvm')
    for j in range(0, 16, 2): a(f'v_pk_mul_f32 {V(tmp+j,2)}, {V(accQ+j,2)}, s[{sL2E}:{sL2E+1}]')
    a(f'ds_write_b128 v{aK}, {V(Dk,4)}')
    a('s_mov_b32 exec_lo, 0x00010001'); a('s_mov_b32 exec_hi, 0x00010001')
    a(f'ds_write_b128 v{aK}, {V(Dz,4)} offset:256')
    a('s_mov_b64 exec, -1')
    Pp = accV
    a(f'ds_read2st64_b32 {V(Pp,2)}, v{aR} offset0:0 offset1:1'); a(f'ds_read2st64_b32 {V(Pp+2,2)}, v{aR} offset0:2 offset1:3'); a(f'ds_read_b32 v{Pp+4}, v{aR} offset:1024')
    for j in range(6):
        a(f'v_exp_f32_e64 v{tmp+j}, v{tmp+j} clamp'); a(f'v_max_f32 v{accQ+j}, {F(1e-6)}, v{accQ+j}')
    sync_check(a, GRP_H, 3)
    for rnd in range(4): a(f'buffer_atomic_add_f32 v{Pp+rnd}, v{vAt}, {SR(sWS)}, s{sA0} offen' + (f' offset:{rnd*256}' if rnd else ''))
    a('s_mov_b64 exec, 0xffff'); a(f'buffer_atomic_add_f32 v{Pp+4}, v{vAt}, {SR(sWS)}, s{sA0} offen offset:1024'); a('s_mov_b64 exec, -1')
    arrive(a, 11)
    ST('atom')
    for j in range(6, 16):
        a(f'v_exp_f32_e64 v{tmp+j}, v{tmp+j} clamp'); a(f'v_max_f32 v{accQ+j}, {F(1e-6)}, v{accQ+j}')
    for j in range(0, 16, 2): a(f'v_pk_add_f32 {V(tmp+j,2)}, {V(tmp+j,2)}, {V(accQ+j,2)}')
    for j in range(0, 16, 2): a(f'v_cvt_pk_bf16_f32 v{accK+j//2}, v{tmp+j}, v{tmp+j+1}')
    for rt in range(2):
        a(f'v_permlane32_swap_b32 v{accK+4*rt}, v{accK+4*rt+2}'); a(f'v_permlane32_swap_b32 v{accK+4*rt+1}, v{accK+4*rt+3}')
    a(f'buffer_store_dwordx4 {V(accK,4)}, v{vPq}, {SR(sWS)}, s{sPq} offen sc1')
    a(f's_add_u32 s{sPq}, s{sPq}, 32768')
    a(f'buffer_store_dwordx4 {V(accK+4,4)}, v{vPq}, {SR(sWS)}, s{sPq} offen sc1')
    ST('qst')
    WW = opt('ww', 10); NS = opt('ns', 8)
    def hook(i):
        if nwo[0] == 22 and not hook.synced:
            sync_wait(a, GRP_H, 4); sync_wait(a, GRP_G, 11); hook.synced = True
        if i == NS:
            a(f's_waitcnt vmcnt({NS})'); signal_flag(a, 32, 3, WS_FK, sFK); ST('fk')
        wo_dma(WW-1 if i >= max(NS, WW) else None)
    hook.synced = False
    assert R.hi <= YL, R.hi
    fin_table(a, hook)
    ST('tab')
    a('s_waitcnt vmcnt(0) lgkmcnt(0)')
    pull_wo(a, 1)
    return R.hi

def poll32(a, vF, soff, dst, blocking, Lfail=None):
    if blocking:
        Lp = a.newlabel('p'); Lq = a.newlabel('q')
        a(f's_mov_b32 s{sCNT}, 0x20000')
        a.label(Lp)
        a(f'buffer_load_dword v{dst}, v{vF}, {SR(sWS)}, s{soff} offen sc1')
        a(f's_sub_u32 s{sCNT}, s{sCNT}, 1'); a(f's_cbranch_scc1 {Lq}')
        a('s_waitcnt vmcnt(0)')
        a(f'v_cmp_ne_u32 vcc, s{sTAG}, v{dst}'); a('s_nop 4'); a(f's_cbranch_vccnz {Lp}')
        a.label(Lq)

def gen_FIN(a, ST):
    t0, t1, vomg, aOw, aYw, aO, aE, aF, vOut, vKV, vF, vP = [FT+i for i in range(12)]
    vg = FT+12; aY = FT+14; c = FT+16; aO2 = FT+18
    a(f'v_and_b32 v{t0}, 31, v0'); a(f'v_lshlrev_b32 v{t1}, 2, v{t0}'); a(f'v_add_u32 v{vomg}, {L_GP}, v{t1}')
    a(f'ds_read_b32 v{vomg}, v{vomg}')
    a(f'v_and_b32 v{vF}, 60, v{t1}'); a(f'v_add_u32 v{vg}, {L_GP}, v{vF}'); a(f'ds_read2_b32 {V(vg,2)}, v{vg} offset0:0 offset1:16')
    a(f'v_and_b32 v{t1}, 16, v0'); a(f'v_lshl_add_u32 v{vF}, v{t1}, 4, v{vF}')
    a(f'v_lshrrev_b32 v{t1}, 5, v0'); a(f'v_mul_u32_u24 v{aE}, 272, v{t1}'); a(f'v_min_u32 v{vKV}, 16, v{t0}'); a(f'v_lshl_add_u32 v{vKV}, v{vKV}, 4, v{aE}')
    a(f's_lshl_b32 s{sT}, s{sWV}, 12'); a(f'v_add_u32 v{aOw}, s{sT}, v{vL16}')
    a(f'v_lshlrev_b32 v{t1}, 6, v{t1}'); a(f'v_xor_b32 v{aYw}, v{t1}, v{aOw}')
    a(f's_lshr_b32 s{sT+1}, s{sIDX}, 2'); a(f's_lshl_b32 s{sT}, s{sW4}, 1'); a(f's_sub_u32 s{sT}, s{sT}, s{sT+1}')
    for bb in range(2):
        if bb: a(f's_add_u32 s{sT}, s{sT}, 1')
        a(f's_and_b32 s{sT+1}, s{sT}, 7'); a(f's_lshl_b32 s{sT+2}, s{sKH}, 3'); a(f's_or_b32 s{sT+1}, s{sT+1}, s{sT+2}'); a(f's_lshl_b32 s{sT+1}, s{sT+1}, 11')
        a(f'v_add_u32 v{aO2+bb}, s{sT+1}, v{vL16}')
    a(f'v_and_b32 v{t0}, 15, v0'); a(f'v_lshrrev_b32 v{t1}, 4, v0')
    a(f'v_mul_u32_u24 v{aE}, {RS}, v{t0}'); a(f'v_lshl_add_u32 v{aE}, v{t1}, 4, v{aE}')
    a(f's_mul_i32 s{sT}, s{sKH}, {32*RS}'); a(f's_lshl_b32 s{sT+1}, s{sW4}, 7'); a(f's_add_u32 s{sT}, s{sT}, s{sT+1}'); a(f's_add_u32 s{sT}, s{sT}, {L_EP}'); a(f'v_add_u32 v{aE}, s{sT}, v{aE}')
    a(f's_lshl_b32 s{sT}, s{sKH}, 14')
    a(f'v_lshlrev_b32 v{aO}, 4, v{t0}'); a(f'v_lshl_add_u32 v{aO}, v{t1}, 9, v{aO}'); a(f'v_add_u32 v{aO}, s{sT}, v{aO}')
    a(f'v_lshl_add_u32 v{aY}, v{t1}, 9, s{sT}')
    a(f'v_bfe_u32 v{aF}, v0, 4, 1'); a(f'v_lshl_add_u32 v{aY}, v{aF}, 6, v{aY}')
    a(f'v_and_b32 v{aF}, 3, v0'); a(f'v_lshl_add_u32 v{aY}, v{aF}, 4, v{aY}')
    a(f'v_bfe_u32 v{aF}, v0, 3, 1'); a(f'v_lshl_add_u32 v{aY}, v{aF}, 7, v{aY}')
    a(f'v_bfe_u32 v{aF}, v0, 2, 1'); a(f'v_lshl_add_u32 v{aY}, v{aF}, 3, v{aY}')
    a(f'v_xor_b32 v{aY+1}, 64, v{aY}')
    a(f's_lshl_b32 s{sT}, s{sWV}, 2'); a(f'v_add_u32 v{t1}, s{sT}, v{t1}')
    a(f'v_mul_u32_u24 v{aF}, {RS}, v{t1}'); a(f'v_lshl_add_u32 v{aF}, v{t0}, 5, v{aF}'); a(f'v_add_u32 v{aF}, {L_EP}, v{aF}')
    a(f'v_lshlrev_b32 v{t1}, 10, v{t1}'); a(f'v_lshl_add_u32 v{vOut}, v{t0}, 4, v{t1}')
    a(f's_lshl_b32 s{sT}, s{sAT}, 15'); a(f's_lshl_b32 s{sT+1}, s{sWV}, 12'); a(f's_add_u32 s{sT+1}, s{sT}, s{sT+1}')
    a(f's_add_u32 s{sT+2}, s{sT+1}, {WS_PQ}'); a(f's_add_u32 s{sT+1}, s{sT+1}, {WS_Y}')
    a(f's_mul_i32 s{sT+3}, s{sWV}, 4352'); a(f's_add_u32 s{sT+3}, s{sT+3}, {WS_KV}')
    a(f's_lshl_b32 s{sT+4}, s{sHL}, 8'); a(f's_add_u32 s{sT+4}, s{sT+4}, s{sT}')
    a(f's_lshl_b32 s{sT+5}, s{sXCD}, 13'); a(f's_lshl_b32 s{sT+6}, s{sWV}, 9'); a(f's_add_u32 s{sT+5}, s{sT+5}, s{sT+6}')
    a(f's_add_u32 s{sT+6}, s{sT+5}, {WS_FY}'); a(f's_add_u32 s{sT+5}, s{sT+5}, {WS_FK}')
    ST('rdy')
    poll32(a, vF, sT+5, vP, True)
    ST('pk')
    for j in range(4):
        a('s_mov_b32 exec_lo, 0x0011ffff'); a('s_mov_b32 exec_hi, 0x0011ffff')
        for q in range(2): a(f'buffer_load_dwordx4 {V(KVF+8*j+4*q,4)}, v{vKV}, {SR(sWS)}, s{sT+3} offen offset:{j*1088+q*544} sc1')
        a('s_mov_b64 exec, -1')
        a(f'buffer_load_dwordx4 {V(PQ+4*j,4)}, v{vL16}, {SR(sWS)}, s{sT+2} offen offset:{j*1024} sc1')
    a(f'buffer_load_dword v{vP}, v{vF}, {SR(sWS)}, s{sT+6} offen sc1')
    a('s_waitcnt lgkmcnt(0)')
    a('s_barrier')
    a(f'v_mul_f32 v{vg}, {F(2.0**-19)}, v{vg}'); a(f'v_mul_f32 v{vg+1}, {F(2.0**-19)}, v{vg+1}')
    a(f'v_sub_f32 v{vomg}, 1.0, v{vomg}'); a(f'v_cvt_pk_bf16_f32 v{vomg}, v{vomg}, v{vomg}'); a(f'v_and_b32 v{vomg}, 0xffff0000, v{vomg}')
    def yloads():
        for j in range(4): a(f'buffer_load_dwordx4 {V(YL+4*j,4)}, v{vL16}, {SR(sWS)}, s{sT+1} offen offset:{j*1024} sc1')
    for j in range(4):
        D = ACA if j % 2 == 0 else ACB
        a(f's_waitcnt vmcnt({10-3*j})')
        for q in range(4): a(f'v_cvt_pk_bf16_f32 v{KVF+8*j+q}, v{KVF+8*j+2*q}, v{KVF+8*j+2*q+1}')
        a(f'{M32} {V(D,16)}, {V(KVF+8*j,4)}, {V(PQ+4*j,4)}, 0')
        if j > 0: fin_o(a, j-1, t0, c, vomg, aO2)
    fin_o(a, 3, t0, c, vomg, aO2)
    a('s_waitcnt vmcnt(0)')
    a(f'v_cmp_ne_u32 s[{sSC}:{sSC+1}], s{sTAG}, v{vP}')
    a('s_waitcnt lgkmcnt(0)'); a('s_barrier')
    ST('J3')
    Ll = a.newlabel('yl')
    a(f's_cmp_lg_u64 s[{sSC}:{sSC+1}], 0'); a(f's_cbranch_scc1 {Ll}')
    yloads()
    a.label(Ll)
    BF = KVF; PF = 3
    def part(rd, nrd, A, acc):
        for n in range(PF): rd(n)
        for n in range(8):
            b = BF + (n % 4)*8
            left = min(PF-1, 7-n)
            a(f's_waitcnt lgkmcnt({nrd*left})' if not (STAMP and n == 0) else 's_waitcnt lgkmcnt(0)')
            for i, (cu, su) in enumerate(((0,0),(0,1),(1,0),(1,1))):
                d = acc + 8*cu + 4*su
                a(f'{M16} {V(d,4)}, {V(A+8*n+4*cu,4)}, {V(b+4*su,4)}, {"0" if n==0 else V(d,4)}')
                if i == 0 and n+PF < 8: rd(n+PF)
    def rdo(n):
        for su in range(2): a(f'ds_read_b128 {V(BF+(n%4)*8+4*su,4)}, v{aO} offset:{L_O+n*2048+su*256}')
    def rdy(n):
        for su in range(2):
            for jj in range(2): a(f'ds_read_b64_tr_b16 {V(BF+(n%4)*8+4*su+2*jj,2)}, v{aY+su} offset:{L_Y+(16*n+2*jj)*128}')
    part(rdo, 2, WF, ACB)
    ST('bp')
    Lo = a.newlabel('yo')
    a(f's_cmp_eq_u64 s[{sSC}:{sSC+1}], 0'); a(f's_cbranch_scc1 {Lo}')
    poll32(a, vF, sT+6, vP, True)
    yloads()
    a.label(Lo)
    for j in range(4):
        a(f's_waitcnt vmcnt({3-j})'); a(f'ds_write_b128 v{aYw}, {V(YL+4*j,4)} offset:{L_Y+j*1024}')
    a('s_waitcnt lgkmcnt(0)'); a('s_barrier')
    ST('J3b')
    part(rdy, 4, TF, ACA)
    Lu = a.newlabel('u')
    a(f's_or_b32 s{sT}, s{sP}, s{sWV}'); a(f's_cbranch_scc1 {Lu}')
    a(f'v_mov_b32 v{t0}, s{sTAG}'); a(f'v_mov_b32 v{t1}, 0'); a(f's_mov_b32 s{sT}, {WS_GEN}'); a('s_mov_b64 exec, 1')
    a(f'buffer_store_dword v{t0}, v{t1}, {SR(sWS)}, s{sT} offen sc1'); a('s_mov_b64 exec, -1')
    a.label(Lu); a.fence(6)
    ST('_mm')
    for cu in range(2):
        for su in range(2):
            d = 8*cu + 4*su
            if opt('epi', 1) == 0:
                for r in (0, 2): a(f'v_pk_fma_f32 {V(ACB+d+r,2)}, {V(ACA+d+r,2)}, {V(vg,2)}, {V(ACB+d+r,2)} op_sel:[0,{su},0] op_sel_hi:[1,{su},1]')
                a('s_nop 3')
            else:
                for r in range(4): a(f'v_fmac_f32 v{ACB+d+r}, v{vg+su}, v{ACA+d+r}')
            a(f'ds_write_b128 v{aE}, {V(ACB+d,4)} offset:{su*16*RS+cu*64}')
    a('s_waitcnt lgkmcnt(0)'); a('s_barrier')
    ST('_j4')
    for kh in range(2):
        for q in range(2): a(f'ds_read_b128 {V(ACA+8*kh+4*q,4)}, v{aF} offset:{kh*32*RS+q*16}')
    a('s_waitcnt lgkmcnt(0)')
    for q in range(0, 8, 2): a(f'v_pk_add_f32 {V(ACA+q,2)}, {V(ACA+q,2)}, {V(ACA+8+q,2)}')
    for q in range(4): a(f'v_cvt_pk_bf16_f32 v{ACB+q}, v{ACA+2*q}, v{ACA+2*q+1}')
    a(f'buffer_store_dwordx4 {V(ACB,4)}, v{vOut}, {SR(sOUT)}, s{sT+4} offen')
    ST('end')
    stamp_flush(a, len(ST.names))

def fin_o(a, j, t0, c, vomg, aOw):
    D = ACA if j % 2 == 0 else ACB
    a(f'v_add_f32 v{t0}, {F(1e-6)}, v{D+8}'); a(f'v_rcp_f32 v{t0}, v{t0}'); a(f'v_mul_f32 v{c}, v{t0}, v{vomg}'); a(f'v_mul_f32 v{c+1}, v{t0}, v{vomg}')
    for q in range(0, 8, 2): a(f'v_pk_mul_f32 {V(D+q,2)}, {V(D+q,2)}, {V(c,2)}')
    for q in range(4): a(f'v_cvt_pk_bf16_f32 v{KVF+8*j+4+q}, v{D+2*q}, v{D+2*q+1}')
    a(f'ds_write_b128 v{aOw+j//2}, {V(KVF+8*j+4,4)} offset:{L_O+(j&1)*1024}')

if __name__ == '__main__':
    a = build()
    out = '; @launch grid=(256,1,1) block=(512,1,1) lds=163840\n.amdgcn_target "amdgcn-amd-amdhsa--gfx950"\n.text\n'
    out += '.p2align 12\n' + kernel_header(NAME) + a.text()
    out += f'.p2align 8\n.fill (33792 - (. - {NAME})) / 4, 4, 0xbf800000\n'
    out += '.section .rodata,"a"\n.p2align 6\n' + kernel_desc(NAME, 256, 102)
    open(sys.argv[1], 'w').write(out)
```

```python
import sys, math, os
sys.path.insert(0,'lib')
from asmgen import *
NAME='gated_mix__spectral_gfnet__linear_attn_block__prompt_kernel'
STAMP = int(os.environ.get('STAMP','0'))
STSEL = [x for x in os.environ.get('STSEL','').split(',') if x]
PROBE = os.environ.get('PROBE','')
OPT = dict(x.split('=') for x in os.environ.get('OPT','').split(',') if x)
def opt(k, d): return int(OPT.get(k, d))

WS_Z=0; ZSTRIDE=16640; WS_PQ=0x480000; WS_Y=0x680000; WS_KV=0x880000; WS_F1=0x890000; WS_FY=0x8a0000; WS_FK=0x8b0000; WS_GEN=16512; WS_ST=0x8c0000; WS_SIZE=0x900000
SLOT=32768; BLK=8192; oQ=0; oV=2048; oK=4096; oX=6144
SC=3*SLOT; PS=1088
L_SY=SC; L_GP=SC+256; L_GW=SC+768; L_A=L_GW+2048; L_B=L_A+16384; L_XT=L_B+4*PS*4; L_END=L_XT+3*8192
L_P1X=L_A; L_WRAW=L_A+8192; L_IN=L_A; L_OT=L_A; L_PL=L_B; L_EX=L_B; L_KVR=L_B+8192
assert L_END <= 163840 and L_KVR+8704 <= L_XT and L_A % 256 == 0 and L_XT % 256 == 0, L_END
L_Y=0; L_O=32768; L_EP=65536; RS=528
LOG2E=1.4426950408889634
TAGC=0x9E3779B9
sX,sWR,sWI,sWQ,sWO,sGW,sOUT,sWS = 8,12,16,20,24,28,32,36
sXCD,sIDX,sP,sHG,sROW0,sROT,sWV,sW4,sHH,sHL = 40,41,42,43,44,45,46,47,48,49
sT=50; sSC=58; sL2E=60; sLW=62; sTAG=63; sAT=64; sKH=65; sCNT=66; sLB=67; sSX=6; sSW=7; sU=3
M16 = 'v_mfma_f32_16x16x32_bf16'; M32 = 'v_mfma_f32_32x32x16_bf16'
def SR(d): return f's[{d}:{d+3}]'

class Stamps:
    def __init__(self, a): self.a = a; self.names = []
    def __call__(self, name):
        if PROBE:
            if name == 'start' and PROBE != 'start': self.a('s_mov_b64 s[100:101], 0')
            if name == PROBE: self.a('s_memrealtime s[100:101]'); self.a('s_waitcnt lgkmcnt(0)')
            if name == 'end':
                a = self.a
                a('s_cmp_eq_u64 s[100:101], 0'); a('s_cbranch_scc1 L_done')
                a('s_add_u32 s100, s100, 3000')
                a.label('L_spin'); a('s_sleep 2'); a('s_memrealtime s[98:99]'); a('s_waitcnt lgkmcnt(0)')
                a('s_sub_u32 s98, s98, s100'); a('s_cmp_lt_i32 s98, 0'); a('s_cbranch_scc1 L_spin')
            return
        if not STAMP: return
        if STSEL and name not in STSEL: return
        if not STSEL and name.startswith('_'): return
        n = len(self.names); assert n < 16, name
        self.a(('s_memtime' if name.startswith('_T') else 's_memrealtime') + f' s[{68+2*n}:{69+2*n}]'); self.names.append(name)
def stamp_flush(a, n):
    if not STAMP: return
    L = a.newlabel('stf')
    a('s_waitcnt lgkmcnt(0)')
    a(f's_cmp_lg_u32 s{sW4}, {opt("stw",0)}'); a(f's_cbranch_scc1 {L}')
    a(f's_lshl_b32 s{sT}, s2, 8'); a(f's_add_u32 s{sT}, s{sT}, {WS_ST}')
    a(f's_lshr_b32 s{sT+1}, s{sWV}, 2'); a(f's_lshl_b32 s{sT+1}, s{sT+1}, 7'); a(f's_add_u32 s{sT}, s{sT}, s{sT+1}')
    a('s_mov_b64 exec, 1'); a('v_mov_b32 v4, 0')
    for i in range(n):
        a(f'v_mov_b32 v2, s{68+2*i}'); a(f'v_mov_b32 v3, s{69+2*i}')
        a(f'buffer_store_dwordx2 v[2:3], v4, {SR(sWS)}, s{sT} offen offset:{8*i}'); a('s_nop 1')
    a.label(L)
def LG(n): return f's_waitcnt lgkmcnt({0 if STAMP else n})'

class Rec:
    def __init__(self): self.l = []
    def __call__(self, s): self.l.append(s)

vL16=1; vPA=2; vSY=3; vS=4; VBASE=10
def arrive(a, stage):
    a(f'v_mov_b32 v{vS+4}, {stage}'); a(f'ds_write_b32 v{vPA}, v{vS+4}')
def sync_read(a, grp): a(f'ds_read_b128 {V(vS,4)}, v{vSY} offset:{16*grp}')
def sync_check(a, grp, stage):
    L = a.newlabel('sw'); L2 = a.newlabel('sd')
    a.label(L)
    a('s_waitcnt lgkmcnt(0)')
    a(f'v_min3_u32 v{vS}, v{vS}, v{vS+1}, v{vS+2}'); a(f'v_min_u32 v{vS}, v{vS}, v{vS+3}')
    a(f'v_readfirstlane_b32 s{sT+7}, v{vS}')
    a(f's_cmp_ge_u32 s{sT+7}, {stage}'); a(f's_cbranch_scc1 {L2}')
    sync_read(a, grp); a(f's_branch {L}')
    a.label(L2)
def sync_wait(a, grp, stage): sync_read(a, grp); sync_check(a, grp, stage)
GRP_H=0; GRP_G=1
def flag_store(a, ws_off, sidx):
    a('s_mov_b64 exec, 0xff')
    a(f's_lshr_b32 s{sT+6}, s{sidx}, 4'); a(f's_lshl_b32 s{sT+6}, s{sT+6}, 8'); a(f's_and_b32 s{sT+7}, s{sidx}, 15'); a(f's_lshl_b32 s{sT+7}, s{sT+7}, 2')
    a(f's_add_u32 s{sT+6}, s{sT+6}, s{sT+7}'); a(f's_add_u32 s{sT+6}, s{sT+6}, {ws_off}')
    a(f'v_lshlrev_b32 v{vS}, 13, v0'); a(f'v_mov_b32 v{vS+1}, s{sTAG}')
    a(f'buffer_store_dword v{vS+1}, v{vS}, {SR(sWS)}, s{sT+6} offen sc1')
    a('s_mov_b64 exec, -1')
def signal_flag(a, cnt_off, last, ws_off, sidx):
    L = a.newlabel('sig')
    a('s_mov_b64 exec, 1')
    a(f'v_mov_b32 v{vS+4}, 1'); a(f'ds_add_rtn_u32 v{vS}, v{vSY}, v{vS+4} offset:{cnt_off}')
    a('s_waitcnt lgkmcnt(0)')
    a(f'v_readfirstlane_b32 s{sT+7}, v{vS}')
    a('s_mov_b64 exec, -1')
    a(f's_cmp_lg_u32 s{sT+7}, {last}'); a(f's_cbranch_scc1 {L}')
    flag_store(a, ws_off, sidx)
    a.label(L)

WO_ORDER = [0, 8, 1, 9, 2, 10, 3, 11, 4, 12, 5, 13, 6, 14, 7, 15]
_places = [i*8192 for i in range(4)] + [2*SLOT + i*8192 for i in range(4)] + [L_XT + i*8192 for i in range(3)] + [SLOT + i*8192 for i in range(4)] + [L_KVR]
def wo_unit(u): return _places[WO_ORDER.index(u)]
WIN = opt('win', 12)
def rot_calc(a):
    RM = opt('rot', 104)
    a(f's_lshr_b32 s{sT}, s{sIDX}, 2')
    if RM == 8: a(f's_lshl_b32 s{sROT}, s{sHL}, 1'); a(f's_add_u32 s{sROT}, s{sROT}, s{sT}'); a(f's_and_b32 s{sROT}, s{sROT}, 7')
    elif RM == 1: a(f's_mov_b32 s{sROT}, 0')
    elif RM > 100:
        a(f's_add_u32 s{sT}, s{sT}, s{sHL}'); a(f's_and_b32 s{sT}, s{sT}, 1'); a(f's_mul_i32 s{sT}, s{sT}, {RM-100}')
        a(f's_lshl_b32 s{sROT}, s{sHH}, 2'); a(f's_add_u32 s{sROT}, s{sROT}, s{sXCD}'); a(f's_add_u32 s{sROT}, s{sROT}, s{sT}'); a(f's_and_b32 s{sROT}, s{sROT}, 7')
    else: a(f's_add_u32 s{sROT}, s{sHL}, s{sT}'); a(f's_and_b32 s{sROT}, s{sROT}, {RM-1}'); a(f's_lshl_b32 s{sROT}, s{sROT}, {1 if RM == 4 else 2}')
def dma_setup(a, vd, t0, t1):
    rot_calc(a)
    a(f's_lshl_b32 s{sLB}, s{sW4}, 13')
    a(f'v_lshrrev_b32 v{t0}, 3, v0'); a(f'v_and_b32 v{t1}, 0x70, v{vL16}'); a(f'v_and_b32 v{vd+2}, 0x30, v0')
    a(f'v_xor_b32 v{vd+4}, v{t1}, v{vd+2}')
    a(f's_lshl_b32 s{sT}, s{sW4}, 4'); a(f's_add_u32 s{sT+1}, s{sT}, s{sROW0}')
    a(f'v_add_u32 v{vd+5}, s{sT+1}, v{t0}'); a(f'v_lshl_add_u32 v{vd+4}, v{vd+5}, 10, v{vd+4}')
    a(f'v_xor_b32 v{vd+5}, 64, v{vd+4}'); a(f'v_add_u32 v{vd+5}, {8192-1024}, v{vd+5}')
    a(f'v_and_b32 v{vd+2}, 16, v0'); a(f'v_lshlrev_b32 v{vd+2}, 1, v{vd+2}'); a(f'v_xor_b32 v{vd+2}, v{vd+2}, v{t1}')
    a(f'v_add_u32 v{t0}, s{sT}, v{t0}'); a(f'v_mul_u32_u24 v{t0}, 3072, v{t0}'); a(f's_lshl_b32 s{sT+1}, s{sHG}, 7')
    a(f'v_add3_u32 v{vd+2}, v{vd+2}, v{t0}, s{sT+1}')
    a(f'v_xor_b32 v{t0}, 64, v{vd+2}')
    a(f'v_add_u32 v{vd}, 1024, v{vd+2}'); a(f'v_add_u32 v{vd+1}, 24576, v{t0}'); a(f'v_add_u32 v{vd+3}, 23552, v{t0}')
def dma_group(g, vd):
    base = (g % 3)*SLOT
    adv = [f's_add_u32 s{sSX}, s{sROT}, {g}', f's_and_b32 s{sSX}, s{sSX}, 7', f's_lshl_b32 s{sSX}, s{sSX}, 7', f's_mul_i32 s{sSW}, s{sSX}, 1536']
    ld = lambda v, srdr, so, off: f'buffer_load_dwordx4 v{v}, {SR(srdr)}, s{so} offen' + (f' offset:{off}' if off else '') + ' lds'
    return [[f's_add_u32 m0, s{sLB}, {base+oX}'] + adv + [ld(vd+4, sX, sSX, 0)], [ld(vd+5, sX, sSX, 1024)],
            [f's_add_u32 m0, s{sLB}, {base+oK}', ld(vd, sWQ, sSW, 0)], [ld(vd+1, sWQ, sSW, 1024)],
            [f's_add_u32 m0, s{sLB}, {base}', ld(vd+2, sWQ, sSW, 2048)], [ld(vd+3, sWQ, sSW, 3072)],
            [ld(vd+2, sWQ, sSW, 0)], [ld(vd+3, sWQ, sSW, 1024)]]
def emit(a, b, thr=None):
    for l in b[:-1]: a(l)
    if thr is not None: a(f's_waitcnt vmcnt({thr})')
    a(b[-1])

def phi_pack(a, acc, n, out, tmp):
    for j in range(0, n, 2): a(f'v_pk_mul_f32 {V(tmp+j,2)}, {V(acc+j,2)}, s[{sL2E}:{sL2E+1}]')
    for j in range(n):
        a(f'v_exp_f32_e64 v{tmp+j}, v{tmp+j} clamp')
        a(f'v_max_f32 v{acc+j}, {F(1e-6)}, v{acc+j}')
    for j in range(0, n, 2): a(f'v_pk_add_f32 {V(tmp+j,2)}, {V(tmp+j,2)}, {V(acc+j,2)}')
    for j in range(0, n, 2): a(f'v_cvt_pk_bf16_f32 v{out+j//2}, v{tmp+j}, v{tmp+j+1}')
def sincos4(a, base, step, r0, c, s):
    for r in range(4):
        k = r0 + r
        if k == 0: a(f'v_mov_b32 v{s+r}, v{base}')
        else: a(f'v_fmamk_f32 v{s+r}, v{step}, {F(float(k))}, v{base}')
    for r in range(4): a(f'v_cos_f32 v{c+r}, v{s+r}')
    for r in range(4): a(f'v_sin_f32 v{s+r}, v{s+r}')
def mat6(a, dst, c, s):
    a(f'v_cvt_pk_bf16_f32 v{dst+2}, v{c}, v{c+1}'); a(f'v_cvt_pk_bf16_f32 v{dst+3}, v{c+2}, v{c+3}')
    a(f'v_cvt_pk_bf16_f32 v{dst+4}, v{s}, v{s+1}'); a(f'v_cvt_pk_bf16_f32 v{dst+5}, v{s+2}, v{s+3}')
    a(f'v_xor_b32 v{dst+0}, 0x80008000, v{dst+4}'); a(f'v_xor_b32 v{dst+1}, 0x80008000, v{dst+5}')
def cmul_pack(a, re, im, tc, ts, out, tmp, conj_out=False):
    for j in (0, 2):
        a(f'v_pk_mul_f32 {V(tmp+j,2)}, {V(re+j,2)}, {V(tc+j,2)}')
        a(f'v_pk_mul_f32 {V(tmp+4+j,2)}, {V(re+j,2)}, {V(ts+j,2)}')
    for j in (0, 2):
        a(f'v_pk_fma_f32 {V(tmp+j,2)}, {V(im+j,2)}, {V(ts+j,2)}, {V(tmp+j,2)} neg_lo:[1,0,0] neg_hi:[1,0,0]')
        a(f'v_pk_fma_f32 {V(tmp+4+j,2)}, {V(im+j,2)}, {V(tc+j,2)}, {V(tmp+4+j,2)}')
    n = '-' if conj_out else ''
    a(f'v_cvt_pk_bf16_f32 v{out}, v{tmp}, v{tmp+1}'); a(f'v_cvt_pk_bf16_f32 v{out+1}, v{tmp+2}, v{tmp+3}')
    a(f'v_cvt_pk_bf16_f32 v{out+2}, {n}v{tmp+4}, {n}v{tmp+5}'); a(f'v_cvt_pk_bf16_f32 v{out+3}, {n}v{tmp+6}, {n}v{tmp+7}')

TF=10; WF=74; ACA=138; ACB=154; PQ=170; KVF=186; YL=218; FT=234
def fin_table(a, hook=None):
    P = YL; T = FT; D = FT+8; step = FT+16; base = FT+17; t0 = FT+18; t1 = FT+19; fk = FT+20
    a(f's_lshl_b32 s{sT}, s{sHL}, 7'); a(f's_lshl_b32 s{sT+1}, s{sW4}, 5'); a(f's_add_u32 s{sT}, s{sT}, s{sT+1}')
    a(f'v_and_b32 v{t0}, 15, v0'); a(f'v_add_u32 v{t0}, s{sT}, v{t0}'); a(f'v_cvt_f32_u32 v{step}, v{t0}'); a(f'v_mul_f32 v{step}, {F(1/512)}, v{step}')
    a(f'v_lshrrev_b32 v{t1}, 4, v0'); a(f'v_lshlrev_b32 v{t1}, 2, v{t1}'); a(f's_lshl_b32 s{sT}, s{sKH}, 7'); a(f'v_add_u32 v{t1}, s{sT}, v{t1}')
    a(f'v_cvt_f32_u32 v{fk}, v{t1}')
    cur = [P, P+8]; free = T
    for cu in range(2):
        if cu: a(f'v_add_f32 v{step}, {F(16/512)}, v{step}')
        a(f'v_mul_f32 v{base}, v{fk}, v{step}')
        a(f'v_mul_f32 v{D+4*cu+2}, {F(16.0)}, v{step}')
        sincos4(a, base, step, 0, cur[cu], cur[cu]+4)
        a(f'v_cos_f32 v{D+4*cu}, v{D+4*cu+2}'); a(f'v_sin_f32 v{D+4*cu+2}, v{D+4*cu+2}')
        a(f'v_mov_b32 v{D+4*cu+1}, v{D+4*cu}'); a(f'v_mov_b32 v{D+4*cu+3}, v{D+4*cu+2}')
    for k in range(16):
        n, cu = k//2, k & 1; C = cur[cu]; S_ = C+4; Dc = D + 4*cu
        for j in range(4): a(f'v_cvt_pk_bf16_f32 v{TF+4*k+j}, v{C+j}, v{S_+j}')
        if hook: hook(2*k)
        if n < 7:
            for j in (0, 2, 4, 6): a(f'v_pk_mul_f32 {V(free+j,2)}, {V(C+j,2)}, {V(Dc,2)}')
            for j in (0, 2):
                a(f'v_pk_fma_f32 {V(free+j,2)}, {V(S_+j,2)}, {V(Dc+2,2)}, {V(free+j,2)} neg_lo:[1,0,0] neg_hi:[1,0,0]')
                a(f'v_pk_fma_f32 {V(free+4+j,2)}, {V(C+j,2)}, {V(Dc+2,2)}, {V(free+4+j,2)}')
            cur[cu], free = free, C
        if hook: hook(2*k+1)
    a(f'v_lshlrev_b32 v{t0}, 31, v{t0}'); a(f'v_xor_b32 v{t0}, 0xbf003f00, v{t0}')
    a(f'v_cmp_eq_u32 vcc, 0, v{t1}'); a(f'v_cndmask_b32 v{TF}, v{TF}, v{t0}, vcc'); a(f'v_cndmask_b32 v{TF+4}, v{TF+4}, v{t0}, vcc')

def pull_wo(a, kh):
    B = ACA; t0 = ACA+6; t1 = ACA+7
    a(f'v_bfe_u32 v{t0}, v0, 2, 3'); a(f'v_lshrrev_b32 v{t1}, 5, v0'); a(f'v_lshl_add_u32 v{B}, v{t1}, 4, v{t0}'); a(f'v_lshlrev_b32 v{B}, 8, v{B}')
    a(f's_lshl_b32 s{sT}, s{sW4}, 1'); a(f'v_xor_b32 v{t0}, s{sT}, v{t0}'); a(f'v_lshl_add_u32 v{B}, v{t0}, 5, v{B}')
    a(f'v_and_b32 v{t0}, 3, v0'); a(f'v_lshl_add_u32 v{B}, v{t0}, 3, v{B}')
    a(f'v_xor_b32 v{B+1}, 32, v{B}')
    for q in (1, 2):
        for cu in range(2): a(f'v_add_u32 v{B+2*q+cu}, {57344*q}, v{B+cu}')
    a('s_barrier')
    for n in range(8):
        for cu in range(2):
            for jj in range(2):
                ad = wo_unit(8*kh+n) + jj*2048
                q = ad // 57344
                a(f'ds_read_b64_tr_b16 {V(WF+8*n+4*cu+2*jj,2)}, v{B+2*q+cu} offset:{ad - q*57344}')

def srdc(a, d):
    n = {sX:0x200000, sWQ:512*3072, sWR:2048*514, sWI:2048*514, sWS:WS_SIZE, sGW:1024, sWO:512*1024, sOUT:0x200000}[d]
    a(f's_mov_b32 s{d+2}, {n}'); a(f's_mov_b32 s{d+3}, 0x20000')
def ids_gemm(a):
    a(f's_and_b32 s{sHH}, s2, 1'); a(f's_and_b32 s{sHL}, s{sIDX}, 3')
    a(f's_lshl_b32 s{sHG}, s{sHH}, 2'); a(f's_add_u32 s{sHG}, s{sHG}, s{sHL}')
    a(f's_and_b32 s{sROW0}, s2, 6'); a(f's_lshl_b32 s{sROW0}, s{sROW0}, 7')
    a(f's_and_b32 s{sT}, s{sIDX}, 12'); a(f's_lshl_b32 s{sT}, s{sT}, 4'); a(f's_add_u32 s{sROW0}, s{sROW0}, s{sT}')
    a(f's_and_b32 s{sT}, s{sIDX}, 16'); a(f's_lshl_b32 s{sT}, s{sT}, 6'); a(f's_add_u32 s{sROW0}, s{sROW0}, s{sT}')
def late_common(a):
    for d in (sWS, sWO, sOUT): srdc(a, d)
    a(f's_lshr_b32 s{sAT}, s{sROW0}, 5'); a(f's_add_u32 s{sAT}, s{sAT}, s{sHH}'); a(f's_lshr_b32 s{sKH}, s{sWV}, 2')

def build():
    a = Asm(); ST = Stamps(a); ST('start')
    a('s_cmp_ge_u32 s2, 256'); a(f's_cbranch_scc1 L_done')
    for d, off in ((sX,0),(sWQ,32),(sWR,8),(sWI,16),(sWS,72),(sGW,48),(sWO,40),(sOUT,56)):
        a(f's_load_dwordx2 s[{d}:{d+1}], s[0:1], {off}')
    a(f'v_readfirstlane_b32 s{sWV}, v0'); a('v_and_b32 v0, 63, v0')
    a(f's_and_b32 s{sXCD}, s2, 7'); a(f's_lshr_b32 s{sIDX}, s2, 3')
    a('s_getpc_b64 s[4:5]')
    a(f's_lshl_b32 s{sT}, s{sIDX}, 10'); a(f's_lshl_b32 s{sT+1}, s{sWV}, 1'); a(f's_add_u32 s{sT}, s{sT}, s{sT+1}')
    CP = opt('cp', 3)
    if CP in (1, 2): a(f's_load_dword s{sU}, s[4:5], s{sT}')
    if CP == 2: a(f's_add_u32 s{sT}, s{sT}, 64'); a(f's_load_dword s{sU}, s[4:5], s{sT}')
    if CP == 3:
        a(f'v_mov_b32 v{vS+5}, s{sT}'); a('s_mov_b64 exec, 1'); a(f'global_load_dword v{vS+5}, v{vS+5}, s[4:5]'); a('s_mov_b64 exec, -1')
    if CP == 4:
        a(f's_lshl_b32 s{sT+1}, s{sWV}, 4'); a(f'v_lshl_add_u32 v{vS+5}, v0, 7, s{sT+1}'); a(f'v_writelane_b32 v{vS+5}, s{sT}, 8')
        a('s_mov_b64 exec, 0x1ff'); a(f'global_load_dword v{vS+5}, v{vS+5}, s[4:5]'); a('s_mov_b64 exec, -1')
    a(f's_lshr_b32 s{sWV}, s{sWV}, 6'); a(f'v_lshlrev_b32 v{vL16}, 4, v0')
    a(f's_and_b32 s{sW4}, s{sWV}, 3'); a(f's_lshl_b32 s{sLW}, s{sW4}, 11')
    a(f'v_mov_b32 v{vSY}, {L_SY}'); a(f'v_mov_b32 v{vS}, 0'); a(f'v_mov_b32 v{vS+1}, 0')
    a(f'v_lshl_add_u32 v{vPA}, s{sWV}, 2, v{vSY}')
    a(f'ds_write_b32 v{vPA}, v{vS}'); a(f'ds_write_b64 v{vSY}, {V(vS,2)} offset:32')
    srdc(a, sX)
    a(f's_lshl_b32 s{sP}, s{sXCD}, 5'); a(f's_add_u32 s{sP}, s{sP}, s{sIDX}')
    a(f's_cmp_ge_u32 s{sWV}, 4'); a('s_cbranch_scc1 L_G0')
    names0 = list(ST.names)
    H = gen_H0(a, ST); nH = list(ST.names)
    a('s_branch L_H1')
    a.label('L_G0'); a.hist = []; ST.names = list(names0)
    G = gen_G0(a, ST); nG = list(ST.names)
    a('s_branch L_G1')
    a.label('L_H1'); a.hist = []; ST.names = nH
    hiH = gen_H(a, ST, H); nH = list(ST.names)
    a('s_branch L_FIN')
    a.label('L_G1'); a.hist = []; ST.names = nG
    hiG = gen_G(a, ST, G)
    while len(ST.names) < len(nH): ST.names.append('-')
    a.label('L_FIN'); a.hist = []
    gen_FIN(a, ST)
    a.label('L_done'); a('s_endpgm')
    gen_special(a)
    if STAMP: print('H:', nH, '\nG:', ST.names, file=sys.stderr)
    print('instrs', a.count, 'nops', a.nops, 'vgprs', hiH, hiG, file=sys.stderr)
    return a

SP = {}
def wloads(a, vWs, e0, e1, e3):
    a(f's_add_u32 m0, s{sLW}, {L_WRAW}'); a(f'buffer_load_dwordx4 v{vWs}, {SR(sWR)}, s{sT+3} offen lds')
    a(f's_add_u32 m0, s{sLW}, {L_WRAW+1024}'); a(f'buffer_load_dwordx4 v{vWs}, {SR(sWI)}, s{sT+3} offen lds')
    a('s_mov_b64 exec, 0xffff')
    a(f'buffer_load_ushort v{e0}, v{e3}, {SR(sWR)}, 0 offen')
    a(f'buffer_load_ushort v{e1}, v{e3}, {SR(sWI)}, 0 offen')
    a('s_mov_b64 exec, -1')
def gen_H0(a, ST):
    R = Regs(VBASE)
    t0, t1, vWs = R.alloc(), R.alloc(), R.alloc()
    srdc(a, sWR); srdc(a, sWI)
    a(f's_lshl_b32 s{sT}, s{sXCD}, 17'); a(f's_lshl_b32 s{sT+1}, s{sW4}, 15'); a(f's_add_u32 s{sT}, s{sT}, s{sT+1}')
    a(f's_lshl_b32 s{sT+1}, s{sIDX}, 10'); a(f's_add_u32 s{sT}, s{sT}, s{sT+1}'); a(f's_add_u32 s{sT+1}, s{sT}, {1024*1024-1024}')
    a(f'v_lshrrev_b32 v{t0}, 4, v0'); a(f'v_mul_u32_u24 v{vWs}, {64*514-256}, v{t0}'); a(f'v_add_u32 v{vWs}, v{vWs}, v{vL16}')
    a(f's_and_b32 s{sT+2}, s{sP}, 63'); a(f's_and_b32 s{sT+3}, s{sP}, 0xc0'); a(f's_lshl_b32 s{sT+3}, s{sT+3}, 2'); a(f's_add_u32 s{sT+2}, s{sT+2}, s{sT+3}')
    a(f's_and_b32 s{sT+3}, s{sW4}, 1'); a(f's_lshl_b32 s{sT+3}, s{sT+3}, 10'); a(f's_add_u32 s{sT+2}, s{sT+2}, s{sT+3}')
    a(f's_mul_i32 s{sT+3}, s{sT+2}, 514')
    a(f's_and_b32 s{sT+4}, s{sW4}, 2'); a(f's_lshl_b32 s{sT+4}, s{sT+4}, 7'); a(f's_add_u32 s{sT+3}, s{sT+3}, s{sT+4}')
    e0, e1, e2, e3 = [R.alloc() for _ in range(4)]
    a(f'v_and_b32 v{t1}, 3, v0'); a(f'v_lshl_add_u32 v{e0}, v{t1}, 6, s{sT+2}')
    a(f'v_sub_u32 v{e1}, 0x800, v{e0}'); a(f'v_and_b32 v{e1}, 0x7ff, v{e1}')
    a(f'v_and_b32 v{e2}, 8, v0'); a(f'v_cmp_eq_u32 vcc, 0, v{e2}'); a(f'v_and_b32 v{e2}, 4, v0'); a(f'v_lshlrev_b32 v{e2}, 7, v{e2}')
    a(f'v_cndmask_b32 v{e0}, v{e1}, v{e0}, vcc'); a(f'v_mul_u32_u24 v{e0}, 514, v{e0}'); a(f'v_add_u32 v{e3}, v{e0}, v{e2}')
    srdc(a, sGW)
    a(f's_lshr_b32 s{sT+5}, s{sLW}, 2'); a(f's_and_b32 s{sT+4}, s{sT+5}, 512')
    a(f's_add_u32 m0, s{sLW}, {L_P1X}')
    a('s_waitcnt lgkmcnt(0)'); ST('karg')
    a(f's_load_dword s{sTAG}, s[{sWS}:{sWS+1}], {WS_GEN}')
    a(f'buffer_load_dwordx4 v{vL16}, {SR(sX)}, s{sT} offen lds')
    a(f'buffer_load_dwordx4 v{vL16}, {SR(sX)}, s{sT+1} offen offset:1024 lds')
    a(f's_add_u32 m0, s{sT+5}, {L_GW}'); a('s_mov_b32 exec_hi, 0')
    a(f'buffer_load_dwordx4 v{vL16}, {SR(sGW)}, s{sT+4} offen lds'); a('s_mov_b32 exec_hi, -1')
    if opt('wpos', 2) == 0: wloads(a, vWs, e0, e1, e3)
    return R, t0, t1, vWs, e0, e1, e2, e3

def gen_H(a, ST, H):
    R, t0, t1, vWs, e0, e1, e2, e3 = H
    vl15, fl15, fg4 = R.alloc(), R.alloc(), R.alloc()
    a(f'v_and_b32 v{vl15}, 15, v0'); a(f'v_cvt_f32_u32 v{fl15}, v{vl15}')
    a(f'v_lshlrev_b32 v{fg4}, 2, v{t0}'); a(f'v_cvt_f32_u32 v{fg4}, v{fg4}')
    F16T = R.alloc(6); tc = R.alloc(8); ts = R.alloc(8); base = R.alloc(); step = R.alloc()
    a(f'v_mul_f32 v{step}, {F(1/16)}, v{fl15}'); a(f'v_mul_f32 v{base}, v{fg4}, v{step}')
    sincos4(a, base, step, 0, tc, ts); mat6(a, F16T, tc, ts)
    F32T = R.alloc(24); m = R.alloc(); mo = R.alloc()
    a(f'v_mul_f32 v{step}, {F(1/32)}, v{fl15}'); a(f'v_mul_f32 v{base}, v{fg4}, v{step}')
    sincos4(a, base, step, 0, tc, ts); mat6(a, F32T, tc, ts)
    a(f'v_and_b32 v{mo}, 1, v{vl15}'); a(f'v_sub_u32 v{mo}, 0, v{mo}'); a(f'v_and_b32 v{mo}, 0x80008000, v{mo}')
    for j in range(6):
        a(f'v_xor_b32 v{F32T+6+j}, v{mo}, v{F32T+j}'); a(f'v_xor_b32 v{F32T+12+j}, 0x80000000, v{F32T+j}'); a(f'v_xor_b32 v{F32T+18+j}, 0x80000000, v{F32T+6+j}')
    a(f'v_mul_f32 v{step}, {F(-1/512)}, v{fl15}'); a(f'v_mul_f32 v{base}, v{fg4}, v{step}')
    sincos4(a, base, step, 0, tc, ts); sincos4(a, base, step, 16, tc+4, ts+4)
    if opt('wpos', 2) == 1: wloads(a, vWs, e0, e1, e3)
    aT = R.alloc(); aZ = R.alloc(); aO = R.alloc(4); stp = R.alloc(); aWt = R.alloc(); aWp = R.alloc()
    a(f'v_lshrrev_b32 v{t0}, 2, v0'); a(f'v_lshlrev_b32 v{aWt}, 3, v{t1}'); a(f'v_lshl_add_u32 v{aT}, v{t0}, 6, v{aWt}')
    a(f's_add_u32 s{sT}, s{sLW}, {L_P1X}'); a(f'v_add_u32 v{aT}, s{sT}, v{aT}')
    a(f'v_bfe_u32 v{m}, v0, 2, 1'); a(f'v_lshl_add_u32 v{aWt}, v{m}, 10, v{aWt}')
    a(f'v_bfe_u32 v{m}, v0, 3, 1'); a(f'v_lshl_add_u32 v{aWt}, v{m}, 8, v{aWt}')
    a(f'v_lshrrev_b32 v{m}, 4, v0'); a(f'v_lshl_add_u32 v{aWt}, v{m}, 5, v{aWt}')
    a(f's_add_u32 s{sT}, s{sLW}, {L_WRAW}'); a(f'v_add_u32 v{aWt}, s{sT}, v{aWt}')
    a(f's_and_b32 s{sT}, s{sW4}, 1'); a(f's_mul_i32 s{sT+1}, s{sT}, {264*4}'); a(f's_add_u32 s{sT+1}, s{sT+1}, {L_PL+520*4}')
    aA_, aB_ = R.alloc(), R.alloc()
    a(f'v_mul_u32_u24 v{aA_}, {PS*4}, v{t1}')
    a(f's_lshl_b32 s{sT+2}, s{sT}, 2'); a(f's_add_u32 s{sT+2}, s{sT+2}, {L_PL+1040*4}'); a(f'v_add_u32 v{aB_}, s{sT+2}, v{aA_}')
    a(f'v_add_u32 v{aA_}, s{sT+1}, v{aA_}')
    a(f's_and_b32 s{sT+2}, s{sW4}, 2'); a(f's_lshl_b32 s{sT+2}, s{sT+2}, 8'); a(f's_add_u32 s{sT+1}, s{sT+1}, s{sT+2}'); a(f'v_lshl_add_u32 v{aWp}, v0, 2, s{sT+1}')
    a(f'v_lshlrev_b32 v{m}, 4, v{m}'); a(f'v_lshl_add_u32 v{aZ}, v{vl15}, 6, v{m}')
    a(f's_mul_i32 s{sT}, s{sW4}, {PS*4}'); a(f's_add_u32 s{sT}, s{sT}, {L_PL}'); a(f'v_add_u32 v{aZ}, s{sT}, v{aZ}')
    a(f's_lshl_b32 s{sT}, s{sW4}, 6'); a(f'v_add_u32 v{t0}, s{sT}, v{t0}')
    a(f'v_cmp_eq_u32 vcc, 1, v{t1}')
    a(f'v_sub_u32 v{aO}, 512, v{t0}'); a(f'v_mov_b32 v{stp}, 64'); a(f'v_mov_b32 v{aO+1}, -64')
    a(f'v_cndmask_b32 v{aO}, v{t0}, v{aO}, vcc'); a(f'v_cndmask_b32 v{stp}, v{stp}, v{aO+1}, vcc')
    a(f'v_cmp_eq_u32 vcc, 2, v{t1}'); a(f'v_add_u32 v{aO+1}, 520, v{t0}'); a(f'v_add_u32 v{aO+2}, 784, v{t0}'); a(f'v_cndmask_b32 v{aO}, v{aO}, v{aO+1}, vcc')
    a(f'v_cmp_eq_u32 vcc, 3, v{t1}'); a(f'v_mov_b32 v{t0}, {L_PL+1024}'); a(f's_mov_b32 s{sT}, {L_PL}'); a(f'v_cndmask_b32 v{aO}, v{aO}, v{aO+2}, vcc')
    a(f'v_lshl_add_u32 v{aO}, v{aO}, 2, s{sT}')
    for j in range(1,4): a(f'v_add_u32 v{aO+j}, v{aO+j-1}, v{stp}')
    a(f'v_cmp_eq_u32 vcc, {L_PL+2048}, v{aO}'); a(f'v_and_b32 v{t1}, 1, v0'); a(f's_mov_b32 s{sT}, {L_PL+1040*4}'); a(f'v_cndmask_b32 v{aO}, v{aO}, v{t0}, vcc')
    a(f'v_lshl_add_u32 v{stp}, v{t1}, 2, s{sT}')
    if opt('wpos', 2) == 2: wloads(a, vWs, e0, e1, e3)
    ids_gemm(a); late_common(a); rot_calc(a)
    X = R.alloc(8); Dr = R.alloc(8); Di = R.alloc(8); tmp = R.alloc(8); IN = R.alloc(32); P = IN; Wt = IN+16
    a('s_waitcnt lgkmcnt(0)')
    a(f's_add_u32 s{sTAG}, s{sTAG}, {TAGC}')
    ST('const'); a('s_waitcnt vmcnt(4)'); ST('rows')
    for t in range(2):
        for rho in range(2): a(f'ds_read_b64_tr_b16 {V(X+t*4+rho*2,2)}, v{aT} offset:{rho*1024+t*32}')
    for t in range(2):
        a(LG(2-2*t))
        a(f'{M16} {V(Dr+4*t,4)}, {V(X+4*t,4)}, {V(F16T+2,4)}, 0'); a(f'{M16} {V(Di+4*t,4)}, {V(X+4*t,4)}, {V(F16T,4)}, 0')
    for t in range(2): cmul_pack(a, Dr+4*t, Di+4*t, tc+4*t, ts+4*t, X+4*t, tmp)
    for t in range(2):
        for u in range(2):
            T = F32T + (u*2+t)*6
            a(f'{M16} {V(Dr+4*u,4)}, {V(X+4*t,4)}, {V(T+2,4)}, {"0" if t==0 else V(Dr+4*u,4)}')
            a(f'{M16} {V(Di+4*u,4)}, {V(X+4*t,4)}, {V(T,4)}, {"0" if t==0 else V(Di+4*u,4)}')
    dp = 'row_mask:0xf bank_mask:0xf'
    for u in range(2):
        for r in range(4): a(f'v_cvt_pk_bf16_f32 v{P+4*u+r}, v{Dr+4*u+r}, v{Di+4*u+r}')
        a(f'ds_write_b128 v{aZ}, {V(P+4*u,4)} offset:{u*1024}')
    ST('p1')
    def wprep():
        a('s_waitcnt vmcnt(0)'); ST('_wv')
        for cg in range(2):
            for hf in range(2): a(f'ds_read_b64_tr_b16 {V(Wt+4*cg+2*hf,2)}, v{aWt} offset:{cg*128+hf*512}')
        a(f'v_lshlrev_b32 v{e0}, 16, v{e0}'); a(f'v_lshlrev_b32 v{e1}, 16, v{e1}')
        a(f'v_add_f32_dpp v{e2}, v{e0}, v{e0} row_ror:8 {dp}'); a(f'v_subrev_f32_dpp v{e3}, v{e1}, v{e1} row_ror:8 {dp}')
        a(f'v_add_f32_dpp v{e0}, v{e2}, v{e2} row_ror:12 {dp}'); a(f'v_add_f32_dpp v{e1}, v{e3}, v{e3} row_ror:12 {dp}')
        a(f'v_subrev_f32_dpp v{tmp}, v{e2}, v{e2} row_ror:12 {dp}'); a(f'v_subrev_f32_dpp v{tmp+1}, v{e3}, v{e3} row_ror:12 {dp}')
        a(f'v_cvt_pk_bf16_f32 v{e0}, v{e0}, v{e1}'); a(f'v_cvt_pk_bf16_f32 v{e1}, v{tmp}, v{tmp+1}')
        a('s_waitcnt lgkmcnt(0)')
        for r in range(4): a(f'ds_write2st64_b32 v{aWp}, v{Wt+r}, v{Wt+4+r} offset0:{r*17} offset1:{r*17+1}')
        a('s_mov_b64 exec, 15')
        a(f'ds_write_b32 v{aA_}, v{e0}'); a(f'ds_write_b32 v{aB_}, v{e1}')
        a('s_mov_b64 exec, -1')
    for r, n in ((F16T,6),(aT,1),(aZ,1),(vWs,1)): R.free(r, n)
    B1 = R.alloc(32); tw2c = R.alloc(8); tw2s = R.alloc(8); F64 = R.alloc(24); tw1c = tc; tw1s = ts
    c = Dr; s = Dr+4; fk = R.alloc(); m2 = R.alloc()
    vA, aW, aWr, aE, aI, aO1, aO2, aOr, vY, vF, aGx, aGw, gacc, vPoll = [R.alloc() for _ in range(14)]
    r = Rec()
    sR, sI = sT+4, sT+5
    a(f's_lshl_b32 s{sT}, s{sHH}, 14'); a(f's_and_b32 s{sT+1}, s{sW4}, 2'); a(f's_lshl_b32 s{sT+1}, s{sT+1}, 12'); a(f's_add_u32 s{sT}, s{sT}, s{sT+1}')
    a(f's_and_b32 s{sT+1}, s{sW4}, 1'); a(f's_lshl_b32 s{sT+1}, s{sT+1}, 10'); a(f's_add_u32 s{sT}, s{sT}, s{sT+1}'); a(f's_add_u32 s{sT}, s{sT}, {oX}')
    a(f'v_add_u32 v{aGx}, s{sT}, v{vL16}')
    a(f'v_lshrrev_b32 v{t0}, 4, v{aGx}'); a(f'v_xor_b32 v{t0}, v{t0}, v{aGx}'); a(f'v_and_b32 v{t0}, 0x70, v{t0}'); a(f's_lshl_b32 s{sT}, s{sROT}, 7'); a(f's_add_u32 s{sT}, s{sT}, {L_GW}'); a(f'v_add_u32 v{aGw}, s{sT}, v{t0}')
    a(f'v_mov_b32 v{gacc}, 0')
    r(f'v_lshrrev_b32 v{t0}, 4, v0'); r(f'v_lshlrev_b32 v{vF}, 8, v{t0}'); r(f'v_lshl_add_u32 v{vF}, v{vl15}, 2, v{vF}')
    r(f'v_lshrrev_b32 v{t0}, 2, v0'); r(f'v_and_b32 v{t1}, 3, v0')
    r(f'v_mul_u32_u24 v{vA}, {ZSTRIDE}, v{t0}'); r(f'v_lshl_add_u32 v{vA}, v{t1}, 4, v{vA}')
    r(f'v_lshlrev_b32 v{aW}, 4, v{t0}'); r(f'v_and_b32 v{t0}, 1, v{t1}'); r(f'v_lshl_add_u32 v{aW}, v{t0}, 8, v{aW}')
    r(f'v_lshrrev_b32 v{t0}, 1, v{t1}'); r(f'v_lshl_add_u32 v{aW}, v{t0}, 13, v{aW}')
    r(f's_lshl_b32 s{sT}, s{sW4}, 10'); r(f's_add_u32 s{sT+1}, s{sT}, {L_IN}'); r(f'v_add_u32 v{aW}, s{sT+1}, v{aW}')
    r(f's_add_u32 s{sT+1}, s{sT}, {L_EX}'); r(f'v_add_u32 v{aE}, s{sT+1}, v{vL16}')
    r(f'v_add_u32 v{aI}, {L_IN}, v{vL16}')
    r(f'v_lshrrev_b32 v{t0}, 4, v0'); r(f'v_lshlrev_b32 v{aWr}, 10, v{t0}'); r(f'v_lshl_add_u32 v{aWr}, v{vl15}, 4, v{aWr}')
    r(f's_and_b32 s{sT}, s{sW4}, 1'); r(f's_lshl_b32 s{sT}, s{sT}, 12'); r(f's_lshr_b32 s{sT+1}, s{sW4}, 1'); r(f's_lshl_b32 s{sT+1}, s{sT+1}, 9')
    r(f's_add_u32 s{sT}, s{sT}, s{sT+1}'); r(f's_add_u32 s{sT}, s{sT}, {L_IN+8192}'); r(f'v_add_u32 v{aWr}, s{sT}, v{aWr}')
    r(f'v_and_b32 v{t1}, 7, v0'); r(f'v_xor_b32 v{t0}, v{t0}, v{t1}'); r(f'v_lshlrev_b32 v{t0}, 4, v{t0}')
    r(f'v_lshl_add_u32 v{aO1}, v{vl15}, 7, v{t0}'); r(f's_add_u32 s{sT}, s{sLW}, {L_OT}'); r(f'v_add_u32 v{aO1}, s{sT}, v{aO1}'); r(f'v_xor_b32 v{aO2}, 64, v{aO1}')
    r(f'v_lshrrev_b32 v{t0}, 3, v0'); r(f'v_xor_b32 v{aOr}, v{t1}, v{t0}'); r(f'v_lshlrev_b32 v{aOr}, 4, v{aOr}'); r(f'v_lshl_add_u32 v{aOr}, v{t0}, 7, v{aOr}'); r(f'v_add_u32 v{aOr}, s{sT}, v{aOr}')
    r(f'v_lshlrev_b32 v{t0}, 15, v{t0}'); r(f'v_lshl_add_u32 v{vY}, v{t1}, 4, v{t0}')
    r(f's_lshl_b32 s{sT}, s{sW4}, 4'); r(f'v_add_u32 v{t0}, s{sT}, v{vl15}'); r(f'v_cvt_f32_u32 v{fk}, v{t0}')
    r(f'v_cvt_f32_u32 v{t0}, s{sT}'); r(f'v_add_f32 v{t0}, v{t0}, v{fg4}')
    for t in range(2):
        if t == 0: r(f'v_mul_f32 v{step}, {F(-1/2048)}, v{fl15}')
        else: r(f'v_add_f32 v{step}, {F(-16/2048)}, v{step}')
        r(f'v_mul_f32 v{base}, v{t0}, v{step}')
        sincos4(r, base, step, 0, tw2c+4*t, tw2s+4*t)
    r(f'v_mul_f32 v{step}, {F(-1/64)}, v{fk}')
    r(f'v_lshrrev_b32 v{t0}, 5, v0'); r(f'v_lshlrev_b32 v{t0}, 2, v{t0}'); r(f'v_cvt_f32_u32 v{t0}, v{t0}')
    r(f'v_bfe_u32 v{t1}, v0, 4, 1')
    r(f'v_xor_b32 v{m}, v{t1}, v0'); r(f'v_lshlrev_b32 v{m}, 31, v{m}'); r(f'v_xor_b32 v{base}, {F(-0.125)}, v{m}')
    r(f'v_cvt_f32_u32 v{m}, v{t1}'); r(f'v_mul_f32 v{m}, 0x3e800000, v{m}')
    r(f'v_cmp_eq_u32 vcc, s{sP}, 0' if False else f'v_cmp_eq_u32_e64 vcc, s{sP}, 0')
    r(f'v_cndmask_b32 v{base}, v{base}, v{m}, vcc')
    r(f'v_cndmask_b32 v{m}, v{t1}, v0, vcc'); r(f'v_lshlrev_b32 v{m}, 31, v{m}')
    r(f'v_xor_b32 v{m2}, 0x80000000, v{m}'); r(f'v_cndmask_b32 v{m2}, v{m2}, v{m}, vcc')
    r(f'v_fmac_f32 v{base}, v{t0}, v{step}')
    r([f's_cmp_eq_u32 s{sP}, 0', f's_cselect_b32 s{sR}, 0x01000100, 0x03020100' if False else f's_mov_b32 s{sR}, 0x03020100', f's_cmov_b32 s{sR}, 0x01000100',
       f's_mov_b32 s{sI}, 0x01000302', f's_cmov_b32 s{sI}, 0x03020302', f's_mov_b32 s{sSC}, {F(math.sqrt(0.5))}', f's_cmov_b32 s{sSC}, {F(0.25)}', f's_mov_b32 s{sSC+1}, s{sSC}'])
    for k in range(2):
        sincos4(r, base, step, 8*k, c, s)
        for i in range(4): r(f'v_cvt_pk_bf16_f32 v{c+i}, v{c+i}, v{s+i}')
        for i in range(4):
            r(f'v_perm_b32 v{B1+k*8+i}, v{c+i}, v{c+i}, s{sR}'); r(f'v_perm_b32 v{B1+k*8+4+i}, v{c+i}, v{c+i}, s{sI}')
        for i in range(4):
            r(f'v_xor_b32 v{B1+k*8+i}, v{m2}, v{B1+k*8+i}'); r(f'v_xor_b32 v{B1+k*8+4+i}, v{m}, v{B1+k*8+4+i}')
    r('s_mov_b32 s4, 0xaaaaaaaa'); r('s_mov_b32 s5, 0xaaaaaaaa')
    r(f'v_bfe_i32 v{m2}, v0, 1, 1'); r(f'v_and_b32 v{m2}, 0x80008000, v{m2}'); r(f'v_xor_b32 v{m}, v{m2}, v{mo}')
    for k in range(2):
        for i in range(4):
            re_, im_ = B1+k*8+i, B1+k*8+4+i
            r(f'v_cndmask_b32 v{re_+16}, v{re_}, v{im_}, s[4:5]'); r(f'v_cndmask_b32 v{im_+16}, v{im_}, v{re_}, s[4:5]')
            r(f'v_xor_b32 v{re_+16}, v{m2}, v{re_+16}'); r(f'v_xor_b32 v{im_+16}, v{m}, v{im_+16}')
    r(f'v_mul_f32 v{step}, {F(-1/2048)}, v{fk}'); r(f'v_mul_f32 v{base}, v{fg4}, v{step}')
    sincos4(r, base, step, 0, tw1c, tw1s); sincos4(r, base, step, 16, tw1c+4, tw1s+4)
    for j in range(0, 8, 2):
        r(f'v_pk_mul_f32 {V(tw1c+j,2)}, {V(tw1c+j,2)}, s[{sSC}:{sSC+1}]'); r(f'v_pk_mul_f32 {V(tw1s+j,2)}, {V(tw1s+j,2)}, s[{sSC}:{sSC+1}]')
    r(f'v_mul_f32 v{step}, {F(1/64)}, v{fk}'); r(f'v_mul_f32 v{base}, v{fg4}, v{step}')
    for k in range(2):
        sincos4(r, base, step, 16*k, c, s); mat6(r, F64+6*k, c, s)
    for j in range(12): r(f'v_xor_b32 v{F64+12+j}, v{mo}, v{F64+j}')
    pend = list(r.l)
    def fill(n):
        while n > 0 and pend:
            x = pend.pop(0)
            for y in (x if isinstance(x, list) else [x]): a(y)
            n -= 1
    print('H const entries', len(pend), file=sys.stderr)
    def readout():
        for j in range(4):
            a(f'ds_read2st64_b32 {V(P+4*j,2)}, v{aO+j} offset0:0 offset1:17'); a(f'ds_read2st64_b32 {V(P+4*j+2,2)}, v{aO+j} offset0:34 offset1:51')
        a(f'ds_read2st64_b32 {V(Wt,2)}, v{stp} offset0:0 offset1:17'); a(f'ds_read2st64_b32 {V(Wt+2,2)}, v{stp} offset0:34 offset1:51')
        a(f's_mul_i32 s{sT}, s{sP}, {ZSTRIDE}'); a(f's_lshl_b32 s{sT+1}, s{sW4}, 12'); a(f's_add_u32 s{sT+1}, s{sT}, s{sT+1}'); a(f's_add_u32 s{sT}, s{sT}, 16384')
        for j in range(4):
            a(LG(8-2*j))
            a(f'buffer_store_dwordx4 {V(P+4*j,4)}, v{vL16}, {SR(sWS)}, s{sT+1} offen offset:{j*1024} sc1')
        Lx = a.newlabel('x')
        a(f's_cmp_lg_u32 s{sW4}, 0'); a(f's_cbranch_scc1 {Lx}')
        a('s_waitcnt lgkmcnt(0)'); a('s_mov_b64 exec, 3')
        a(f'buffer_store_dwordx4 {V(Wt,4)}, v{vL16}, {SR(sWS)}, s{sT} offen sc1')
        a('s_mov_b64 exec, -1')
        a(f's_cmp_ge_u32 s{sP}, 34'); a(f's_cbranch_scc1 {Lx}')
        for j in range(4): a(f'v_mov_b32 v{tmp+j}, 0')
        a(f's_lshl_b32 s{sT}, s{sP}, 10'); a(f's_add_u32 s{sT}, s{sT}, {WS_KV}')
        a(f'buffer_store_dwordx4 {V(tmp,4)}, v{vL16}, {SR(sWS)}, s{sT} offen sc1'); a('s_nop 1')
        a.label(Lx)
        ST('zst')
    per = opt('hfill', 32)
    FB = opt('fb', 3)
    PI = opt('pi', 5)
    sPo = sT+2; sMs = sT+3
    a(f's_lshl_b32 s{sPo}, s{sXCD}, 13'); a(f's_lshl_b32 s{sT+1}, s{sW4}, 10'); a(f's_add_u32 s{sPo}, s{sPo}, s{sT+1}'); a(f's_add_u32 s{sPo}, s{sPo}, {WS_F1}')
    a(f's_mul_i32 s{sMs}, s{sW4}, {64*ZSTRIDE}'); a(f's_lshl_b32 s{sT+1}, s{sP}, 6'); a(f's_add_u32 s{sMs}, s{sMs}, s{sT+1}')
    def msgs():
        for j in range(4):
            if j: a(f's_add_u32 s{sMs}, s{sMs}, {16*ZSTRIDE}')
            a(f'buffer_load_dwordx4 {V(IN+4*j,4)}, v{vA}, {SR(sWS)}, s{sMs} offen sc1')
        arrive(a, 3)
    poll = f'buffer_load_dword v{vPoll}, v{vF}, {SR(sWS)}, s{sPo} offen sc1'
    WI = opt('wi', 0)
    for cch in range(7):
        if cch == FB: a('s_waitcnt vmcnt(0)')
        ST(f'_hb{cch}')
        a('s_barrier')
        ST(f'_hc{cch}')
        if cch in (1, 2, 4, 6): ST(f'B{cch}')
        if cch == FB:
            Lf = a.newlabel('f')
            a(f's_cmp_lg_u32 s{sW4}, 0'); a(f's_cbranch_scc1 {Lf}'); flag_store(a, WS_F1, sP); a.label(Lf)
        if cch == PI: a(poll)
        if cch == WI+1: readout()
        if cch % 3 < 2: a(f'ds_read_b128 {V(X,4)}, v{aGx} offset:{(cch%3)*SLOT}')
        else: a(f'v_add_u32 v{tmp}, {2*SLOT}, v{aGx}'); a(f'ds_read_b128 {V(X,4)}, v{tmp}')
        a(f'ds_read_b128 {V(X+4,4)}, v{aGw} offset:{cch*128}')
        if cch == 6:
            Ll = a.newlabel('late')
            a(f's_mov_b32 s{sCNT}, 0x20000')
            a('s_waitcnt vmcnt(0)')
            a(f'v_cmp_ne_u32 vcc, s{sTAG}, v{vPoll}'); a('s_nop 4'); a(f's_cbranch_vccnz {Ll}')
            msgs()
            a(f's_mov_b32 s{sCNT}, 0')
            a.label(Ll)
            fill(opt('h6', 16))
        elif cch == 0: fill(opt('h0', 56))
        elif cch != WI+1: fill(per)
        if cch == WI: wprep()
        a('s_waitcnt lgkmcnt(0)')
        for j in range(4): a(f'v_dot2_f32_bf16 v{gacc}, v{X+j}, v{X+4+j}, v{gacc}')
    a('s_barrier')
    ST('B7')
    a(f'ds_read_b128 {V(X,4)}, v{aGx} offset:{(7%3)*SLOT}'); a(f'ds_read_b128 {V(X+4,4)}, v{aGw} offset:{7*128}')
    Lp = a.newlabel('p'); Lq = a.newlabel('q'); Lok = a.newlabel('ok')
    a(f's_cmp_eq_u32 s{sCNT}, 0'); a(f's_cbranch_scc1 {Lok}')
    a.label(Lp)
    a(poll)
    a(f's_sub_u32 s{sCNT}, s{sCNT}, 1'); a(f's_cbranch_scc1 {Lq}')
    a('s_waitcnt vmcnt(0)')
    a(f'v_cmp_ne_u32 vcc, s{sTAG}, v{vPoll}'); a('s_nop 4'); a(f's_cbranch_vccnz {Lp}')
    a.label(Lq)
    msgs()
    a.label(Lok)
    a(f's_cmp_eq_u32 s{sP}, 0'); a('s_cbranch_scc1 L_sp3')
    a.label('L_sp3r')
    fill(10000)
    a('s_waitcnt lgkmcnt(0)')
    for j in range(4): a(f'v_dot2_f32_bf16 v{gacc}, v{X+j}, v{X+4+j}, v{gacc}')
    ST('c2')
    for j in range(4):
        a(f's_waitcnt vmcnt({3-j})')
        a(f'ds_write_b128 v{aW}, {V(IN+4*j,4)} offset:{(j&1)*4096 + (j>>1)*512}')
    arrive(a, 4); sync_wait(a, GRP_H, 4)
    ST('in')
    Wv = R.alloc(8); wc = R.alloc(8); wsn = R.alloc(8)
    for n in range(8): a(f'ds_read_b128 {V(IN+4*n,4)}, v{aI} offset:{n*1024}')
    for t in range(2): a(f'ds_read_b128 {V(Wv+4*t,4)}, v{aWr} offset:{t*256}')
    for t in range(2):
        for k in range(4):
            n = t*4+k
            a(LG(9-n))
            a(f'{M16} {V(Dr+4*t,4)}, {V(IN+4*n,4)}, {V(B1+8*k,4)}, {"0" if k==0 else V(Dr+4*t,4)}')
            a(f'{M16} {V(Di+4*t,4)}, {V(IN+4*n,4)}, {V(B1+8*k+4,4)}, {"0" if k==0 else V(Di+4*t,4)}')
    for t in range(2): cmul_pack(a, Dr+4*t, Di+4*t, tw1c+4*t, tw1s+4*t, X+4*t, tmp)
    for t in range(2):
        for u in range(2):
            T = F32T + (u*2+t)*6
            a(f'{M16} {V(Dr+4*u,4)}, {V(T+2,4)}, {V(X+4*t,4)}, {"0" if t==0 else V(Dr+4*u,4)}')
            a(f'{M16} {V(Di+4*u,4)}, {V(T,4)}, {V(X+4*t,4)}, {"0" if t==0 else V(Di+4*u,4)}')
    a('s_waitcnt lgkmcnt(0)')
    a(f's_cmp_eq_u32 s{sP}, 0'); a('s_cbranch_scc1 L_sp2')
    for j in range(8):
        a(f'v_lshlrev_b32 v{wc+j}, 16, v{Wv+j}'); a(f'v_and_b32 v{wsn+j}, 0xffff0000, v{Wv+j}')
    for u in range(2): cmul_pack(a, Dr+4*u, Di+4*u, wc+4*u, wsn+4*u, X+4*u, tmp, conj_out=True)
    a.label('L_sp2r')
    for u in range(2):
        for t in range(2):
            T = F32T + (t*2+u)*6
            a(f'{M16} {V(Dr+4*t,4)}, {V(X+4*u,4)}, {V(T+2,4)}, {"0" if u==0 else V(Dr+4*t,4)}')
            a(f'{M16} {V(Di+4*t,4)}, {V(X+4*u,4)}, {V(T,4)}, {"0" if u==0 else V(Di+4*t,4)}')
    for t in range(2):
        cmul_pack(a, Dr+4*t, Di+4*t, tw2c+4*t, tw2s+4*t, X+4*t, tmp)
        a(f'ds_write_b128 v{aE}, {V(X+4*t,4)} offset:{t*4096}')
    ST('_e0')
    arrive(a, 7); sync_wait(a, GRP_H, 7)
    ST('_e1')
    for n in range(8): a(f'ds_read_b128 {V(IN+4*n,4)}, v{aI} offset:{L_EX-L_IN + n*1024}')
    for t in range(2):
        for k in range(4):
            n = t*4+k; T = F64 + 6*k
            a(LG(7-n))
            a(f'{M16} {V(Dr+4*t,4)}, {V(IN+4*n,4)}, {V(T+2,4)}, {"0" if k==0 else V(Dr+4*t,4)}')
            a(f'{M16} {V(Di+4*t,4)}, {V(IN+4*n,4)}, {V(T,4)}, {"0" if k==0 else V(Di+4*t,4)}')
    a(f's_lshl_b32 s{sT}, s{sW4}, 19'); a(f's_lshl_b32 s{sT+1}, s{sP}, 7'); a(f's_add_u32 s{sT}, s{sT}, s{sT+1}'); a(f's_add_u32 s{sT}, s{sT}, {WS_Y}')
    a(f's_add_u32 s{sT+1}, s{sT}, {8*32768}')
    for t in range(2):
        a(f'v_cvt_pk_bf16_f32 v{X+4*t}, v{Dr+4*t}, v{Dr+4*t+1}'); a(f'v_cvt_pk_bf16_f32 v{X+4*t+1}, v{Dr+4*t+2}, v{Dr+4*t+3}')
        a(f'v_cvt_pk_bf16_f32 v{X+4*t+2}, v{Di+4*t}, v{Di+4*t+1}'); a(f'v_cvt_pk_bf16_f32 v{X+4*t+3}, v{Di+4*t+2}, v{Di+4*t+3}')
        a(f'ds_write_b128 v{aO1 if t==0 else aO2}, {V(X+4*t,4)}')
    a(f'ds_read_b128 {V(IN,4)}, v{aOr}'); a(f'ds_read_b128 {V(IN+4,4)}, v{aOr} offset:1024')
    a(LG(1)); a(f'buffer_store_dwordx4 {V(IN,4)}, v{vY}, {SR(sWS)}, s{sT} offen sc1')
    a('s_waitcnt lgkmcnt(0)'); a(f'buffer_store_dwordx4 {V(IN+4,4)}, v{vY}, {SR(sWS)}, s{sT+1} offen sc1')
    ST('yst')
    a(f'v_add_f32_dpp v{gacc}, v{gacc}, v{gacc} quad_perm:[1,0,3,2] {dp}')
    a(f'v_add_f32_dpp v{gacc}, v{gacc}, v{gacc} quad_perm:[2,3,0,1] {dp}')
    a(f'v_add_f32_dpp v{gacc}, v{gacc}, v{gacc} row_half_mirror {dp}')
    a(f'v_lshrrev_b32 v{t0}, 3, v0'); a(f's_lshl_b32 s{sT}, s{sW4}, 5'); a(f's_add_u32 s{sT}, s{sT}, {L_GP}'); a(f'v_lshl_add_u32 v{t0}, v{t0}, 2, s{sT}')
    a(f'v_cvt_pk_bf16_f32 v{gacc}, v{gacc}, v{gacc}'); a(f'v_and_b32 v{gacc}, 0xffff0000, v{gacc}')
    a(f'v_mul_f32 v{gacc}, {F(-LOG2E)}, v{gacc}'); a(f'v_exp_f32 v{gacc}, v{gacc}'); a(f'v_add_f32 v{gacc}, 1.0, v{gacc}'); a(f'v_rcp_f32 v{gacc}, v{gacc}')
    a(f'v_cvt_pk_bf16_f32 v{gacc}, v{gacc}, v{gacc}'); a(f'v_and_b32 v{gacc}, 0xffff0000, v{gacc}')
    a(f'ds_write_b32 v{t0}, v{gacc}')
    def hook(i):
        if i == opt('hsig', 16):
            a('s_waitcnt vmcnt(0)'); signal_flag(a, 36, 3, WS_FY, sP); ST('fy')
    fin_table(a, hook)
    ST('tab')
    a('s_waitcnt lgkmcnt(0)')
    pull_wo(a, 0)
    SP.update(locals())
    return R.hi

def gen_special(a):
    g = SP
    t0, t1, B1 = [g[k] for k in ('t0','t1','B1')]
    IN, Dr, Di, Wv, tmp, wc, wsn, X, vl15, aWr = [g[k] for k in ('IN','Dr','Di','Wv','tmp','wc','wsn','X','vl15','aWr')]
    a.label('L_sp3'); a.hist = []
    u0, u1 = Wv, Wv+1
    a(f'v_mul_u32_u24 v{u1}, {ZSTRIDE}, v0'); a(f's_mul_i32 s{sT+6}, s{sW4}, {64*ZSTRIDE}'); a(f's_add_u32 s{sT+6}, s{sT+6}, {WS_Z+16384}')
    a(f'buffer_load_dwordx4 {V(IN+16,4)}, v{u1}, {SR(sWS)}, s{sT+6} offen sc1'); a(f'buffer_load_dwordx4 {V(IN+20,4)}, v{u1}, {SR(sWS)}, s{sT+6} offen offset:16 sc1')
    a(f'v_bfe_u32 v{u0}, v0, 4, 1'); a(f'v_lshlrev_b32 v{u0}, 12, v{u0}'); a(f'v_lshl_add_u32 v{u0}, v{vl15}, 4, v{u0}')
    a(f'v_lshrrev_b32 v{u1}, 5, v0'); a(f'v_lshl_add_u32 v{u0}, v{u1}, 9, v{u0}')
    a(f's_lshl_b32 s{sT+6}, s{sW4}, 10'); a(f's_add_u32 s{sT+6}, s{sT+6}, {L_EX}'); a(f'v_add_u32 v{u0}, s{sT+6}, v{u0}')
    a('s_waitcnt vmcnt(0)')
    a(f'ds_write_b128 v{u0}, {V(IN+16,4)}'); a(f'ds_write_b128 v{u0}, {V(IN+20,4)} offset:256')
    a('s_branch L_sp3r')
    a.label('L_sp2'); a.hist = []
    Bv = IN; bc = IN+8; bs = IN+16; Nr = B1; Ni = B1+8; Yr = B1+16; Yi = B1+24; t2 = IN+24
    for t in range(2): a(f'ds_read_b128 {V(Bv+4*t,4)}, v{aWr} offset:{L_EX-(L_IN+8192)+t*256}')
    a(f'v_lshrrev_b32 v{t0}, 4, v0'); a(f's_lshl_b32 s{sT}, s{sW4}, 4'); a(f'v_lshl_add_u32 v{t0}, v{t0}, 8, v{vl15}'); a(f'v_add_u32 v{t0}, s{sT}, v{t0}')
    a(f'v_sub_u32 v{t1}, {2047-64*19}, v{t0}'); a(f'v_lshlrev_b32 v{t1}, 2, v{t1}'); a(f'v_add_u32 v{t1}, {L_IN}, v{t1}')
    a(f'v_subrev_u32 v{t0}, 1, v{t0}'); a(f'v_and_b32 v{t2}, 2047, v{t0}')
    a(f'v_lshlrev_b32 v{t0}, 2, v{t0}'); a(f'v_add_u32 v{t0}, {L_IN}, v{t0}'); a(f'v_lshlrev_b32 v{t2}, 2, v{t2}'); a(f'v_add_u32 v{t2}, {L_IN}, v{t2}')
    a('s_waitcnt lgkmcnt(0)')
    arrive(a, 5); sync_read(a, GRP_H)
    for j in range(8):
        a(f'v_lshlrev_b32 v{wc+j}, 16, v{Wv+j}'); a(f'v_and_b32 v{wsn+j}, 0xffff0000, v{Wv+j}')
    sync_check(a, GRP_H, 5)
    for j in range(8):
        o = 16*(j//4) + j%4
        a(f'ds_write2st64_b32 v{t2 if j==0 else t0}, v{Dr+j}, v{Di+j} offset0:{o} offset1:{o+32}')
    arrive(a, 6); sync_read(a, GRP_H)
    for j in range(8):
        a(f'v_lshlrev_b32 v{bc+j}, 16, v{Bv+j}'); a(f'v_and_b32 v{bs+j}, 0xffff0000, v{Bv+j}')
    sync_check(a, GRP_H, 6)
    for j in range(0, 8, 2):
        o = 19 - 16*(j//4) - j%4
        a(f'ds_read2st64_b32 {V(Nr+j,2)}, v{t1} offset0:{o} offset1:{o-1}'); a(f'ds_read2st64_b32 {V(Ni+j,2)}, v{t1} offset0:{o+32} offset1:{o+31}')
    ng = 'neg_lo:[1,0,0] neg_hi:[1,0,0]'
    for j in range(0, 8, 2):
        a(f'v_pk_mul_f32 {V(Yr+j,2)}, {V(Dr+j,2)}, {V(wc+j,2)}'); a(f'v_pk_mul_f32 {V(Yi+j,2)}, {V(Dr+j,2)}, {V(wsn+j,2)}')
    for j in range(0, 8, 2):
        a(f'v_pk_fma_f32 {V(Yr+j,2)}, {V(Di+j,2)}, {V(wsn+j,2)}, {V(Yr+j,2)} {ng}'); a(f'v_pk_fma_f32 {V(Yi+j,2)}, {V(Di+j,2)}, {V(wc+j,2)}, {V(Yi+j,2)}')
    a('s_waitcnt lgkmcnt(0)')
    for j in range(0, 8, 2):
        a(f'v_pk_fma_f32 {V(Yr+j,2)}, {V(Nr+j,2)}, {V(bc+j,2)}, {V(Yr+j,2)}'); a(f'v_pk_fma_f32 {V(Yi+j,2)}, {V(Nr+j,2)}, {V(bs+j,2)}, {V(Yi+j,2)}')
    for j in range(0, 8, 2):
        a(f'v_pk_fma_f32 {V(Yr+j,2)}, {V(Ni+j,2)}, {V(bs+j,2)}, {V(Yr+j,2)}'); a(f'v_pk_fma_f32 {V(Yi+j,2)}, {V(Ni+j,2)}, {V(bc+j,2)}, {V(Yi+j,2)} {ng}')
    for u in range(2):
        a(f'v_cvt_pk_bf16_f32 v{X+4*u}, v{Yr+4*u}, v{Yr+4*u+1}'); a(f'v_cvt_pk_bf16_f32 v{X+4*u+1}, v{Yr+4*u+2}, v{Yr+4*u+3}')
        a(f'v_cvt_pk_bf16_f32 v{X+4*u+2}, -v{Yi+4*u}, -v{Yi+4*u+1}'); a(f'v_cvt_pk_bf16_f32 v{X+4*u+3}, -v{Yi+4*u+2}, -v{Yi+4*u+3}')
    a('s_nop 1'); a('s_branch L_sp2r')

def gen_G0(a, ST):
    R = Regs(186)
    vd = R.alloc(6); t0, t1 = R.alloc(), R.alloc()
    srdc(a, sWQ); ids_gemm(a)
    dma_setup(a, vd, t0, t1)
    B0 = dma_group(0, vd)
    for l in B0[0][:-1]: a(l)
    a('s_waitcnt lgkmcnt(0)'); ST('karg')
    a(f's_load_dword s{sTAG}, s[{sWS}:{sWS+1}], {WS_GEN}')
    a(B0[0][-1])
    for b in B0[1:]: emit(a, b)
    return R, vd, t0, t1

def gen_G(a, ST, G):
    R, vd, t0, t1 = G
    bf = 10; NB = 3; BS = 28; tmp = 94; misc = 110; accK = 138; accV = 154; accQ = 170
    late_common(a)
    n_iss = 8
    rest = dma_group(1, vd)
    while rest and n_iss < opt('w0', 10): emit(a, rest.pop(0)); n_iss += 1
    aA = R.alloc(4); aB = R.alloc(2)
    a(f'v_bfe_u32 v{t1}, v0, 1, 3'); a(f'v_lshrrev_b32 v{t0}, 4, v0'); a(f'v_xor_b32 v{t1}, v{t1}, v{t0}'); a(f'v_lshlrev_b32 v{t1}, 4, v{t1}')
    a(f'v_and_b32 v{aA}, 15, v0'); a(f'v_lshl_add_u32 v{aA}, v{aA}, 7, v{t1}')
    a(f'v_xor_b32 v{aA+1}, 64, v{aA}'); a(f'v_add_u32 v{aA+2}, 65536, v{aA}'); a(f'v_add_u32 v{aA+3}, 65536, v{aA+1}')
    a(f'v_lshrrev_b32 v{t0}, 5, v0'); a(f'v_lshlrev_b32 v{aB}, 13, v{t0}')
    a(f'v_bfe_u32 v{t1}, v0, 4, 1'); a(f'v_lshl_add_u32 v{aB}, v{t1}, 10, v{aB}')
    a(f'v_bfe_u32 v{t1}, v0, 2, 2'); a(f'v_lshl_add_u32 v{aB}, v{t1}, 7, v{aB}')
    a(f'v_bfe_u32 v{t1}, v0, 3, 2'); a(f'v_xor_b32 v{t1}, s{sW4}, v{t1}'); a(f'v_lshl_add_u32 v{aB}, v{t1}, 5, v{aB}')
    a(f'v_and_b32 v{t1}, 3, v0'); a(f'v_lshl_add_u32 v{aB}, v{t1}, 3, v{aB}')
    a(f'v_add_u32 v{aB+1}, 65536, v{aB}')
    a(f's_mov_b32 s{sL2E}, {F(LOG2E)}'); a(f's_mov_b32 s{sL2E+1}, {F(LOG2E)}')
    aK, aR, vAt, vPq, vTo, vwo = R.alloc(), R.alloc(), R.alloc(), R.alloc(), R.alloc(), R.alloc(2)
    a(f's_mul_i32 s{sT}, s{sW4}, 1088'); a(f's_add_u32 s{sT+1}, s{sT}, {L_KVR}')
    a(f'v_lshrrev_b32 v{t0}, 4, v0'); a(f'v_mul_u32_u24 v{t0}, 272, v{t0}'); a(f'v_and_b32 v{t1}, 0xf0, v{vL16}'); a(f'v_add3_u32 v{aK}, v{t0}, v{t1}, s{sT+1}')
    a(f'v_lshlrev_b32 v{vAt}, 2, v0'); a(f'v_add_u32 v{aR}, s{sT+1}, v{vAt}')
    a(f'v_bfe_u32 v{t0}, v0, 4, 1'); a(f'v_lshl_add_u32 v{vPq}, v{t0}, 9, v{t1}'); a(f'v_lshrrev_b32 v{t0}, 5, v0'); a(f'v_lshl_add_u32 v{vPq}, v{t0}, 8, v{vPq}')
    a(f'v_lshrrev_b32 v{t0}, 4, v0'); a(f'v_lshlrev_b32 v{vwo}, 5, v{t0}'); a(f'v_xor_b32 v{t1}, v{t1}, v{vwo}')
    a(f'v_lshl_add_u32 v{vwo}, v{t0}, 10, v{t1}'); a(f'v_xor_b32 v{vwo+1}, 128, v{vwo}'); a(f'v_add_u32 v{vwo+1}, 3072, v{vwo+1}')
    sA0, sFK, sPq, sWu, sWo, sTo = sT, sCNT, sT+2, sT+3, sT+4, sT+5
    a(f's_mul_i32 s{sT+1}, s{sHG}, 4352'); a(f's_add_u32 s{sA0}, s{sT}, s{sT+1}'); a(f's_add_u32 s{sA0}, s{sA0}, {WS_KV}')
    a(f's_lshl_b32 s{sPq}, s{sROW0}, 10'); a(f's_lshl_b32 s{sT+1}, s{sHG}, 12'); a(f's_add_u32 s{sPq}, s{sPq}, s{sT+1}')
    a(f's_lshl_b32 s{sT+1}, s{sW4}, 10'); a(f's_add_u32 s{sPq}, s{sPq}, s{sT+1}'); a(f's_add_u32 s{sPq}, s{sPq}, {WS_PQ}')
    a(f's_lshl_b32 s{sT+1}, s{sHL}, 8'); a(f's_add_u32 s{sWo}, s{sLB}, s{sT+1}')
    a(f's_lshr_b32 s{sTo}, s{sIDX}, 2')
    a(f's_lshl_b32 s{sFK}, s{sHG}, 5'); a(f's_lshr_b32 s{sT+1}, s{sROW0}, 6'); a(f's_add_u32 s{sFK}, s{sFK}, s{sT+1}')
    ones = misc+16
    for j in range(4): a(f'v_mov_b32 v{ones+j}, 0x3f803f80')
    a('s_waitcnt lgkmcnt(0)')
    a(f's_add_u32 s{sTAG}, s{sTAG}, {TAGC}')
    ST('iss')
    def buf(c, k): return bf + ((c*2+k) % NB)*BS
    def rdlist(c, k):
        slot = c % 3; b = buf(c, k); L = []
        def tr(dst, ad):
            q = ad // 65536; L.append(f'ds_read_b64_tr_b16 {V(dst,2)}, v{aB+q} offset:{ad-q*65536}')
        def xr(t):
            ad = slot*SLOT + t*BLK + oX; q = ad // 65536
            L.append(f'ds_read_b128 {V(b+4*t,4)}, v{aA+2*q+k} offset:{ad-q*65536}')
        def wr(i):
            for jj in range(2): tr(b+16+4*i+2*jj, slot*SLOT + 2*k*BLK + (oK, oV, oQ)[i] + jj*512)
        wr(0); xr(0); xr(1); wr(1); xr(2); xr(3); wr(2)
        if opt('nord', 0) and 0 < c < 7: L = ['s_nop 0']*10
        return L
    def mm(c, k, i, t):
        if opt('nomm', 0) and 0 < c < 7: return
        b = buf(c, k); acc = (accK, accV, accQ)[i] + 4*t; C = "0" if (c == 0 and k == 0) else V(acc,4)
        if i < 2: a(f'{M16} {V(acc,4)}, {V(b+4*t,4)}, {V(b+16+4*i,4)}, {C}')
        else: a(f'{M16} {V(acc,4)}, {V(b+24,4)}, {V(b+4*t,4)}, {C}')
    nwo = [0]
    def wo_dma(thr=None):
        i = nwo[0]
        if i >= 32: return
        u, ii = WO_ORDER[i//2], i & 1
        if ii == 0:
            a(f's_add_u32 m0, s{sLW}, {wo_unit(u)}')
            a(f's_add_u32 s{sWu}, s{sTo}, {u & 7}'); a(f's_and_b32 s{sWu}, s{sWu}, 7')
            if u >= 8: a(f's_or_b32 s{sWu}, s{sWu}, 8')
            a(f's_lshl_b32 s{sWu}, s{sWu}, 15'); a(f's_add_u32 s{sWu}, s{sWu}, s{sWo}')
        if thr is not None: a(f's_waitcnt vmcnt({thr})')
        a(f'buffer_load_dwordx4 v{vwo+ii}, {SR(sWO)}, s{sWu} offen' + (' offset:1024' if ii else '') + ' lds')
        nwo[0] += 1
    order = [(i, t) for i in range(3) for t in range(4)]
    LAG = 6
    for c in range(8):
        ST(f'_ga{c}')
        a(f's_waitcnt vmcnt({n_iss-8 if c == 0 else (8 if c < 7 else 0)}) lgkmcnt(0)')
        ST(f'_gb{c}')
        a('s_barrier')
        ST(f'_gc{c}'); ST(f'_T{c}')
        if c in (0, 1, 2, 4, 7): ST(f'B{c}')
        D = dma_group(c+2, vd) if c+2 < 8 else []
        infl = 8
        if c == 0: D = rest + D; infl = n_iss-8
        nd = [0]
        def dma():
            if nd[0] < len(D):
                emit(a, D[nd[0]], WIN-1 if nd[0] >= WIN-infl else None); nd[0] += 1
        last = c == 7
        for l in rdlist(c, 0): a(l)
        r1 = rdlist(c, 1)
        for l in r1[:5]: a(l)
        if last:
            for _ in range(opt('wa', 2)): wo_dma()
        if c > 0:
            for n, (i, t) in enumerate(order[12-LAG:]):
                mm(c-1, 1, i, t)
                if n % 3 == 0: dma()
        else:
            for _ in range(4): dma()
        a(LG(5))
        for n, (i, t) in enumerate(order[:8] if last else order):
            mm(c, 0, i, t)
            if n < 5: a(r1[5+n])
            elif n % 2 == 1: dma()
        a('s_waitcnt lgkmcnt(0)')
        for n, (i, t) in enumerate(order[:8] if last else order[:12-LAG]):
            mm(c, 1, i, t)
            if n % 3 == 0: dma()
        while nd[0] < len(D): dma()
    arrive(a, 9)
    sync_read(a, GRP_H)
    for k in range(2):
        for t in range(4): mm(7, k, 2, t)
    pk = misc; vv = misc+8; Dk = misc+20; Dz = misc+24
    rr = Rec(); phi_pack(rr, accK, 16, pk, tmp)
    WB = opt('wb', 2)
    for n, l in enumerate(rr.l):
        a(l)
        if WB and n % (len(rr.l)//WB) == 4: wo_dma()
    for j in range(8): a(f'v_cvt_pk_bf16_f32 v{vv+j}, v{accV+2*j}, v{accV+2*j+1}')
    a(f'{M16} {V(Dk,4)}, {V(pk,4)}, {V(vv,4)}, 0'); a(f'{M16} {V(Dz,4)}, {V(pk,4)}, {V(ones,4)}, 0')
    a(f'{M16} {V(Dk,4)}, {V(pk+4,4)}, {V(vv+4,4)}, {V(Dk,4)}'); a(f'{M16} {V(Dz,4)}, {V(pk+4,4)}, {V(ones,4)}, {V(Dz,4)}')
    ST('kvm')
    for j in range(0, 16, 2): a(f'v_pk_mul_f32 {V(tmp+j,2)}, {V(accQ+j,2)}, s[{sL2E}:{sL2E+1}]')
    a(f'ds_write_b128 v{aK}, {V(Dk,4)}')
    a('s_mov_b32 exec_lo, 0x00010001'); a('s_mov_b32 exec_hi, 0x00010001')
    a(f'ds_write_b128 v{aK}, {V(Dz,4)} offset:256')
    a('s_mov_b64 exec, -1')
    Pp = accV
    a(f'ds_read2st64_b32 {V(Pp,2)}, v{aR} offset0:0 offset1:1'); a(f'ds_read2st64_b32 {V(Pp+2,2)}, v{aR} offset0:2 offset1:3'); a(f'ds_read_b32 v{Pp+4}, v{aR} offset:1024')
    for j in range(6):
        a(f'v_exp_f32_e64 v{tmp+j}, v{tmp+j} clamp'); a(f'v_max_f32 v{accQ+j}, {F(1e-6)}, v{accQ+j}')
    sync_check(a, GRP_H, 3)
    for rnd in range(4): a(f'buffer_atomic_add_f32 v{Pp+rnd}, v{vAt}, {SR(sWS)}, s{sA0} offen' + (f' offset:{rnd*256}' if rnd else ''))
    a('s_mov_b64 exec, 0xffff'); a(f'buffer_atomic_add_f32 v{Pp+4}, v{vAt}, {SR(sWS)}, s{sA0} offen offset:1024'); a('s_mov_b64 exec, -1')
    arrive(a, 11)
    ST('atom')
    for j in range(6, 16):
        a(f'v_exp_f32_e64 v{tmp+j}, v{tmp+j} clamp'); a(f'v_max_f32 v{accQ+j}, {F(1e-6)}, v{accQ+j}')
    for j in range(0, 16, 2): a(f'v_pk_add_f32 {V(tmp+j,2)}, {V(tmp+j,2)}, {V(accQ+j,2)}')
    for j in range(0, 16, 2): a(f'v_cvt_pk_bf16_f32 v{accK+j//2}, v{tmp+j}, v{tmp+j+1}')
    for rt in range(2):
        a(f'v_permlane32_swap_b32 v{accK+4*rt}, v{accK+4*rt+2}'); a(f'v_permlane32_swap_b32 v{accK+4*rt+1}, v{accK+4*rt+3}')
    a(f'buffer_store_dwordx4 {V(accK,4)}, v{vPq}, {SR(sWS)}, s{sPq} offen sc1')
    a(f's_add_u32 s{sPq}, s{sPq}, 32768')
    a(f'buffer_store_dwordx4 {V(accK+4,4)}, v{vPq}, {SR(sWS)}, s{sPq} offen sc1')
    ST('qst')
    WW = opt('ww', 10); NS = opt('ns', 8)
    def hook(i):
        if nwo[0] == 22 and not hook.synced:
            sync_wait(a, GRP_H, 4); sync_wait(a, GRP_G, 11); hook.synced = True
        if i == NS:
            a(f's_waitcnt vmcnt({NS})'); signal_flag(a, 32, 3, WS_FK, sFK); ST('fk')
        wo_dma(WW-1 if i >= max(NS, WW) else None)
    hook.synced = False
    assert R.hi <= YL, R.hi
    fin_table(a, hook)
    ST('tab')
    a('s_waitcnt vmcnt(0) lgkmcnt(0)')
    pull_wo(a, 1)
    return R.hi

def poll32(a, vF, soff, dst, blocking, Lfail=None):
    if blocking:
        Lp = a.newlabel('p'); Lq = a.newlabel('q')
        a(f's_mov_b32 s{sCNT}, 0x20000')
        a.label(Lp)
        a(f'buffer_load_dword v{dst}, v{vF}, {SR(sWS)}, s{soff} offen sc1')
        a(f's_sub_u32 s{sCNT}, s{sCNT}, 1'); a(f's_cbranch_scc1 {Lq}')
        a('s_waitcnt vmcnt(0)')
        a(f'v_cmp_ne_u32 vcc, s{sTAG}, v{dst}'); a('s_nop 4'); a(f's_cbranch_vccnz {Lp}')
        a.label(Lq)

def gen_FIN(a, ST):
    t0, t1, vomg, aOw, aYw, aO, aE, aF, vOut, vKV, vF, vP = [FT+i for i in range(12)]
    vg = FT+12; aY = FT+14; c = FT+16; aO2 = FT+18
    a(f'v_and_b32 v{t0}, 31, v0'); a(f'v_lshlrev_b32 v{t1}, 2, v{t0}'); a(f'v_add_u32 v{vomg}, {L_GP}, v{t1}')
    a(f'ds_read_b32 v{vomg}, v{vomg}')
    a(f'v_and_b32 v{vF}, 60, v{t1}'); a(f'v_add_u32 v{vg}, {L_GP}, v{vF}'); a(f'ds_read2_b32 {V(vg,2)}, v{vg} offset0:0 offset1:16')
    a(f'v_and_b32 v{t1}, 16, v0'); a(f'v_lshl_add_u32 v{vF}, v{t1}, 4, v{vF}')
    a(f'v_lshrrev_b32 v{t1}, 5, v0'); a(f'v_mul_u32_u24 v{aE}, 272, v{t1}'); a(f'v_min_u32 v{vKV}, 16, v{t0}'); a(f'v_lshl_add_u32 v{vKV}, v{vKV}, 4, v{aE}')
    a(f's_lshl_b32 s{sT}, s{sWV}, 12'); a(f'v_add_u32 v{aOw}, s{sT}, v{vL16}')
    a(f'v_lshlrev_b32 v{t1}, 6, v{t1}'); a(f'v_xor_b32 v{aYw}, v{t1}, v{aOw}')
    a(f's_lshr_b32 s{sT+1}, s{sIDX}, 2'); a(f's_lshl_b32 s{sT}, s{sW4}, 1'); a(f's_sub_u32 s{sT}, s{sT}, s{sT+1}')
    for bb in range(2):
        if bb: a(f's_add_u32 s{sT}, s{sT}, 1')
        a(f's_and_b32 s{sT+1}, s{sT}, 7'); a(f's_lshl_b32 s{sT+2}, s{sKH}, 3'); a(f's_or_b32 s{sT+1}, s{sT+1}, s{sT+2}'); a(f's_lshl_b32 s{sT+1}, s{sT+1}, 11')
        a(f'v_add_u32 v{aO2+bb}, s{sT+1}, v{vL16}')
    a(f'v_and_b32 v{t0}, 15, v0'); a(f'v_lshrrev_b32 v{t1}, 4, v0')
    a(f'v_mul_u32_u24 v{aE}, {RS}, v{t0}'); a(f'v_lshl_add_u32 v{aE}, v{t1}, 4, v{aE}')
    a(f's_mul_i32 s{sT}, s{sKH}, {32*RS}'); a(f's_lshl_b32 s{sT+1}, s{sW4}, 7'); a(f's_add_u32 s{sT}, s{sT}, s{sT+1}'); a(f's_add_u32 s{sT}, s{sT}, {L_EP}'); a(f'v_add_u32 v{aE}, s{sT}, v{aE}')
    a(f's_lshl_b32 s{sT}, s{sKH}, 14')
    a(f'v_lshlrev_b32 v{aO}, 4, v{t0}'); a(f'v_lshl_add_u32 v{aO}, v{t1}, 9, v{aO}'); a(f'v_add_u32 v{aO}, s{sT}, v{aO}')
    a(f'v_lshl_add_u32 v{aY}, v{t1}, 9, s{sT}')
    a(f'v_bfe_u32 v{aF}, v0, 4, 1'); a(f'v_lshl_add_u32 v{aY}, v{aF}, 6, v{aY}')
    a(f'v_and_b32 v{aF}, 3, v0'); a(f'v_lshl_add_u32 v{aY}, v{aF}, 4, v{aY}')
    a(f'v_bfe_u32 v{aF}, v0, 3, 1'); a(f'v_lshl_add_u32 v{aY}, v{aF}, 7, v{aY}')
    a(f'v_bfe_u32 v{aF}, v0, 2, 1'); a(f'v_lshl_add_u32 v{aY}, v{aF}, 3, v{aY}')
    a(f'v_xor_b32 v{aY+1}, 64, v{aY}')
    a(f's_lshl_b32 s{sT}, s{sWV}, 2'); a(f'v_add_u32 v{t1}, s{sT}, v{t1}')
    a(f'v_mul_u32_u24 v{aF}, {RS}, v{t1}'); a(f'v_lshl_add_u32 v{aF}, v{t0}, 5, v{aF}'); a(f'v_add_u32 v{aF}, {L_EP}, v{aF}')
    a(f'v_lshlrev_b32 v{t1}, 10, v{t1}'); a(f'v_lshl_add_u32 v{vOut}, v{t0}, 4, v{t1}')
    a(f's_lshl_b32 s{sT}, s{sAT}, 15'); a(f's_lshl_b32 s{sT+1}, s{sWV}, 12'); a(f's_add_u32 s{sT+1}, s{sT}, s{sT+1}')
    a(f's_add_u32 s{sT+2}, s{sT+1}, {WS_PQ}'); a(f's_add_u32 s{sT+1}, s{sT+1}, {WS_Y}')
    a(f's_mul_i32 s{sT+3}, s{sWV}, 4352'); a(f's_add_u32 s{sT+3}, s{sT+3}, {WS_KV}')
    a(f's_lshl_b32 s{sT+4}, s{sHL}, 8'); a(f's_add_u32 s{sT+4}, s{sT+4}, s{sT}')
    a(f's_lshl_b32 s{sT+5}, s{sXCD}, 13'); a(f's_lshl_b32 s{sT+6}, s{sWV}, 9'); a(f's_add_u32 s{sT+5}, s{sT+5}, s{sT+6}')
    a(f's_add_u32 s{sT+6}, s{sT+5}, {WS_FY}'); a(f's_add_u32 s{sT+5}, s{sT+5}, {WS_FK}')
    ST('rdy')
    poll32(a, vF, sT+5, vP, True)
    ST('pk')
    for j in range(4):
        a('s_mov_b32 exec_lo, 0x0011ffff'); a('s_mov_b32 exec_hi, 0x0011ffff')
        for q in range(2): a(f'buffer_load_dwordx4 {V(KVF+8*j+4*q,4)}, v{vKV}, {SR(sWS)}, s{sT+3} offen offset:{j*1088+q*544} sc1')
        a('s_mov_b64 exec, -1')
        a(f'buffer_load_dwordx4 {V(PQ+4*j,4)}, v{vL16}, {SR(sWS)}, s{sT+2} offen offset:{j*1024} sc1')
    a(f'buffer_load_dword v{vP}, v{vF}, {SR(sWS)}, s{sT+6} offen sc1')
    a('s_waitcnt lgkmcnt(0)')
    a('s_barrier')
    a(f'v_mul_f32 v{vg}, {F(2.0**-19)}, v{vg}'); a(f'v_mul_f32 v{vg+1}, {F(2.0**-19)}, v{vg+1}')
    a(f'v_sub_f32 v{vomg}, 1.0, v{vomg}'); a(f'v_cvt_pk_bf16_f32 v{vomg}, v{vomg}, v{vomg}'); a(f'v_and_b32 v{vomg}, 0xffff0000, v{vomg}')
    def yloads():
        for j in range(4): a(f'buffer_load_dwordx4 {V(YL+4*j,4)}, v{vL16}, {SR(sWS)}, s{sT+1} offen offset:{j*1024} sc1')
    for j in range(4):
        D = ACA if j % 2 == 0 else ACB
        a(f's_waitcnt vmcnt({10-3*j})')
        for q in range(4): a(f'v_cvt_pk_bf16_f32 v{KVF+8*j+q}, v{KVF+8*j+2*q}, v{KVF+8*j+2*q+1}')
        a(f'{M32} {V(D,16)}, {V(KVF+8*j,4)}, {V(PQ+4*j,4)}, 0')
        if j > 0: fin_o(a, j-1, t0, c, vomg, aO2)
    fin_o(a, 3, t0, c, vomg, aO2)
    a('s_waitcnt vmcnt(0)')
    a(f'v_cmp_ne_u32 s[{sSC}:{sSC+1}], s{sTAG}, v{vP}')
    a('s_waitcnt lgkmcnt(0)'); a('s_barrier')
    ST('J3')
    Ll = a.newlabel('yl')
    a(f's_cmp_lg_u64 s[{sSC}:{sSC+1}], 0'); a(f's_cbranch_scc1 {Ll}')
    yloads()
    a.label(Ll)
    BF = KVF; PF = 3
    def part(rd, nrd, A, acc):
        for n in range(PF): rd(n)
        for n in range(8):
            b = BF + (n % 4)*8
            left = min(PF-1, 7-n)
            a(f's_waitcnt lgkmcnt({nrd*left})' if not (STAMP and n == 0) else 's_waitcnt lgkmcnt(0)')
            for i, (cu, su) in enumerate(((0,0),(0,1),(1,0),(1,1))):
                d = acc + 8*cu + 4*su
                a(f'{M16} {V(d,4)}, {V(A+8*n+4*cu,4)}, {V(b+4*su,4)}, {"0" if n==0 else V(d,4)}')
                if i == 0 and n+PF < 8: rd(n+PF)
    def rdo(n):
        for su in range(2): a(f'ds_read_b128 {V(BF+(n%4)*8+4*su,4)}, v{aO} offset:{L_O+n*2048+su*256}')
    def rdy(n):
        for su in range(2):
            for jj in range(2): a(f'ds_read_b64_tr_b16 {V(BF+(n%4)*8+4*su+2*jj,2)}, v{aY+su} offset:{L_Y+(16*n+2*jj)*128}')
    part(rdo, 2, WF, ACB)
    ST('bp')
    Lo = a.newlabel('yo')
    a(f's_cmp_eq_u64 s[{sSC}:{sSC+1}], 0'); a(f's_cbranch_scc1 {Lo}')
    poll32(a, vF, sT+6, vP, True)
    yloads()
    a.label(Lo)
    for j in range(4):
        a(f's_waitcnt vmcnt({3-j})'); a(f'ds_write_b128 v{aYw}, {V(YL+4*j,4)} offset:{L_Y+j*1024}')
    a('s_waitcnt lgkmcnt(0)'); a('s_barrier')
    ST('J3b')
    part(rdy, 4, TF, ACA)
    Lu = a.newlabel('u')
    a(f's_or_b32 s{sT}, s{sP}, s{sWV}'); a(f's_cbranch_scc1 {Lu}')
    a(f'v_mov_b32 v{t0}, s{sTAG}'); a(f'v_mov_b32 v{t1}, 0'); a(f's_mov_b32 s{sT}, {WS_GEN}'); a('s_mov_b64 exec, 1')
    a(f'buffer_store_dword v{t0}, v{t1}, {SR(sWS)}, s{sT} offen sc1'); a('s_mov_b64 exec, -1')
    a.label(Lu); a.fence(6)
    ST('_mm')
    for cu in range(2):
        for su in range(2):
            d = 8*cu + 4*su
            if opt('epi', 1) == 0:
                for r in (0, 2): a(f'v_pk_fma_f32 {V(ACB+d+r,2)}, {V(ACA+d+r,2)}, {V(vg,2)}, {V(ACB+d+r,2)} op_sel:[0,{su},0] op_sel_hi:[1,{su},1]')
                a('s_nop 3')
            else:
                for r in range(4): a(f'v_fmac_f32 v{ACB+d+r}, v{vg+su}, v{ACA+d+r}')
            a(f'ds_write_b128 v{aE}, {V(ACB+d,4)} offset:{su*16*RS+cu*64}')
    a('s_waitcnt lgkmcnt(0)'); a('s_barrier')
    ST('_j4')
    for kh in range(2):
        for q in range(2): a(f'ds_read_b128 {V(ACA+8*kh+4*q,4)}, v{aF} offset:{kh*32*RS+q*16}')
    a('s_waitcnt lgkmcnt(0)')
    for q in range(0, 8, 2): a(f'v_pk_add_f32 {V(ACA+q,2)}, {V(ACA+q,2)}, {V(ACA+8+q,2)}')
    for q in range(4): a(f'v_cvt_pk_bf16_f32 v{ACB+q}, v{ACA+2*q}, v{ACA+2*q+1}')
    a(f'buffer_store_dwordx4 {V(ACB,4)}, v{vOut}, {SR(sOUT)}, s{sT+4} offen')
    ST('end')
    stamp_flush(a, len(ST.names))

def fin_o(a, j, t0, c, vomg, aOw):
    D = ACA if j % 2 == 0 else ACB
    a(f'v_add_f32 v{t0}, {F(1e-6)}, v{D+8}'); a(f'v_rcp_f32 v{t0}, v{t0}'); a(f'v_mul_f32 v{c}, v{t0}, v{vomg}'); a(f'v_mul_f32 v{c+1}, v{t0}, v{vomg}')
    for q in range(0, 8, 2): a(f'v_pk_mul_f32 {V(D+q,2)}, {V(D+q,2)}, {V(c,2)}')
    for q in range(4): a(f'v_cvt_pk_bf16_f32 v{KVF+8*j+4+q}, v{D+2*q}, v{D+2*q+1}')
    a(f'ds_write_b128 v{aOw+j//2}, {V(KVF+8*j+4,4)} offset:{L_O+(j&1)*1024}')

if __name__ == '__main__':
    a = build()
    out = '; @launch grid=(256,1,1) block=(512,1,1) lds=163840\n.amdgcn_target "amdgcn-amd-amdhsa--gfx950"\n.text\n'
    out += '.p2align 12\n' + kernel_header(NAME) + a.text()
    out += f'.p2align 8\n.fill (33792 - (. - {NAME})) / 4, 4, 0xbf800000\n'
    out += '.section .rodata,"a"\n.p2align 6\n' + kernel_desc(NAME, 256, 102)
    open(sys.argv[1], 'w').write(out)
```

```python
import sys, math, os
sys.path.insert(0,'lib')
from asmgen import *
NAME='gated_mix__spectral_gfnet__linear_attn_block__prompt_kernel'
STAMP = int(os.environ.get('STAMP','0'))
STSEL = [x for x in os.environ.get('STSEL','').split(',') if x]
PROBE = os.environ.get('PROBE','')
OPT = dict(x.split('=') for x in os.environ.get('OPT','').split(',') if x)
def opt(k, d): return int(OPT.get(k, d))

WS_Z=0; ZSTRIDE=16640; WS_PQ=0x480000; WS_Y=0x680000; WS_KV=0x880000; WS_C=0x890000; C_F1=0; C_FK=32768; C_FY=65536; WS_B=0x88c000; WS_ST=0x8c0000; WS_SIZE=0x900000
HS=16384; BLK=4096; NH=7
def loc(c, part):
    h = 2*c + (0 if part in 'XK' else 1)
    return (h % NH)*HS + (2048 if part in 'XV' else 0)
SC=NH*HS; PS=1088
L_SY=SC; L_GP=SC+256; L_GW=SC+768; L_A=L_GW+2048; L_B=L_A+16384; L_XT=L_B+4*PS*4; L_END=L_XT+8192
L_P1X=L_A; L_WRAW=L_A+8192; L_IN=L_A; L_OT=L_A; L_PL=L_B; L_EX=L_B; L_KVR=L_B+8192
assert L_END <= 163840 and L_KVR+8704 <= L_XT and L_A % 256 == 0 and L_XT % 256 == 0, L_END
L_Y=0; L_O=32768; L_EP=65536; RS=528
LOG2E=1.4426950408889634
NREP=opt('nrep', 16)
sX,sWR,sWI,sWQ,sWO,sGW,sOUT,sWS = 8,12,16,20,24,28,32,36
sXCD,sIDX,sP,sHG,sROW0,sROT,sWV,sW4,sHH,sHL = 40,41,42,43,44,45,46,47,48,49
sT=50; sSC=58; sL2E=60; sLW=62; sR0=63; sC=28; sPB=30; sDBG=100; sAT=64; sKH=65; sCNT=66; sLB=67; sSX=6; sSW=7; sU=3
M16 = 'v_mfma_f32_16x16x32_bf16'; M32 = 'v_mfma_f32_32x32x16_bf16'
def SR(d): return f's[{d}:{d+3}]'

class Stamps:
    def __init__(self, a): self.a = a; self.names = []
    def __call__(self, name):
        if PROBE:
            if name == 'start' and PROBE != 'start': self.a('s_mov_b64 s[96:97], 0')
            if name == PROBE: self.a('s_memrealtime s[96:97]'); self.a('s_waitcnt lgkmcnt(0)')
            if name == 'end':
                a = self.a
                a('s_cmp_eq_u64 s[96:97], 0'); a('s_cbranch_scc1 L_done')
                a('s_add_u32 s96, s96, 3000')
                a.label('L_spin'); a('s_sleep 2'); a('s_memrealtime s[98:99]'); a('s_waitcnt lgkmcnt(0)')
                a('s_sub_u32 s98, s98, s96'); a('s_cmp_lt_i32 s98, 0'); a('s_cbranch_scc1 L_spin')
            return
        if not STAMP: return
        if STSEL and name not in STSEL: return
        if not STSEL and name.startswith('_'): return
        n = len(self.names); assert n < 16, name
        self.a(('s_memtime' if name.startswith('_T') else 's_memrealtime') + f' s[{68+2*n}:{69+2*n}]'); self.names.append(name)
def stamp_flush(a, n):
    if not STAMP: return
    L = a.newlabel('stf')
    a('s_waitcnt lgkmcnt(0)')
    a(f's_cmp_lg_u32 s{sW4}, {opt("stw",0)}'); a(f's_cbranch_scc1 {L}')
    a(f's_lshl_b32 s{sT}, s2, 8'); a(f's_add_u32 s{sT}, s{sT}, {WS_ST}')
    a(f's_lshr_b32 s{sT+1}, s{sWV}, 2'); a(f's_lshl_b32 s{sT+1}, s{sT+1}, 7'); a(f's_add_u32 s{sT}, s{sT}, s{sT+1}')
    a('s_mov_b64 exec, 1'); a('v_mov_b32 v4, 0')
    for i in range(n):
        a(f'v_mov_b32 v2, s{68+2*i}'); a(f'v_mov_b32 v3, s{69+2*i}')
        a(f'buffer_store_dwordx2 v[2:3], v4, {SR(sWS)}, s{sT} offen offset:{8*i}'); a('s_nop 1')
    a.label(L)
def LG(n): return f's_waitcnt lgkmcnt({0 if STAMP else n})'

class Rec:
    def __init__(self): self.l = []
    def __call__(self, s): self.l.append(s)

vL16=1; vPA=2; vSY=3; vS=4; VBASE=10
def arrive(a, stage):
    a(f'v_mov_b32 v{vS+4}, {stage}'); a(f'ds_write_b32 v{vPA}, v{vS+4}')
def sync_read(a, grp): a(f'ds_read_b128 {V(vS,4)}, v{vSY} offset:{16*grp}')
def sync_check(a, grp, stage):
    L = a.newlabel('sw'); L2 = a.newlabel('sd')
    a.label(L)
    a('s_waitcnt lgkmcnt(0)')
    a(f'v_min3_u32 v{vS}, v{vS}, v{vS+1}, v{vS+2}'); a(f'v_min_u32 v{vS}, v{vS}, v{vS+3}')
    a(f'v_readfirstlane_b32 s{sT+7}, v{vS}')
    a(f's_cmp_ge_u32 s{sT+7}, {stage}'); a(f's_cbranch_scc1 {L2}')
    sync_read(a, grp); a(f's_branch {L}')
    a.label(L2)
def sync_wait(a, grp, stage): sync_read(a, grp); sync_check(a, grp, stage)
GRP_H=0; GRP_G=1
def signal(a, cset, sgrp):
    a(f's_lshl_b32 s{sT+6}, s{sgrp}, 8'); a(f's_add_u32 s{sT+6}, s{sC}, s{sT+6}'); a(f's_addc_u32 s{sT+7}, s{sC+1}, 0')
    a(f's_mov_b32 s{sU}, 1')
    for r in range(NREP): a(f's_atomic_add s{sU}, s[{sT+6}:{sT+7}], {cset + r*2048}')
def spoll(a, dst, pair, imm):
    a(f's_mov_b32 s{dst}, 0'); a(f's_atomic_add s{dst}, s[{pair}:{pair+1}], {imm} glc')
def spoll_loop(a, pair, imm, pre=False):
    Lp = a.newlabel('p'); Lc = a.newlabel('c'); Lq = a.newlabel('q')
    a(f's_mov_b32 s{sCNT}, 0x20000')
    if pre: a(f's_branch {Lc}')
    a.label(Lp)
    a(f's_sub_u32 s{sCNT}, s{sCNT}, 1'); a(f's_cbranch_scc1 {Lq}')
    spoll(a, sR0, pair, imm)
    a.label(Lc)
    a('s_waitcnt lgkmcnt(0)')
    a(f's_cmp_lg_u32 s{sR0}, 32'); a(f's_cbranch_scc1 {Lp}')
    a.label(Lq)
def signal_last(a, cnt_off, last, cset, sgrp):
    L = a.newlabel('sig')
    a('s_mov_b64 exec, 1')
    a(f'v_mov_b32 v{vS+4}, 1'); a(f'ds_add_rtn_u32 v{vS}, v{vSY}, v{vS+4} offset:{cnt_off}')
    a('s_waitcnt lgkmcnt(0)')
    a(f'v_readfirstlane_b32 s{sT+7}, v{vS}')
    a('s_mov_b64 exec, -1')
    a(f's_cmp_lg_u32 s{sT+7}, {last}'); a(f's_cbranch_scc1 {L}')
    signal(a, cset, sgrp)
    a.label(L)

WO_ORDER = [0, 8, 1, 9, 2, 10, 3, 11, 4, 12, 5, 13, 6, 14, 7, 15]
_busy = [(14 % NH), (15 % NH)]
_places = [h*HS + i*8192 for h in range(NH) if h not in _busy for i in range(2)] + [L_XT] + [h*HS + i*8192 for h in _busy for i in range(2)] + [L_KVR]
def wo_unit(u): return _places[WO_ORDER.index(u)]
WIN = opt('win', 12)
def rot_calc(a):
    RM = opt('rot', 104)
    a(f's_lshr_b32 s{sT}, s{sIDX}, 2')
    if RM == 8: a(f's_lshl_b32 s{sROT}, s{sHL}, 1'); a(f's_add_u32 s{sROT}, s{sROT}, s{sT}'); a(f's_and_b32 s{sROT}, s{sROT}, 7')
    elif RM == 1: a(f's_mov_b32 s{sROT}, 0')
    elif RM >= 200:
        a(f's_and_b32 s{sROT}, s{sXCD}, {6 if RM == 204 else 2}')
        if RM == 202: a(f's_lshl_b32 s{sROT}, s{sROT}, 1')
    elif RM >= 100:
        a(f's_add_u32 s{sT}, s{sT}, s{sHL}'); a(f's_and_b32 s{sT}, s{sT}, 1'); a(f's_mul_i32 s{sT}, s{sT}, {RM-100}')
        a(f's_lshl_b32 s{sROT}, s{sHH}, 2'); a(f's_add_u32 s{sROT}, s{sROT}, s{sXCD}'); a(f's_add_u32 s{sROT}, s{sROT}, s{sT}'); a(f's_and_b32 s{sROT}, s{sROT}, 7')
    else: a(f's_add_u32 s{sROT}, s{sHL}, s{sT}'); a(f's_and_b32 s{sROT}, s{sROT}, {RM-1}'); a(f's_lshl_b32 s{sROT}, s{sROT}, {1 if RM == 4 else 2}')
def dma_setup(a, vd, t0, t1):
    rot_calc(a)
    a(f's_lshl_b32 s{sLB}, s{sW4}, 12')
    a(f'v_lshrrev_b32 v{t0}, 3, v0'); a(f'v_and_b32 v{t1}, 0x70, v{vL16}'); a(f'v_and_b32 v{vd+2}, 0x30, v0')
    a(f'v_xor_b32 v{vd+4}, v{t1}, v{vd+2}')
    a(f's_lshl_b32 s{sT}, s{sW4}, 4'); a(f's_add_u32 s{sT+1}, s{sT}, s{sROW0}')
    a(f'v_add_u32 v{vd+5}, s{sT+1}, v{t0}'); a(f'v_lshl_add_u32 v{vd+4}, v{vd+5}, 10, v{vd+4}')
    a(f'v_xor_b32 v{vd+5}, 64, v{vd+4}'); a(f'v_add_u32 v{vd+5}, {8192-1024}, v{vd+5}')
    a(f'v_and_b32 v{vd+2}, 16, v0'); a(f'v_lshlrev_b32 v{vd+2}, 1, v{vd+2}'); a(f'v_xor_b32 v{vd+2}, v{vd+2}, v{t1}')
    a(f'v_add_u32 v{t0}, s{sT}, v{t0}'); a(f'v_mul_u32_u24 v{t0}, 3072, v{t0}'); a(f's_lshl_b32 s{sT+1}, s{sHG}, 7')
    a(f'v_add3_u32 v{vd+2}, v{vd+2}, v{t0}, s{sT+1}')
    a(f'v_xor_b32 v{t0}, 64, v{vd+2}')
    a(f'v_add_u32 v{vd}, 1024, v{vd+2}'); a(f'v_add_u32 v{vd+1}, 24576, v{t0}'); a(f'v_add_u32 v{vd+3}, 23552, v{t0}')
def dma_group(g, vd):
    adv = [f's_add_u32 s{sSX}, s{sROT}, {g}', f's_and_b32 s{sSX}, s{sSX}, 7', f's_lshl_b32 s{sSX}, s{sSX}, 7', f's_mul_i32 s{sSW}, s{sSX}, 1536']
    ld = lambda v, srdr, so, off: f'buffer_load_dwordx4 v{v}, {SR(srdr)}, s{so} offen' + (f' offset:{off}' if off else '') + ' lds'
    return [[f's_add_u32 m0, s{sLB}, {loc(g, "X")}'] + adv + [ld(vd+4, sX, sSX, 0)], [ld(vd+5, sX, sSX, 1024)],
            [f's_add_u32 m0, s{sLB}, {loc(g, "K")}', ld(vd, sWQ, sSW, 0)], [ld(vd+1, sWQ, sSW, 1024)],
            [f's_add_u32 m0, s{sLB}, {loc(g, "Q")}', ld(vd+2, sWQ, sSW, 2048)], [ld(vd+3, sWQ, sSW, 3072)],
            [ld(vd+2, sWQ, sSW, 0)], [ld(vd+3, sWQ, sSW, 1024)]]
def emit(a, b, thr=None):
    for l in b[:-1]: a(l)
    if thr is not None: a(f's_waitcnt vmcnt({thr})')
    a(b[-1])

def phi_pack(a, acc, n, out, tmp):
    for j in range(0, n, 2): a(f'v_pk_mul_f32 {V(tmp+j,2)}, {V(acc+j,2)}, s[{sL2E}:{sL2E+1}]')
    for j in range(n):
        a(f'v_exp_f32_e64 v{tmp+j}, v{tmp+j} clamp')
        a(f'v_max_f32 v{acc+j}, {F(1e-6)}, v{acc+j}')
    for j in range(0, n, 2): a(f'v_pk_add_f32 {V(tmp+j,2)}, {V(tmp+j,2)}, {V(acc+j,2)}')
    for j in range(0, n, 2): a(f'v_cvt_pk_bf16_f32 v{out+j//2}, v{tmp+j}, v{tmp+j+1}')
def sincos4(a, base, step, r0, c, s):
    for r in range(4):
        k = r0 + r
        if k == 0: a(f'v_mov_b32 v{s+r}, v{base}')
        else: a(f'v_fmamk_f32 v{s+r}, v{step}, {F(float(k))}, v{base}')
    for r in range(4): a(f'v_cos_f32 v{c+r}, v{s+r}')
    for r in range(4): a(f'v_sin_f32 v{s+r}, v{s+r}')
def mat6(a, dst, c, s):
    a(f'v_cvt_pk_bf16_f32 v{dst+2}, v{c}, v{c+1}'); a(f'v_cvt_pk_bf16_f32 v{dst+3}, v{c+2}, v{c+3}')
    a(f'v_cvt_pk_bf16_f32 v{dst+4}, v{s}, v{s+1}'); a(f'v_cvt_pk_bf16_f32 v{dst+5}, v{s+2}, v{s+3}')
    a(f'v_xor_b32 v{dst+0}, 0x80008000, v{dst+4}'); a(f'v_xor_b32 v{dst+1}, 0x80008000, v{dst+5}')
def cmul_pack(a, re, im, tc, ts, out, tmp, conj_out=False):
    for j in (0, 2):
        a(f'v_pk_mul_f32 {V(tmp+j,2)}, {V(re+j,2)}, {V(tc+j,2)}')
        a(f'v_pk_mul_f32 {V(tmp+4+j,2)}, {V(re+j,2)}, {V(ts+j,2)}')
    for j in (0, 2):
        a(f'v_pk_fma_f32 {V(tmp+j,2)}, {V(im+j,2)}, {V(ts+j,2)}, {V(tmp+j,2)} neg_lo:[1,0,0] neg_hi:[1,0,0]')
        a(f'v_pk_fma_f32 {V(tmp+4+j,2)}, {V(im+j,2)}, {V(tc+j,2)}, {V(tmp+4+j,2)}')
    n = '-' if conj_out else ''
    a(f'v_cvt_pk_bf16_f32 v{out}, v{tmp}, v{tmp+1}'); a(f'v_cvt_pk_bf16_f32 v{out+1}, v{tmp+2}, v{tmp+3}')
    a(f'v_cvt_pk_bf16_f32 v{out+2}, {n}v{tmp+4}, {n}v{tmp+5}'); a(f'v_cvt_pk_bf16_f32 v{out+3}, {n}v{tmp+6}, {n}v{tmp+7}')

TF=10; WF=74; ACA=138; ACB=154; PQ=170; KVF=186; YL=218; FT=234
HP = TF+32
def fin_table(a, hook=None):
    P = YL; D = FT; step = FT+4; base = FT+5; t0 = FT+6; t1 = FT+7
    a(f's_lshl_b32 s{sT}, s{sHL}, 6'); a(f's_lshl_b32 s{sT+1}, s{sW4}, 4'); a(f's_add_u32 s{sT}, s{sT}, s{sT+1}')
    a(f'v_and_b32 v{t0}, 15, v0'); a(f'v_add_u32 v{t0}, s{sT}, v{t0}'); a(f'v_cvt_f32_u32 v{step}, v{t0}'); a(f'v_mul_f32 v{step}, {F(1/512)}, v{step}')
    a(f'v_lshrrev_b32 v{t1}, 4, v0'); a(f'v_lshl_add_u32 v{t1}, v{t1}, 3, s{sKH}')
    a(f'v_cvt_f32_u32 v{base}, v{t1}'); a(f'v_mul_f32 v{base}, v{base}, v{step}')
    a(f'v_mul_f32 v{D+2}, {F(32.0)}, v{step}'); a(f'v_add_f32 v{step}, v{step}, v{step}')
    C = P; free = P+8
    sincos4(a, base, step, 0, C, C+4)
    a(f'v_cos_f32 v{D}, v{D+2}'); a(f'v_sin_f32 v{D+2}, v{D+2}')
    a(f'v_mov_b32 v{D+1}, v{D}'); a(f'v_mov_b32 v{D+3}, v{D+2}')
    hi = 0
    for n in range(8):
        S_ = C+4
        for j in range(4): a(f'v_cvt_pk_bf16_f32 v{TF+4*n+j}, v{C+j}, v{S_+j}')
        hook(hi); hi += 1
        if n < 7:
            for j in (0, 2, 4, 6): a(f'v_pk_mul_f32 {V(free+j,2)}, {V(C+j,2)}, {V(D,2)}')
            hook(hi); hi += 1
            for j in (0, 2):
                a(f'v_pk_fma_f32 {V(free+j,2)}, {V(S_+j,2)}, {V(D+2,2)}, {V(free+j,2)} neg_lo:[1,0,0] neg_hi:[1,0,0]')
                a(f'v_pk_fma_f32 {V(free+4+j,2)}, {V(C+j,2)}, {V(D+2,2)}, {V(free+4+j,2)}')
            C, free = free, C
            hook(hi); hi += 1
    a(f'v_lshlrev_b32 v{t0}, 31, v{t0}'); a(f'v_xor_b32 v{t0}, 0xbf003f00, v{t0}')
    a(f'v_cmp_eq_u32 vcc, 0, v{t1}'); a(f'v_cndmask_b32 v{TF}, v{TF}, v{t0}, vcc')

def srdc(a, d):
    n = {sX:0x200000, sWQ:512*3072, sWR:2048*514, sWI:2048*514, sWS:WS_SIZE, sGW:1024, sWO:512*1024, sOUT:0x200000}[d]
    a(f's_mov_b32 s{d+2}, {n}'); a(f's_mov_b32 s{d+3}, 0x20000')
def ids_gemm(a):
    a(f's_and_b32 s{sHH}, s2, 1'); a(f's_and_b32 s{sHL}, s{sIDX}, 3')
    a(f's_lshl_b32 s{sHG}, s{sHH}, 2'); a(f's_add_u32 s{sHG}, s{sHG}, s{sHL}')
    a(f's_and_b32 s{sROW0}, s2, 6'); a(f's_lshl_b32 s{sROW0}, s{sROW0}, 7')
    a(f's_and_b32 s{sT}, s{sIDX}, 12'); a(f's_lshl_b32 s{sT}, s{sT}, 4'); a(f's_add_u32 s{sROW0}, s{sROW0}, s{sT}')
    a(f's_and_b32 s{sT}, s{sIDX}, 16'); a(f's_lshl_b32 s{sT}, s{sT}, 6'); a(f's_add_u32 s{sROW0}, s{sROW0}, s{sT}')
def late_common(a):
    for d in (sWS, sWO, sOUT): srdc(a, d)
    a(f's_lshr_b32 s{sAT}, s{sROW0}, 5'); a(f's_add_u32 s{sAT}, s{sAT}, s{sHH}'); a(f's_lshr_b32 s{sKH}, s{sWV}, 2')
    a(f's_add_u32 s{sC}, s{sWS}, {WS_C}'); a(f's_addc_u32 s{sC+1}, s{sWS+1}, 0')
    a(f's_and_b32 s{sT}, s2, {NREP-1}'); a(f's_lshl_b32 s{sT}, s{sT}, 11'); a(f's_lshl_b32 s{sT+1}, s{sWV}, 8'); a(f's_add_u32 s{sT}, s{sT}, s{sT+1}')
    a(f's_add_u32 s{sPB}, s{sC}, s{sT}'); a(f's_addc_u32 s{sPB+1}, s{sC+1}, 0')

def build():
    a = Asm(); ST = Stamps(a); ST('start')
    a('s_cmp_ge_u32 s2, 256'); a(f's_cbranch_scc1 L_done')
    for d, off in ((sX,0),(sWQ,32),(sWR,8),(sWI,16),(sWS,72),(sGW,48),(sWO,40),(sOUT,56),(sDBG,64)):
        a(f's_load_dwordx2 s[{d}:{d+1}], s[0:1], {off}')
    a(f'v_readfirstlane_b32 s{sWV}, v0'); a('v_and_b32 v0, 63, v0')
    a(f's_and_b32 s{sXCD}, s2, 7'); a(f's_lshr_b32 s{sIDX}, s2, 3')
    a('s_getpc_b64 s[4:5]')
    a(f's_lshl_b32 s{sT}, s{sIDX}, 10'); a(f's_lshl_b32 s{sT+1}, s{sWV}, 1'); a(f's_add_u32 s{sT}, s{sT}, s{sT+1}')
    CP = opt('cp', 3)
    if CP in (1, 2): a(f's_load_dword s{sU}, s[4:5], s{sT}')
    if CP == 2: a(f's_add_u32 s{sT}, s{sT}, 64'); a(f's_load_dword s{sU}, s[4:5], s{sT}')
    if CP == 3:
        a(f'v_mov_b32 v{vS+5}, s{sT}'); a('s_mov_b64 exec, 1'); a(f'global_load_dword v{vS+5}, v{vS+5}, s[4:5]'); a('s_mov_b64 exec, -1')
    if CP == 4:
        a(f's_lshl_b32 s{sT+1}, s{sWV}, 4'); a(f'v_lshl_add_u32 v{vS+5}, v0, 7, s{sT+1}'); a(f'v_writelane_b32 v{vS+5}, s{sT}, 8')
        a('s_mov_b64 exec, 0x1ff'); a(f'global_load_dword v{vS+5}, v{vS+5}, s[4:5]'); a('s_mov_b64 exec, -1')
    a(f's_lshr_b32 s{sWV}, s{sWV}, 6'); a(f'v_lshlrev_b32 v{vL16}, 4, v0')
    a(f's_and_b32 s{sW4}, s{sWV}, 3'); a(f's_lshl_b32 s{sLW}, s{sW4}, 11')
    a(f'v_mov_b32 v{vSY}, {L_SY}'); a(f'v_mov_b32 v{vS}, 0'); a(f'v_mov_b32 v{vS+1}, 0')
    a(f'v_lshl_add_u32 v{vPA}, s{sWV}, 2, v{vSY}')
    a(f'ds_write_b32 v{vPA}, v{vS}'); a(f'ds_write_b64 v{vSY}, {V(vS,2)} offset:32')
    srdc(a, sX)
    a(f's_lshl_b32 s{sP}, s{sXCD}, 5'); a(f's_add_u32 s{sP}, s{sP}, s{sIDX}')
    a(f's_cmp_ge_u32 s{sWV}, 4'); a('s_cbranch_scc1 L_G0')
    names0 = list(ST.names)
    H = gen_H0(a, ST); nH = list(ST.names)
    a('s_branch L_H1')
    a.label('L_G0'); a.hist = []; ST.names = list(names0)
    G = gen_G0(a, ST); nG = list(ST.names)
    a('s_branch L_G1')
    a.label('L_H1'); a.hist = []; ST.names = nH
    hiH = gen_H(a, ST, H); nH = list(ST.names)
    a('s_branch L_FIN')
    a.label('L_G1'); a.hist = []; ST.names = nG
    hiG = gen_G(a, ST, G)
    while len(ST.names) < len(nH): ST.names.append('-')
    a.label('L_FIN'); a.hist = []
    gen_FIN(a, ST)
    a.label('L_done'); a('s_endpgm')
    gen_special(a)
    if STAMP: print('H:', nH, '\nG:', ST.names, file=sys.stderr)
    print('instrs', a.count, 'nops', a.nops, 'vgprs', hiH, hiG, file=sys.stderr)
    return a

SP = {}
NT = 'nt ' if opt('wnt', 1) else ''
def rloads(a):
    a(f'buffer_load_dwordx4 v{vL16}, {SR(sX)}, s{sT+6} offen lds')
    a(f'buffer_load_dwordx4 v{vL16}, {SR(sX)}, s{sT+7} offen offset:1024 lds')
def wloads(a, vWs, e0, e1, e3):
    if opt('rpos', 0): a(f's_add_u32 m0, s{sLW}, {L_P1X}'); rloads(a)
    a(f's_add_u32 m0, s{sLW}, {L_WRAW}'); a(f'buffer_load_dwordx4 v{vWs}, {SR(sWR)}, s{sT+3} offen {NT}lds')
    a(f's_add_u32 m0, s{sLW}, {L_WRAW+1024}'); a(f'buffer_load_dwordx4 v{vWs}, {SR(sWI)}, s{sT+3} offen {NT}lds')
    a('s_mov_b64 exec, 0xffff')
    a(f'buffer_load_ushort v{e0}, v{e3}, {SR(sWR)}, 0 offen')
    a(f'buffer_load_ushort v{e1}, v{e3}, {SR(sWI)}, 0 offen')
    a('s_mov_b64 exec, -1')
def gen_H0(a, ST):
    R = Regs(VBASE)
    t0, t1, vWs = R.alloc(), R.alloc(), R.alloc()
    srdc(a, sWR); srdc(a, sWI)
    if opt('noh', 0): a(f's_mov_b32 s{sWR+2}, 0'); a(f's_mov_b32 s{sWI+2}, 0'); a(f's_mov_b32 s{sX+2}, 0')
    a(f's_lshl_b32 s{sT}, s{sXCD}, 17'); a(f's_lshl_b32 s{sT+1}, s{sW4}, 15'); a(f's_add_u32 s{sT}, s{sT}, s{sT+1}')
    a(f's_lshl_b32 s{sT+1}, s{sIDX}, 10'); a(f's_add_u32 s{sT}, s{sT}, s{sT+1}'); a(f's_add_u32 s{sT+1}, s{sT}, {1024*1024-1024}')
    a(f'v_lshrrev_b32 v{t0}, 4, v0'); a(f'v_mul_u32_u24 v{vWs}, {64*514-256}, v{t0}'); a(f'v_add_u32 v{vWs}, v{vWs}, v{vL16}')
    a(f's_and_b32 s{sT+2}, s{sP}, 63'); a(f's_and_b32 s{sT+3}, s{sP}, 0xc0'); a(f's_lshl_b32 s{sT+3}, s{sT+3}, 2'); a(f's_add_u32 s{sT+2}, s{sT+2}, s{sT+3}')
    a(f's_and_b32 s{sT+3}, s{sW4}, 1'); a(f's_lshl_b32 s{sT+3}, s{sT+3}, 10'); a(f's_add_u32 s{sT+2}, s{sT+2}, s{sT+3}')
    a(f's_mul_i32 s{sT+3}, s{sT+2}, 514')
    a(f's_and_b32 s{sT+4}, s{sW4}, 2'); a(f's_lshl_b32 s{sT+4}, s{sT+4}, 7'); a(f's_add_u32 s{sT+3}, s{sT+3}, s{sT+4}')
    e0, e1, e2, e3 = [R.alloc() for _ in range(4)]
    a(f'v_and_b32 v{t1}, 3, v0'); a(f'v_lshl_add_u32 v{e0}, v{t1}, 6, s{sT+2}')
    a(f'v_sub_u32 v{e1}, 0x800, v{e0}'); a(f'v_and_b32 v{e1}, 0x7ff, v{e1}')
    a(f'v_and_b32 v{e2}, 8, v0'); a(f'v_cmp_eq_u32 vcc, 0, v{e2}'); a(f'v_and_b32 v{e2}, 4, v0'); a(f'v_lshlrev_b32 v{e2}, 7, v{e2}')
    a(f'v_cndmask_b32 v{e0}, v{e1}, v{e0}, vcc'); a(f'v_mul_u32_u24 v{e0}, 514, v{e0}'); a(f'v_add_u32 v{e3}, v{e0}, v{e2}')
    srdc(a, sGW)
    a(f's_lshr_b32 s{sT+5}, s{sLW}, 2'); a(f's_and_b32 s{sT+4}, s{sT+5}, 512')
    a(f's_add_u32 m0, s{sLW}, {L_P1X}')
    a('s_waitcnt lgkmcnt(0)'); ST('karg')
    a(f's_mov_b32 s{sT+6}, s{sT}'); a(f's_mov_b32 s{sT+7}, s{sT+1}')
    a(f's_add_u32 s{sU}, s{sIDX}, s{sW4}'); a(f's_cmp_eq_u32 s{sU}, 34'); a('s_cbranch_scc1 L_sp5'); a.label('L_sp5r')
    if opt('rpos', 0) == 0: rloads(a)
    a(f's_add_u32 m0, s{sT+5}, {L_GW}'); a('s_mov_b32 exec_hi, 0')
    a(f'buffer_load_dwordx4 v{vL16}, {SR(sGW)}, s{sT+4} offen lds'); a('s_mov_b32 exec_hi, -1')
    if opt('wpos', 2) == 0: wloads(a, vWs, e0, e1, e3)
    return R, t0, t1, vWs, e0, e1, e2, e3

def gen_H(a, ST, H):
    R, t0, t1, vWs, e0, e1, e2, e3 = H
    vl15, fl15, fg4 = R.alloc(), R.alloc(), R.alloc()
    a(f'v_and_b32 v{vl15}, 15, v0'); a(f'v_cvt_f32_u32 v{fl15}, v{vl15}')
    a(f'v_lshlrev_b32 v{fg4}, 2, v{t0}'); a(f'v_cvt_f32_u32 v{fg4}, v{fg4}')
    F16T = R.alloc(6); tc = R.alloc(8); ts = R.alloc(8); base = R.alloc(); step = R.alloc()
    a(f'v_mul_f32 v{step}, {F(1/16)}, v{fl15}'); a(f'v_mul_f32 v{base}, v{fg4}, v{step}')
    sincos4(a, base, step, 0, tc, ts); mat6(a, F16T, tc, ts)
    F32T = R.alloc(24); m = R.alloc(); mo = R.alloc()
    a(f'v_mul_f32 v{step}, {F(1/32)}, v{fl15}'); a(f'v_mul_f32 v{base}, v{fg4}, v{step}')
    sincos4(a, base, step, 0, tc, ts); mat6(a, F32T, tc, ts)
    a(f'v_and_b32 v{mo}, 1, v{vl15}'); a(f'v_sub_u32 v{mo}, 0, v{mo}'); a(f'v_and_b32 v{mo}, 0x80008000, v{mo}')
    for j in range(6):
        a(f'v_xor_b32 v{F32T+6+j}, v{mo}, v{F32T+j}'); a(f'v_xor_b32 v{F32T+12+j}, 0x80000000, v{F32T+j}'); a(f'v_xor_b32 v{F32T+18+j}, 0x80000000, v{F32T+6+j}')
    a(f'v_mul_f32 v{step}, {F(-1/512)}, v{fl15}'); a(f'v_mul_f32 v{base}, v{fg4}, v{step}')
    sincos4(a, base, step, 0, tc, ts); sincos4(a, base, step, 16, tc+4, ts+4)
    if opt('wpos', 2) == 1: wloads(a, vWs, e0, e1, e3)
    aT = R.alloc(); aZ = R.alloc(); aO = R.alloc(4); stp = R.alloc(); aWt = R.alloc(); aWp = R.alloc()
    a(f'v_lshrrev_b32 v{t0}, 2, v0'); a(f'v_lshlrev_b32 v{aWt}, 3, v{t1}'); a(f'v_lshl_add_u32 v{aT}, v{t0}, 6, v{aWt}')
    a(f's_add_u32 s{sT}, s{sLW}, {L_P1X}'); a(f'v_add_u32 v{aT}, s{sT}, v{aT}')
    a(f'v_bfe_u32 v{m}, v0, 2, 1'); a(f'v_lshl_add_u32 v{aWt}, v{m}, 10, v{aWt}')
    a(f'v_bfe_u32 v{m}, v0, 3, 1'); a(f'v_lshl_add_u32 v{aWt}, v{m}, 8, v{aWt}')
    a(f'v_lshrrev_b32 v{m}, 4, v0'); a(f'v_lshl_add_u32 v{aWt}, v{m}, 5, v{aWt}')
    a(f's_add_u32 s{sT}, s{sLW}, {L_WRAW}'); a(f'v_add_u32 v{aWt}, s{sT}, v{aWt}')
    a(f's_and_b32 s{sT}, s{sW4}, 1'); a(f's_mul_i32 s{sT+1}, s{sT}, {264*4}'); a(f's_add_u32 s{sT+1}, s{sT+1}, {L_PL+520*4}')
    aA_, aB_ = R.alloc(), R.alloc()
    a(f'v_mul_u32_u24 v{aA_}, {PS*4}, v{t1}')
    a(f's_lshl_b32 s{sT+2}, s{sT}, 2'); a(f's_add_u32 s{sT+2}, s{sT+2}, {L_PL+1040*4}'); a(f'v_add_u32 v{aB_}, s{sT+2}, v{aA_}')
    a(f'v_add_u32 v{aA_}, s{sT+1}, v{aA_}')
    a(f's_and_b32 s{sT+2}, s{sW4}, 2'); a(f's_lshl_b32 s{sT+2}, s{sT+2}, 8'); a(f's_add_u32 s{sT+1}, s{sT+1}, s{sT+2}'); a(f'v_lshl_add_u32 v{aWp}, v0, 2, s{sT+1}')
    a(f'v_lshlrev_b32 v{m}, 4, v{m}'); a(f'v_lshl_add_u32 v{aZ}, v{vl15}, 6, v{m}')
    a(f's_mul_i32 s{sT}, s{sW4}, {PS*4}'); a(f's_add_u32 s{sT}, s{sT}, {L_PL}'); a(f'v_add_u32 v{aZ}, s{sT}, v{aZ}')
    a(f's_lshl_b32 s{sT}, s{sW4}, 6'); a(f'v_add_u32 v{t0}, s{sT}, v{t0}')
    a(f'v_cmp_eq_u32 vcc, 1, v{t1}')
    a(f'v_sub_u32 v{aO}, 512, v{t0}'); a(f'v_mov_b32 v{stp}, 64'); a(f'v_mov_b32 v{aO+1}, -64')
    a(f'v_cndmask_b32 v{aO}, v{t0}, v{aO}, vcc'); a(f'v_cndmask_b32 v{stp}, v{stp}, v{aO+1}, vcc')
    a(f'v_cmp_eq_u32 vcc, 2, v{t1}'); a(f'v_add_u32 v{aO+1}, 520, v{t0}'); a(f'v_add_u32 v{aO+2}, 784, v{t0}'); a(f'v_cndmask_b32 v{aO}, v{aO}, v{aO+1}, vcc')
    a(f'v_cmp_eq_u32 vcc, 3, v{t1}'); a(f'v_mov_b32 v{t0}, {L_PL+1024}'); a(f's_mov_b32 s{sT}, {L_PL}'); a(f'v_cndmask_b32 v{aO}, v{aO}, v{aO+2}, vcc')
    a(f'v_lshl_add_u32 v{aO}, v{aO}, 2, s{sT}')
    for j in range(1,4): a(f'v_add_u32 v{aO+j}, v{aO+j-1}, v{stp}')
    a(f'v_cmp_eq_u32 vcc, {L_PL+2048}, v{aO}'); a(f'v_and_b32 v{t1}, 1, v0'); a(f's_mov_b32 s{sT}, {L_PL+1040*4}'); a(f'v_cndmask_b32 v{aO}, v{aO}, v{t0}, vcc')
    a(f'v_lshl_add_u32 v{stp}, v{t1}, 2, s{sT}')
    if opt('wpos', 2) == 2: wloads(a, vWs, e0, e1, e3)
    ids_gemm(a); late_common(a); rot_calc(a)
    X = R.alloc(8); Dr = R.alloc(8); Di = R.alloc(8); tmp = R.alloc(8); IN = R.alloc(32); P = IN; Wt = IN+16; GX = IN+24
    a('s_waitcnt lgkmcnt(0)')
    dp = 'row_mask:0xf bank_mask:0xf'
    def p1():
        ST('const'); a('s_waitcnt vmcnt(4)'); ST('rows')
        a(f's_add_u32 s{sU}, s{sIDX}, s{sW4}'); a(f's_cmp_eq_u32 s{sU}, 34'); a('s_cbranch_scc1 L_sp6'); a.label('L_sp6r')
        for t in range(2):
            for rho in range(2): a(f'ds_read_b64_tr_b16 {V(X+t*4+rho*2,2)}, v{aT} offset:{rho*1024+t*32}')
        for t in range(2):
            a(LG(2-2*t))
            a(f'{M16} {V(Dr+4*t,4)}, {V(X+4*t,4)}, {V(F16T+2,4)}, 0'); a(f'{M16} {V(Di+4*t,4)}, {V(X+4*t,4)}, {V(F16T,4)}, 0')
        for t in range(2): cmul_pack(a, Dr+4*t, Di+4*t, tc+4*t, ts+4*t, X+4*t, tmp)
        for t in range(2):
            for u in range(2):
                T = F32T + (u*2+t)*6
                a(f'{M16} {V(Dr+4*u,4)}, {V(X+4*t,4)}, {V(T+2,4)}, {"0" if t==0 else V(Dr+4*u,4)}')
                a(f'{M16} {V(Di+4*u,4)}, {V(X+4*t,4)}, {V(T,4)}, {"0" if t==0 else V(Di+4*u,4)}')
        for u in range(2):
            for r in range(4): a(f'v_cvt_pk_bf16_f32 v{P+4*u+r}, v{Dr+4*u+r}, v{Di+4*u+r}')
            a(f'ds_write_b128 v{aZ}, {V(P+4*u,4)} offset:{u*1024}')
        ST('p1')
    P1I = opt('p1i', -1)
    if P1I < 0: p1()
    def wprep():
        a('s_waitcnt vmcnt(0)'); ST('_wv')
        for cg in range(2):
            for hf in range(2): a(f'ds_read_b64_tr_b16 {V(Wt+4*cg+2*hf,2)}, v{aWt} offset:{cg*128+hf*512}')
        a(f'v_lshlrev_b32 v{e0}, 16, v{e0}'); a(f'v_lshlrev_b32 v{e1}, 16, v{e1}')
        a(f'v_add_f32_dpp v{e2}, v{e0}, v{e0} row_ror:8 {dp}'); a(f'v_subrev_f32_dpp v{e3}, v{e1}, v{e1} row_ror:8 {dp}')
        a(f'v_add_f32_dpp v{e0}, v{e2}, v{e2} row_ror:12 {dp}'); a(f'v_add_f32_dpp v{e1}, v{e3}, v{e3} row_ror:12 {dp}')
        a(f'v_subrev_f32_dpp v{tmp}, v{e2}, v{e2} row_ror:12 {dp}'); a(f'v_subrev_f32_dpp v{tmp+1}, v{e3}, v{e3} row_ror:12 {dp}')
        a(f'v_cvt_pk_bf16_f32 v{e0}, v{e0}, v{e1}'); a(f'v_cvt_pk_bf16_f32 v{e1}, v{tmp}, v{tmp+1}')
        a('s_waitcnt lgkmcnt(0)')
        for r in range(4): a(f'ds_write2st64_b32 v{aWp}, v{Wt+r}, v{Wt+4+r} offset0:{r*17} offset1:{r*17+1}')
        a('s_mov_b64 exec, 15')
        a(f'ds_write_b32 v{aA_}, v{e0}'); a(f'ds_write_b32 v{aB_}, v{e1}')
        a('s_mov_b64 exec, -1')
    R.free(vWs)
    if P1I < 0:
        for r, n in ((F16T,6),(aT,1),(aZ,1)): R.free(r, n)
    wc = R.alloc(8); wsn = R.alloc(8)
    B1 = R.alloc(32); tw2c = R.alloc(8); tw2s = R.alloc(8); F64 = R.alloc(24); tw1c = tc; tw1s = ts
    c = Dr; s = Dr+4; fk = R.alloc(); m2 = R.alloc()
    vA, aW, aWr, aE, aI, aO1, aO2, aOr, vY, aGx, aGw, gacc, aI2 = [R.alloc() for _ in range(13)]
    r = Rec()
    sR, sI = sT+4, sT+5
    a(f's_lshl_b32 s{sT}, s{sHH}, 13'); a(f's_and_b32 s{sT+1}, s{sW4}, 2'); a(f's_lshl_b32 s{sT+1}, s{sT+1}, 11'); a(f's_add_u32 s{sT}, s{sT}, s{sT+1}')
    a(f's_and_b32 s{sT+1}, s{sW4}, 1'); a(f's_lshl_b32 s{sT+1}, s{sT+1}, 10'); a(f's_add_u32 s{sT}, s{sT}, s{sT+1}')
    a(f'v_add_u32 v{aGx}, s{sT}, v{vL16}')
    a(f'v_lshrrev_b32 v{t0}, 4, v{aGx}'); a(f'v_xor_b32 v{t0}, v{t0}, v{aGx}'); a(f'v_and_b32 v{t0}, 0x70, v{t0}'); a(f's_lshl_b32 s{sT}, s{sROT}, 7'); a(f's_add_u32 s{sT}, s{sT}, {L_GW}'); a(f'v_add_u32 v{aGw}, s{sT}, v{t0}')
    a(f'v_mov_b32 v{gacc}, 0')
    r(f'v_lshrrev_b32 v{t0}, 2, v0'); r(f'v_and_b32 v{t1}, 3, v0')
    r(f'v_mul_u32_u24 v{vA}, {ZSTRIDE}, v{t0}'); r(f'v_lshl_add_u32 v{vA}, v{t1}, 4, v{vA}')
    r(f'v_lshlrev_b32 v{aW}, 4, v{t0}'); r(f'v_and_b32 v{t0}, 1, v{t1}'); r(f'v_lshl_add_u32 v{aW}, v{t0}, 8, v{aW}')
    r(f'v_lshrrev_b32 v{t0}, 1, v{t1}'); r(f'v_lshl_add_u32 v{aW}, v{t0}, 13, v{aW}')
    r(f's_lshl_b32 s{sT}, s{sW4}, 10'); r(f's_add_u32 s{sT+1}, s{sT}, {L_IN}'); r(f'v_add_u32 v{aW}, s{sT+1}, v{aW}')
    r([f's_cmp_eq_u32 s{sP}, 0', f's_mov_b32 s{sT+1}, {L_EX}', f's_cmov_b32 s{sT+1}, {L_IN+8192}', f'v_add_u32 v{aI2}, s{sT+1}, v{vL16}']); r(f'v_add_u32 v{aE}, s{sT}, v{aI2}')
    r(f'v_add_u32 v{aI}, {L_IN}, v{vL16}')
    r(f'v_lshrrev_b32 v{t0}, 4, v0'); r(f'v_lshlrev_b32 v{aWr}, 10, v{t0}'); r(f'v_lshl_add_u32 v{aWr}, v{vl15}, 4, v{aWr}')
    r(f's_and_b32 s{sT}, s{sW4}, 1'); r(f's_lshl_b32 s{sT}, s{sT}, 12'); r(f's_lshr_b32 s{sT+1}, s{sW4}, 1'); r(f's_lshl_b32 s{sT+1}, s{sT+1}, 9')
    r(f's_add_u32 s{sT}, s{sT}, s{sT+1}'); r(f's_add_u32 s{sT}, s{sT}, {L_IN+8192}'); r(f'v_add_u32 v{aWr}, s{sT}, v{aWr}')
    r(f'v_and_b32 v{t1}, 7, v0'); r(f'v_xor_b32 v{t0}, v{t0}, v{t1}'); r(f'v_lshlrev_b32 v{t0}, 4, v{t0}')
    r(f'v_lshl_add_u32 v{aO1}, v{vl15}, 7, v{t0}'); r(f's_add_u32 s{sT}, s{sLW}, {L_OT}'); r(f'v_add_u32 v{aO1}, s{sT}, v{aO1}'); r(f'v_xor_b32 v{aO2}, 64, v{aO1}')
    r(f'v_lshrrev_b32 v{t0}, 3, v0'); r(f'v_xor_b32 v{aOr}, v{t1}, v{t0}'); r(f'v_lshlrev_b32 v{aOr}, 4, v{aOr}'); r(f'v_lshl_add_u32 v{aOr}, v{t0}, 7, v{aOr}'); r(f'v_add_u32 v{aOr}, s{sT}, v{aOr}')
    r(f'v_lshlrev_b32 v{t0}, 15, v{t0}'); r(f'v_lshl_add_u32 v{vY}, v{t1}, 4, v{t0}')
    r(f's_lshl_b32 s{sT}, s{sW4}, 4'); r(f'v_add_u32 v{t0}, s{sT}, v{vl15}'); r(f'v_cvt_f32_u32 v{fk}, v{t0}')
    r(f'v_cvt_f32_u32 v{t0}, s{sT}'); r(f'v_add_f32 v{t0}, v{t0}, v{fg4}')
    for t in range(2):
        if t == 0: r(f'v_mul_f32 v{step}, {F(-1/2048)}, v{fl15}')
        else: r(f'v_add_f32 v{step}, {F(-16/2048)}, v{step}')
        r(f'v_mul_f32 v{base}, v{t0}, v{step}')
        sincos4(r, base, step, 0, tw2c+4*t, tw2s+4*t)
    r(f'v_mul_f32 v{step}, {F(-1/64)}, v{fk}')
    r(f'v_lshrrev_b32 v{t0}, 5, v0'); r(f'v_lshlrev_b32 v{t0}, 2, v{t0}'); r(f'v_cvt_f32_u32 v{t0}, v{t0}')
    r(f'v_bfe_u32 v{t1}, v0, 4, 1')
    r(f'v_xor_b32 v{m}, v{t1}, v0'); r(f'v_lshlrev_b32 v{m}, 31, v{m}'); r(f'v_xor_b32 v{base}, {F(-0.125)}, v{m}')
    r(f'v_cvt_f32_u32 v{m}, v{t1}'); r(f'v_mul_f32 v{m}, 0x3e800000, v{m}')
    r(f'v_cmp_eq_u32 vcc, s{sP}, 0' if False else f'v_cmp_eq_u32_e64 vcc, s{sP}, 0')
    r(f'v_cndmask_b32 v{base}, v{base}, v{m}, vcc')
    r(f'v_cndmask_b32 v{m}, v{t1}, v0, vcc'); r(f'v_lshlrev_b32 v{m}, 31, v{m}')
    r(f'v_xor_b32 v{m2}, 0x80000000, v{m}'); r(f'v_cndmask_b32 v{m2}, v{m2}, v{m}, vcc')
    r(f'v_fmac_f32 v{base}, v{t0}, v{step}')
    r([f's_cmp_eq_u32 s{sP}, 0', f's_cselect_b32 s{sR}, 0x01000100, 0x03020100' if False else f's_mov_b32 s{sR}, 0x03020100', f's_cmov_b32 s{sR}, 0x01000100',
       f's_mov_b32 s{sI}, 0x01000302', f's_cmov_b32 s{sI}, 0x03020302', f's_mov_b32 s{sSC}, {F(math.sqrt(0.5))}', f's_cmov_b32 s{sSC}, {F(0.25)}', f's_mov_b32 s{sSC+1}, s{sSC}'])
    for k in range(2):
        sincos4(r, base, step, 8*k, c, s)
        for i in range(4): r(f'v_cvt_pk_bf16_f32 v{c+i}, v{c+i}, v{s+i}')
        for i in range(4):
            r(f'v_perm_b32 v{B1+k*8+i}, v{c+i}, v{c+i}, s{sR}'); r(f'v_perm_b32 v{B1+k*8+4+i}, v{c+i}, v{c+i}, s{sI}')
        for i in range(4):
            r(f'v_xor_b32 v{B1+k*8+i}, v{m2}, v{B1+k*8+i}'); r(f'v_xor_b32 v{B1+k*8+4+i}, v{m}, v{B1+k*8+4+i}')
    r('s_mov_b32 s4, 0xaaaaaaaa'); r('s_mov_b32 s5, 0xaaaaaaaa')
    r(f'v_bfe_i32 v{m2}, v0, 1, 1'); r(f'v_and_b32 v{m2}, 0x80008000, v{m2}'); r(f'v_xor_b32 v{m}, v{m2}, v{mo}')
    for k in range(2):
        for i in range(4):
            re_, im_ = B1+k*8+i, B1+k*8+4+i
            r(f'v_cndmask_b32 v{re_+16}, v{re_}, v{im_}, s[4:5]'); r(f'v_cndmask_b32 v{im_+16}, v{im_}, v{re_}, s[4:5]')
            r(f'v_xor_b32 v{re_+16}, v{m2}, v{re_+16}'); r(f'v_xor_b32 v{im_+16}, v{m}, v{im_+16}')
    r(f'v_mul_f32 v{step}, {F(-1/2048)}, v{fk}'); r(f'v_mul_f32 v{base}, v{fg4}, v{step}')
    sincos4(r, base, step, 0, tw1c, tw1s); sincos4(r, base, step, 16, tw1c+4, tw1s+4)
    for j in range(0, 8, 2):
        r(f'v_pk_mul_f32 {V(tw1c+j,2)}, {V(tw1c+j,2)}, s[{sSC}:{sSC+1}]'); r(f'v_pk_mul_f32 {V(tw1s+j,2)}, {V(tw1s+j,2)}, s[{sSC}:{sSC+1}]')
    r(f'v_mul_f32 v{step}, {F(1/64)}, v{fk}'); r(f'v_mul_f32 v{base}, v{fg4}, v{step}')
    for k in range(2):
        sincos4(r, base, step, 16*k, c, s); mat6(r, F64+6*k, c, s)
    for j in range(12): r(f'v_xor_b32 v{F64+12+j}, v{mo}, v{F64+j}')
    pend = list(r.l)
    def fill(n):
        while n > 0 and pend:
            x = pend.pop(0)
            for y in (x if isinstance(x, list) else [x]): a(y)
            n -= 1
    print('H const entries', len(pend), file=sys.stderr)
    def readout():
        for j in range(4):
            a(f'ds_read2st64_b32 {V(P+4*j,2)}, v{aO+j} offset0:0 offset1:17'); a(f'ds_read2st64_b32 {V(P+4*j+2,2)}, v{aO+j} offset0:34 offset1:51')
        a(f'ds_read2st64_b32 {V(Wt,2)}, v{stp} offset0:0 offset1:17'); a(f'ds_read2st64_b32 {V(Wt+2,2)}, v{stp} offset0:34 offset1:51')
        a(f's_mul_i32 s{sT}, s{sP}, {ZSTRIDE}'); a(f's_lshl_b32 s{sT+1}, s{sW4}, 12'); a(f's_add_u32 s{sT+1}, s{sT}, s{sT+1}')
        for j in range(4):
            a(LG(8-2*j))
            a(f'buffer_store_dwordx4 {V(P+4*j,4)}, v{vL16}, {SR(sWS)}, s{sT+1} offen offset:{j*1024} sc1')
        Lx = a.newlabel('x')
        a(f's_cmp_lg_u32 s{sW4}, 0'); a(f's_cbranch_scc1 {Lx}')
        a(f's_and_b32 s{sT}, s{sP}, 0x30'); a(f's_lshl_b32 s{sT}, s{sT}, 7'); a(f's_and_b32 s{sT+1}, s{sP}, 15'); a(f's_lshl_b32 s{sT+1}, s{sT+1}, 4'); a(f's_add_u32 s{sT}, s{sT}, s{sT+1}')
        a(f's_and_b32 s{sT+1}, s{sP}, 0xc0'); a(f's_lshl_b32 s{sT+1}, s{sT+1}, 2'); a(f's_add_u32 s{sT}, s{sT}, s{sT+1}'); a(f's_add_u32 s{sT}, s{sT}, {WS_B}')
        a(f'v_lshlrev_b32 v{tmp}, 10, v0')
        a('s_waitcnt lgkmcnt(0)'); a('s_mov_b64 exec, 3')
        a(f'buffer_store_dwordx4 {V(Wt,4)}, v{tmp}, {SR(sWS)}, s{sT} offen sc1')
        a('s_mov_b64 exec, -1')
        a(f's_cmp_ge_u32 s{sP}, 34'); a(f's_cbranch_scc1 {Lx}')
        for j in range(4): a(f'v_mov_b32 v{tmp+j}, 0')
        a(f's_lshl_b32 s{sT}, s{sP}, 10'); a(f's_add_u32 s{sT}, s{sT}, {WS_KV}')
        a(f'buffer_store_dwordx4 {V(tmp,4)}, v{vL16}, {SR(sWS)}, s{sT} offen sc1'); a('s_nop 1')
        a.label(Lx)
        ST('zst')
    per = opt('hfill', 32)
    FB = opt('fb', 3)
    PI = opt('pi', 5)
    sMs = sT+3; sP1 = 18; sR1 = sT+2
    a(f's_lshl_b32 s{sT+1}, s{sW4}, 8'); a(f's_add_u32 s{sP1}, s{sPB}, s{sT+1}'); a(f's_addc_u32 s{sP1+1}, s{sPB+1}, 0')
    def f1poll(): spoll(a, sR0, sP1, C_F1); spoll(a, sR1, sP1, C_F1+256)
    def f1test(): a(f's_and_b32 s{sR0}, s{sR0}, s{sR1}'); a(f's_cmp_lg_u32 s{sR0}, 32')
    a(f's_mul_i32 s{sMs}, s{sW4}, {64*ZSTRIDE}'); a(f's_lshl_b32 s{sT+1}, s{sP}, 6'); a(f's_add_u32 s{sMs}, s{sMs}, s{sT+1}')
    Bv = R.alloc(8) if False else P - 0
    def msgs():
        Lm = a.newlabel('m')
        a(f's_cmp_lg_u32 s{sP}, 0'); a(f's_cbranch_scc1 {Lm}')
        a(f's_getpc_b64 s[{sSX}:{sSX+1}]'); a('s_branch L_sp3')
        a.label(Lm)
        for j in range(4):
            if j: a(f's_add_u32 s{sMs}, s{sMs}, {16*ZSTRIDE}')
            a(f'buffer_load_dwordx4 {V(IN+4*j,4)}, v{vA}, {SR(sWS)}, s{sMs} offen sc1')
        arrive(a, 3)
    WI = opt('wi', 0)
    if P1I >= 0:
        fill(44); a(f's_waitcnt vmcnt({6 if opt("rpos", 0) else 4})')
    NZ = 8
    for cch in range(7):
        if cch == FB: a('s_waitcnt vmcnt(0)')
        ST(f'_hb{cch}')
        a('s_barrier')
        ST(f'_hc{cch}')
        if cch in (1, 2, 4, 6): ST(f'B{cch}')
        if cch == WI+1 and not opt('noh', 0): readout()
        if cch == P1I: p1()
        if loc(cch, 'X') < 65536: a(f'ds_read_b128 {V(GX,4)}, v{aGx} offset:{loc(cch, "X")}')
        else: a(f'v_add_u32 v{GX}, {loc(cch, "X")}, v{aGx}'); a(f'ds_read_b128 {V(GX,4)}, v{GX}')
        a(f'ds_read_b128 {V(GX+4,4)}, v{aGw} offset:{cch*128}')
        nf = opt('h6', 16) if cch == 6 else (opt('h0', 56) if (cch == 0 and P1I < 0) else (per if cch > WI+1 else 0))
        early = cch > WI+1
        if early and cch not in (FB, 6): fill(10); nf -= 10
        if not early:
            fill(nf); nf = 0
            if cch == WI and not opt('noh', 0): wprep()
        a('s_waitcnt lgkmcnt(0)')
        if cch == FB:
            Lf = a.newlabel('f'); Lr = a.newlabel('r'); Lr2 = a.newlabel('r')
            a(f's_cmp_lg_u32 s{sW4}, 0'); a(f's_cbranch_scc1 {Lf}')
            a(f's_mov_b32 s{sCNT}, 0x20000')
            a.label(Lr)
            a(f's_cmp_eq_u32 s{sR0}, {NZ}'); a(f's_cbranch_scc1 {Lr2}')
            a('s_sleep 8'); a(f's_load_dword s{sR0}, s[{sDBG}:{sDBG+1}], 0 glc'); a('s_waitcnt lgkmcnt(0)')
            a(f's_sub_u32 s{sCNT}, s{sCNT}, 1'); a(f's_cbranch_scc0 {Lr}')
            a.label(Lr2)
            signal(a, C_F1, sXCD); a.label(Lf)
        if cch == FB-1:
            Lw = a.newlabel('w')
            a(f's_cmp_lg_u32 s{sW4}, 0'); a(f's_cbranch_scc1 {Lw}')
            a(f's_load_dword s{sR0}, s[{sDBG}:{sDBG+1}], 0'); a.label(Lw)
        if cch == PI:
            assert PI > FB and PI < 6
            f1poll()
            a(f's_cmp_eq_u32 s{sP}, 0'); a('s_cbranch_scc1 L_sp4'); a.label('L_sp4r')
        if cch == 6:
            Ll = a.newlabel('late')
            a(f's_mov_b32 s{sCNT}, 0x20000')
            f1test(); a(f's_cbranch_scc1 {Ll}')
            msgs()
            a(f's_mov_b32 s{sCNT}, 0')
            a.label(Ll)
        for j in range(4): a(f'v_dot2_f32_bf16 v{gacc}, v{GX+j}, v{GX+4+j}, v{gacc}')
        fill(nf)
    a('s_barrier')
    ST('B7')
    a(f'ds_read_b128 {V(GX,4)}, v{aGx} offset:{loc(7, "X")}'); a(f'ds_read_b128 {V(GX+4,4)}, v{aGw} offset:{7*128}')
    Lp = a.newlabel('p'); Lq = a.newlabel('q'); Lok = a.newlabel('ok')
    a(f's_cmp_eq_u32 s{sCNT}, 0'); a(f's_cbranch_scc1 {Lok}')
    a.label(Lp)
    a(f's_sub_u32 s{sCNT}, s{sCNT}, 1'); a(f's_cbranch_scc1 {Lq}')
    f1poll(); a('s_waitcnt lgkmcnt(0)')
    f1test(); a(f's_cbranch_scc1 {Lp}')
    a.label(Lq)
    msgs()
    a.label(Lok)
    fill(10000)
    a('s_waitcnt lgkmcnt(0)')
    for j in range(4): a(f'v_dot2_f32_bf16 v{gacc}, v{GX+j}, v{GX+4+j}, v{gacc}')
    ST('c2')
    for j in range(4):
        a(f's_waitcnt vmcnt({3-j})')
        a(f'ds_write_b128 v{aW}, {V(IN+4*j,4)} offset:{(j&1)*4096 + (j>>1)*512}')
    arrive(a, 4); sync_wait(a, GRP_H, 4)
    ST('in')
    Wv = R.alloc(8)
    for n in range(8): a(f'ds_read_b128 {V(IN+4*n,4)}, v{aI} offset:{n*1024}')
    for t in range(2): a(f'ds_read_b128 {V(Wv+4*t,4)}, v{aWr} offset:{t*256}')
    for t in range(2):
        for k in range(4):
            n = t*4+k
            a(LG(9-n))
            a(f'{M16} {V(Dr+4*t,4)}, {V(IN+4*n,4)}, {V(B1+8*k,4)}, {"0" if k==0 else V(Dr+4*t,4)}')
            a(f'{M16} {V(Di+4*t,4)}, {V(IN+4*n,4)}, {V(B1+8*k+4,4)}, {"0" if k==0 else V(Di+4*t,4)}')
    for t in range(2): cmul_pack(a, Dr+4*t, Di+4*t, tw1c+4*t, tw1s+4*t, X+4*t, tmp)
    for t in range(2):
        for u in range(2):
            T = F32T + (u*2+t)*6
            a(f'{M16} {V(Dr+4*u,4)}, {V(T+2,4)}, {V(X+4*t,4)}, {"0" if t==0 else V(Dr+4*u,4)}')
            a(f'{M16} {V(Di+4*u,4)}, {V(T,4)}, {V(X+4*t,4)}, {"0" if t==0 else V(Di+4*u,4)}')
    a('s_waitcnt lgkmcnt(0)')
    a(f's_cmp_eq_u32 s{sP}, 0'); a('s_cbranch_scc1 L_sp2')
    for j in range(8):
        a(f'v_lshlrev_b32 v{wc+j}, 16, v{Wv+j}'); a(f'v_and_b32 v{wsn+j}, 0xffff0000, v{Wv+j}')
    for u in range(2): cmul_pack(a, Dr+4*u, Di+4*u, wc+4*u, wsn+4*u, X+4*u, tmp, conj_out=True)
    a.label('L_sp2r')
    for u in range(2):
        for t in range(2):
            T = F32T + (t*2+u)*6
            a(f'{M16} {V(Dr+4*t,4)}, {V(X+4*u,4)}, {V(T+2,4)}, {"0" if u==0 else V(Dr+4*t,4)}')
            a(f'{M16} {V(Di+4*t,4)}, {V(X+4*u,4)}, {V(T,4)}, {"0" if u==0 else V(Di+4*t,4)}')
    for t in range(2):
        cmul_pack(a, Dr+4*t, Di+4*t, tw2c+4*t, tw2s+4*t, X+4*t, tmp)
        a(f'ds_write_b128 v{aE}, {V(X+4*t,4)} offset:{t*4096}')
    ST('_e0')
    arrive(a, 7); sync_wait(a, GRP_H, 7)
    ST('_e1')
    for n in range(8): a(f'ds_read_b128 {V(IN+4*n,4)}, v{aI2} offset:{n*1024}')
    for t in range(2):
        for k in range(4):
            n = t*4+k; T = F64 + 6*k
            a(LG(7-n))
            a(f'{M16} {V(Dr+4*t,4)}, {V(IN+4*n,4)}, {V(T+2,4)}, {"0" if k==0 else V(Dr+4*t,4)}')
            a(f'{M16} {V(Di+4*t,4)}, {V(IN+4*n,4)}, {V(T,4)}, {"0" if k==0 else V(Di+4*t,4)}')
    a(f's_lshl_b32 s{sT}, s{sW4}, 19'); a(f's_lshl_b32 s{sT+1}, s{sP}, 7'); a(f's_add_u32 s{sT}, s{sT}, s{sT+1}'); a(f's_add_u32 s{sT}, s{sT}, {WS_Y}')
    a(f's_add_u32 s{sT+1}, s{sT}, {8*32768}')
    for t in range(2):
        a(f'v_cvt_pk_bf16_f32 v{X+4*t}, v{Dr+4*t}, v{Dr+4*t+1}'); a(f'v_cvt_pk_bf16_f32 v{X+4*t+1}, v{Dr+4*t+2}, v{Dr+4*t+3}')
        a(f'v_cvt_pk_bf16_f32 v{X+4*t+2}, v{Di+4*t}, v{Di+4*t+1}'); a(f'v_cvt_pk_bf16_f32 v{X+4*t+3}, v{Di+4*t+2}, v{Di+4*t+3}')
        a(f'ds_write_b128 v{aO1 if t==0 else aO2}, {V(X+4*t,4)}')
    a(f'ds_read_b128 {V(IN,4)}, v{aOr}'); a(f'ds_read_b128 {V(IN+4,4)}, v{aOr} offset:1024')
    a(LG(1)); a(f'buffer_store_dwordx4 {V(IN,4)}, v{vY}, {SR(sWS)}, s{sT} offen sc1')
    a('s_waitcnt lgkmcnt(0)'); a(f'buffer_store_dwordx4 {V(IN+4,4)}, v{vY}, {SR(sWS)}, s{sT+1} offen sc1')
    ST('yst')
    a(f'v_add_f32_dpp v{gacc}, v{gacc}, v{gacc} quad_perm:[1,0,3,2] {dp}')
    a(f'v_add_f32_dpp v{gacc}, v{gacc}, v{gacc} quad_perm:[2,3,0,1] {dp}')
    a(f'v_add_f32_dpp v{gacc}, v{gacc}, v{gacc} row_half_mirror {dp}')
    a(f'v_lshrrev_b32 v{t0}, 3, v0'); a(f's_lshl_b32 s{sT}, s{sW4}, 5'); a(f's_add_u32 s{sT}, s{sT}, {L_GP}'); a(f'v_lshl_add_u32 v{t0}, v{t0}, 2, s{sT}')
    a(f'v_cvt_pk_bf16_f32 v{gacc}, v{gacc}, v{gacc}'); a(f'v_and_b32 v{gacc}, 0xffff0000, v{gacc}')
    a(f'v_mul_f32 v{gacc}, {F(-LOG2E)}, v{gacc}'); a(f'v_exp_f32 v{gacc}, v{gacc}'); a(f'v_add_f32 v{gacc}, 1.0, v{gacc}'); a(f'v_rcp_f32 v{gacc}, v{gacc}')
    a(f'v_cvt_pk_bf16_f32 v{gacc}, v{gacc}, v{gacc}'); a(f'v_and_b32 v{gacc}, 0xffff0000, v{gacc}')
    a(f'ds_write_b32 v{t0}, v{gacc}')
    fin_table(a, lambda i: None)
    fin_setup(a)
    a('s_waitcnt vmcnt(0)'); signal_last(a, 36, 3, C_FY, sXCD); ST('fy')
    SP.update(locals())
    return R.hi

def gen_special(a):
    g = SP
    t0, t1, B1 = [g[k] for k in ('t0','t1','B1')]
    IN, Dr, Di, Wv, tmp, wc, wsn, X, vl15 = [g[k] for k in ('IN','Dr','Di','Wv','tmp','wc','wsn','X','vl15')]
    a.label('L_sp5'); a.hist = []
    srdc(a, sWS)
    a(f'v_lshlrev_b32 v{vS+2}, 8, v0'); a(f's_mul_i32 s{sU}, s{sXCD}, {48*256}'); a(f's_add_u32 s{sU}, s{sU}, {WS_C}')
    a('s_mov_b32 exec_hi, 0xffff')
    a(f'buffer_store_dword v{vS}, v{vS+2}, {SR(sWS)}, s{sU} offen sc1')
    a('s_mov_b32 exec_hi, -1')
    a('s_branch L_sp5r')
    a.label('L_sp6')
    a(f's_mov_b32 s{sU}, 1'); a(f's_atomic_add s{sU}, s[{sDBG}:{sDBG+1}], 0'); a('s_waitcnt lgkmcnt(0)')
    a('s_branch L_sp6r')
    a.label('L_sp4'); a.hist = []
    for j in range(8): spoll(a, 20+j, sC, C_F1+256*j)
    a('s_branch L_sp4r')
    a.label('L_sp3'); a.hist = []
    a(f's_mov_b32 s{sT+7}, 0x20000')
    a('s_branch L_sp3c')
    a.label('L_sp3p')
    a(f's_sub_u32 s{sT+7}, s{sT+7}, 1'); a('s_cbranch_scc1 L_sp3q')
    for j in range(8): spoll(a, 20+j, sC, C_F1+256*j)
    a.label('L_sp3c')
    a('s_waitcnt lgkmcnt(0)')
    for j in range(1, 8): a(f's_and_b32 s20, s20, s{20+j}')
    a('s_cmp_lg_u32 s20, 32'); a('s_cbranch_scc1 L_sp3p')
    a.label('L_sp3q')
    a(f's_add_u32 s{sT+6}, s{sLW}, {WS_B}')
    a(f'buffer_load_dwordx4 {V(wsn,4)}, v{vL16}, {SR(sWS)}, s{sT+6} offen sc1'); a(f'buffer_load_dwordx4 {V(wsn+4,4)}, v{vL16}, {SR(sWS)}, s{sT+6} offen offset:1024 sc1')
    a(f's_add_u32 s{sSX}, s{sSX}, 4'); a(f's_addc_u32 s{sSX+1}, s{sSX+1}, 0'); a(f's_setpc_b64 s[{sSX}:{sSX+1}]')
    a.label('L_sp2'); a.hist = []
    bc = IN; bs = IN+8; N = IN+16; t2 = IN+24; Nr = B1; Ni = B1+8; Yr = B1+16; Yi = B1+24
    a(f'v_lshrrev_b32 v{t0}, 4, v0'); a(f's_lshl_b32 s{sT}, s{sW4}, 4'); a(f'v_lshl_add_u32 v{t0}, v{t0}, 8, v{vl15}'); a(f'v_add_u32 v{t0}, s{sT}, v{t0}')
    a(f'v_sub_u32 v{t1}, {2047-64*19}, v{t0}'); a(f's_mov_b32 s{sT}, {L_EX}'); a(f'v_lshl_add_u32 v{t1}, v{t1}, 2, s{sT}')
    a(f'v_subrev_u32 v{t0}, 1, v{t0}'); a(f'v_and_b32 v{t2}, 2047, v{t0}')
    a(f'v_lshl_add_u32 v{t0}, v{t0}, 2, s{sT}'); a(f'v_lshl_add_u32 v{t2}, v{t2}, 2, s{sT}')
    for j in range(8): a(f'v_cvt_pk_bf16_f32 v{N+j}, v{Dr+j}, v{Di+j}')
    a(f'ds_write_b32 v{t2}, v{N}'); a(f'ds_write_b32 v{t0}, v{N+1} offset:256')
    for j in (2, 4, 6):
        o = 16*(j//4) + j%4
        a(f'ds_write2st64_b32 v{t0}, v{N+j}, v{N+j+1} offset0:{o} offset1:{o+1}')
    arrive(a, 6); sync_read(a, GRP_H)
    for j in range(8):
        a(f'v_lshlrev_b32 v{bc+j}, 16, v{wsn+j}'); a(f'v_and_b32 v{bs+j}, 0xffff0000, v{wsn+j}')
    sync_check(a, GRP_H, 6)
    for j in range(0, 8, 2):
        o = 19 - 16*(j//4) - j%4
        a(f'ds_read2st64_b32 {V(N+j,2)}, v{t1} offset0:{o} offset1:{o-1}')
    for j in range(8):
        a(f'v_lshlrev_b32 v{wc+j}, 16, v{Wv+j}'); a(f'v_and_b32 v{wsn+j}, 0xffff0000, v{Wv+j}')
    ng = 'neg_lo:[1,0,0] neg_hi:[1,0,0]'
    for j in range(0, 8, 2):
        a(f'v_pk_mul_f32 {V(Yr+j,2)}, {V(Dr+j,2)}, {V(wc+j,2)}'); a(f'v_pk_mul_f32 {V(Yi+j,2)}, {V(Dr+j,2)}, {V(wsn+j,2)}')
    for j in range(0, 8, 2):
        a(f'v_pk_fma_f32 {V(Yr+j,2)}, {V(Di+j,2)}, {V(wsn+j,2)}, {V(Yr+j,2)} {ng}'); a(f'v_pk_fma_f32 {V(Yi+j,2)}, {V(Di+j,2)}, {V(wc+j,2)}, {V(Yi+j,2)}')
    a('s_waitcnt lgkmcnt(0)')
    for j in range(8):
        a(f'v_lshlrev_b32 v{Nr+j}, 16, v{N+j}'); a(f'v_and_b32 v{Ni+j}, 0xffff0000, v{N+j}')
    for j in range(0, 8, 2):
        a(f'v_pk_fma_f32 {V(Yr+j,2)}, {V(Nr+j,2)}, {V(bc+j,2)}, {V(Yr+j,2)}'); a(f'v_pk_fma_f32 {V(Yi+j,2)}, {V(Nr+j,2)}, {V(bs+j,2)}, {V(Yi+j,2)}')
    for j in range(0, 8, 2):
        a(f'v_pk_fma_f32 {V(Yr+j,2)}, {V(Ni+j,2)}, {V(bs+j,2)}, {V(Yr+j,2)}'); a(f'v_pk_fma_f32 {V(Yi+j,2)}, {V(Ni+j,2)}, {V(bc+j,2)}, {V(Yi+j,2)} {ng}')
    for u in range(2):
        a(f'v_cvt_pk_bf16_f32 v{X+4*u}, v{Yr+4*u}, v{Yr+4*u+1}'); a(f'v_cvt_pk_bf16_f32 v{X+4*u+1}, v{Yr+4*u+2}, v{Yr+4*u+3}')
        a(f'v_cvt_pk_bf16_f32 v{X+4*u+2}, -v{Yi+4*u}, -v{Yi+4*u+1}'); a(f'v_cvt_pk_bf16_f32 v{X+4*u+3}, -v{Yi+4*u+2}, -v{Yi+4*u+3}')
    a('s_nop 1'); a('s_branch L_sp2r')

def gen_G0(a, ST):
    R = Regs(190)
    vd = R.alloc(6); t0, t1 = R.alloc(), R.alloc()
    srdc(a, sWQ); ids_gemm(a)
    dma_setup(a, vd, t0, t1)
    B0 = dma_group(0, vd)
    for l in B0[0][:-1]: a(l)
    a('s_waitcnt lgkmcnt(0)'); ST('karg')
    a(B0[0][-1])
    for b in B0[1:]: emit(a, b)
    return R, vd, t0, t1

def gen_G(a, ST, G):
    R, vd, t0, t1 = G
    bf = 42; NB = 3; BS = 28; accK = 126; accV = 142; accQ = 158; tmp = 174
    late_common(a)
    Q = []
    for g in range(1, 8): Q += dma_group(g, vd)
    iss = [8]
    def dma(limit):
        if iss[0] < min(limit, 64):
            emit(a, Q[iss[0]-8], WIN-1 if iss[0] >= WIN else None); iss[0] += 1
    while iss[0] < opt('w0', 12): dma(64)
    fin_table(a, lambda i: None); fin_setup(a)
    aA = R.alloc(4); aB = R.alloc(2)
    a(f'v_bfe_u32 v{t1}, v0, 1, 3'); a(f'v_lshrrev_b32 v{t0}, 4, v0'); a(f'v_xor_b32 v{t1}, v{t1}, v{t0}'); a(f'v_lshlrev_b32 v{t1}, 4, v{t1}')
    a(f'v_and_b32 v{aA}, 15, v0'); a(f'v_lshl_add_u32 v{aA}, v{aA}, 7, v{t1}')
    a(f'v_xor_b32 v{aA+1}, 64, v{aA}'); a(f'v_add_u32 v{aA+2}, 65536, v{aA}'); a(f'v_add_u32 v{aA+3}, 65536, v{aA+1}')
    a(f'v_lshrrev_b32 v{t0}, 5, v0'); a(f'v_lshlrev_b32 v{aB}, 12, v{t0}')
    a(f'v_bfe_u32 v{t1}, v0, 4, 1'); a(f'v_lshl_add_u32 v{aB}, v{t1}, 10, v{aB}')
    a(f'v_bfe_u32 v{t1}, v0, 2, 2'); a(f'v_lshl_add_u32 v{aB}, v{t1}, 7, v{aB}')
    a(f'v_bfe_u32 v{t1}, v0, 3, 2'); a(f'v_xor_b32 v{t1}, s{sW4}, v{t1}'); a(f'v_lshl_add_u32 v{aB}, v{t1}, 5, v{aB}')
    a(f'v_and_b32 v{t1}, 3, v0'); a(f'v_lshl_add_u32 v{aB}, v{t1}, 3, v{aB}')
    a(f'v_add_u32 v{aB+1}, 65536, v{aB}')
    a(f's_mov_b32 s{sL2E}, {F(LOG2E)}'); a(f's_mov_b32 s{sL2E+1}, {F(LOG2E)}')
    aK, aR, vAt, vPq, vwo = R.alloc(), R.alloc(), R.alloc(), R.alloc(), R.alloc(2)
    a(f's_mul_i32 s{sT}, s{sW4}, 1088'); a(f's_add_u32 s{sT+1}, s{sT}, {L_KVR}')
    a(f'v_lshrrev_b32 v{t0}, 4, v0'); a(f'v_mul_u32_u24 v{t0}, 272, v{t0}'); a(f'v_and_b32 v{t1}, 0xf0, v{vL16}'); a(f'v_add3_u32 v{aK}, v{t0}, v{t1}, s{sT+1}')
    a(f'v_lshlrev_b32 v{vAt}, 2, v0'); a(f'v_add_u32 v{aR}, s{sT+1}, v{vAt}')
    a(f'v_bfe_u32 v{t0}, v0, 4, 1'); a(f'v_lshl_add_u32 v{vPq}, v{t0}, 9, v{t1}'); a(f'v_lshrrev_b32 v{t0}, 5, v0'); a(f'v_lshl_add_u32 v{vPq}, v{t0}, 8, v{vPq}')
    a(f'v_lshrrev_b32 v{t0}, 4, v0'); a(f'v_lshlrev_b32 v{vwo}, 5, v{t0}'); a(f'v_xor_b32 v{t1}, v{t1}, v{vwo}')
    a(f'v_and_b32 v{vwo}, 128, v{t1}'); a(f'v_mad_u32_u24 v{t1}, v{vwo}, 3, v{t1}')
    a(f'v_lshl_add_u32 v{vwo}, v{t0}, 10, v{t1}'); a(f'v_xor_b32 v{vwo+1}, 512, v{vwo}'); a(f'v_add_u32 v{vwo+1}, 3072, v{vwo+1}')
    sA0, sPq, sWu, sWo, sTo = sT, sT+2, sT+3, sT+4, sT+5
    a(f's_mul_i32 s{sT+1}, s{sHG}, 4352'); a(f's_add_u32 s{sA0}, s{sT}, s{sT+1}'); a(f's_add_u32 s{sA0}, s{sA0}, {WS_KV}')
    a(f's_lshl_b32 s{sPq}, s{sROW0}, 10'); a(f's_lshl_b32 s{sT+1}, s{sHG}, 12'); a(f's_add_u32 s{sPq}, s{sPq}, s{sT+1}')
    a(f's_lshl_b32 s{sT+1}, s{sW4}, 10'); a(f's_add_u32 s{sPq}, s{sPq}, s{sT+1}'); a(f's_add_u32 s{sPq}, s{sPq}, {WS_PQ}')
    a(f's_lshl_b32 s{sT+1}, s{sHL}, 7'); a(f's_lshl_b32 s{sWo}, s{sW4}, 13'); a(f's_add_u32 s{sWo}, s{sWo}, s{sT+1}')
    a(f's_lshr_b32 s{sTo}, s{sIDX}, 2')
    ones = R.alloc(4)
    for j in range(4): a(f'v_mov_b32 v{ones+j}, 0x3f803f80')
    a('s_waitcnt lgkmcnt(0)')
    ST('iss')
    def buf(c, k): return bf + ((c*2+k) % NB)*BS
    def rdlist(c, k):
        b = buf(c, k); L = []
        def tr(dst, ad):
            q = ad // 65536; L.append(f'ds_read_b64_tr_b16 {V(dst,2)}, v{aB+q} offset:{ad-q*65536}')
        def xr(t):
            ad = loc(c, 'X') + t*BLK; q = ad // 65536
            L.append(f'ds_read_b128 {V(b+4*t,4)}, v{aA+2*q+k} offset:{ad-q*65536}')
        def wr(i):
            for jj in range(2): tr(b+16+4*i+2*jj, loc(c, 'KVQ'[i]) + 2*k*BLK + jj*512)
        wr(0); xr(0); xr(1); wr(1); xr(2); xr(3); wr(2)
        if opt('nord', 0) and 0 < c < 7: L = ['s_nop 0']*10
        return L
    def mm(c, k, i, t):
        if opt('nomm', 0) and 0 < c < 7: return
        b = buf(c, k); acc = (accK, accV, accQ)[i] + 4*t; C = "0" if (c == 0 and k == 0) else V(acc,4)
        if i < 2: a(f'{M16} {V(acc,4)}, {V(b+4*t,4)}, {V(b+16+4*i,4)}, {C}')
        else: a(f'{M16} {V(acc,4)}, {V(b+24,4)}, {V(b+4*t,4)}, {C}')
    nwo = [0]
    def wo_dma(thr=None):
        i = nwo[0]
        if i >= 32: return
        u, ii = WO_ORDER[i//2], i & 1
        if ii == 0:
            a(f's_add_u32 m0, s{sLW}, {wo_unit(u)}')
            a(f's_add_u32 s{sWu}, s{sTo}, {u & 7}'); a(f's_and_b32 s{sWu}, s{sWu}, 7')
            if u >= 8: a(f's_or_b32 s{sWu}, s{sWu}, 8')
            a(f's_lshl_b32 s{sWu}, s{sWu}, 15'); a(f's_add_u32 s{sWu}, s{sWu}, s{sWo}')
        if thr is not None: a(f's_waitcnt vmcnt({thr})')
        a(f'buffer_load_dwordx4 v{vwo+ii}, {SR(sWO)}, s{sWu} offen' + (' offset:1024' if ii else '') + ' lds')
        nwo[0] += 1
    order = [(i, t) for i in range(3) for t in range(4)]
    LAG = 6; AH = opt('ah', 8)
    for c in range(8):
        ST(f'_ga{c}')
        while iss[0] < min(8*c + 8 + (AH if c else opt('ah0', 4)), 64): dma(64)
        a(f's_waitcnt vmcnt({iss[0] - 8*c - 8}) lgkmcnt(0)')
        ST(f'_gb{c}')
        a('s_barrier')
        ST(f'_gc{c}'); ST(f'_T{c}')
        if c in (0, 1, 2, 4, 7): ST(f'B{c}')
        if c == opt('gpc', 7) and opt('gp', 0): a(f's_setprio {opt("gp", 0)}')
        lim = 8*c + 16 + AH
        last = c == 7
        for l in rdlist(c, 0): a(l)
        r1 = rdlist(c, 1)
        for l in r1[:5]: a(l)
        if last:
            for _ in range(opt('wa', 2)): wo_dma()
        if c == 0:
            for _ in range(4): dma(lim)
        if c > 0:
            for n, (i, t) in enumerate(order[12-LAG:]):
                mm(c-1, 1, i, t)
                if n % 3 == 0: dma(lim)
        a(LG(5))
        if last:
            for l in r1[5:]: a(l)
        for n, (i, t) in enumerate(order[:4] if last else order):
            mm(c, 0, i, t)
            if last: continue
            if n < 5: a(r1[5+n])
            elif n % 2 == 1: dma(lim)
        a('s_waitcnt lgkmcnt(0)')
        for n, (i, t) in enumerate(order[:4] if last else order[:12-LAG]):
            mm(c, 1, i, t)
            if n % 3 == 0: dma(lim)
    sync_read(a, GRP_H)
    pk = accK; vv = accK+8; Dk = accV; Dz = accV+4
    restm = [(k, 1, t) for k in range(2) for t in range(4)] + [(k, 2, t) for k in range(2) for t in range(4)]
    for _ in range(5): mm(7, *restm.pop(0))
    rr = Rec(); phi_pack(rr, accK, 16, pk, tmp)
    WB = opt('wb', 2)
    for n, l in enumerate(rr.l):
        a(l)
        if n % 3 == 2 and restm: mm(7, *restm.pop(0))
        if WB and n % (len(rr.l)//WB) == 4: wo_dma()
    assert not restm
    for j in range(8): a(f'v_cvt_pk_bf16_f32 v{vv+j}, v{accV+2*j}, v{accV+2*j+1}')
    a(f'{M16} {V(Dk,4)}, {V(pk,4)}, {V(vv,4)}, 0'); a(f'{M16} {V(Dz,4)}, {V(pk,4)}, {V(ones,4)}, 0')
    a(f'{M16} {V(Dk,4)}, {V(pk+4,4)}, {V(vv+4,4)}, {V(Dk,4)}'); a(f'{M16} {V(Dz,4)}, {V(pk+4,4)}, {V(ones,4)}, {V(Dz,4)}')
    ST('kvm')
    for j in range(0, 16, 2): a(f'v_pk_mul_f32 {V(tmp+j,2)}, {V(accQ+j,2)}, s[{sL2E}:{sL2E+1}]')
    a(f'ds_write_b128 v{aK}, {V(Dk,4)}')
    a('s_mov_b32 exec_lo, 0x00010001'); a('s_mov_b32 exec_hi, 0x00010001')
    a(f'ds_write_b128 v{aK}, {V(Dz,4)} offset:256')
    a('s_mov_b64 exec, -1')
    Pp = accV+8
    a(f'ds_read2st64_b32 {V(Pp,2)}, v{aR} offset0:0 offset1:1'); a(f'ds_read2st64_b32 {V(Pp+2,2)}, v{aR} offset0:2 offset1:3'); a(f'ds_read_b32 v{Pp+4}, v{aR} offset:1024')
    for j in range(6):
        a(f'v_exp_f32_e64 v{tmp+j}, v{tmp+j} clamp'); a(f'v_max_f32 v{accQ+j}, {F(1e-6)}, v{accQ+j}')
    sync_check(a, GRP_H, 3)
    for rnd in range(4): a(f'buffer_atomic_add_f32 v{Pp+rnd}, v{vAt}, {SR(sWS)}, s{sA0} offen' + (f' offset:{rnd*256}' if rnd else ''))
    a('s_mov_b64 exec, 0xffff'); a(f'buffer_atomic_add_f32 v{Pp+4}, v{vAt}, {SR(sWS)}, s{sA0} offen offset:1024'); a('s_mov_b64 exec, -1')
    arrive(a, 11)
    ST('atom')
    for j in range(6, 16):
        a(f'v_exp_f32_e64 v{tmp+j}, v{tmp+j} clamp'); a(f'v_max_f32 v{accQ+j}, {F(1e-6)}, v{accQ+j}')
    for j in range(0, 16, 2): a(f'v_pk_add_f32 {V(tmp+j,2)}, {V(tmp+j,2)}, {V(accQ+j,2)}')
    for j in range(0, 16, 2): a(f'v_cvt_pk_bf16_f32 v{accK+j//2}, v{tmp+j}, v{tmp+j+1}')
    for rt in range(2):
        a(f'v_permlane32_swap_b32 v{accK+4*rt}, v{accK+4*rt+2}'); a(f'v_permlane32_swap_b32 v{accK+4*rt+1}, v{accK+4*rt+3}')
    a(f'buffer_store_dwordx4 {V(accK,4)}, v{vPq}, {SR(sWS)}, s{sPq} offen sc1')
    a(f's_add_u32 s{sPq}, s{sPq}, 32768')
    a(f'buffer_store_dwordx4 {V(accK+4,4)}, v{vPq}, {SR(sWS)}, s{sPq} offen sc1')
    ST('qst')
    if opt('gp', 0): a('s_setprio 0')
    WW = opt('ww', 10); NS = opt('ns', 8)
    for i in range(32):
        if nwo[0] >= 32: break
        if nwo[0] == 22: sync_wait(a, GRP_H, 4); sync_wait(a, GRP_G, 11)
        if i == NS:
            a(f's_waitcnt vmcnt({NS})'); signal_last(a, 32, 3, C_FK, sHG); ST('fk')
        wo_dma(WW-1 if i >= max(NS, WW) else None)
    assert R.hi <= YL, R.hi
    ST('tab')
    return R.hi

fT0, fT1, fOMG, fG, fYW, fO, fHP, fOUT, fKV, fF, fP, fO2 = [FT+8+i for i in (0,1,2,4,6,8,9,10,11,12,13,3)]
fY = FT; fC = FT+2; fOW = FT+4; fB = FT+6
sFY, sFPQ, sFKV, sFOUT, sFFK, sFFY = 12, 13, 14, 15, 16, 17
def fin_setup(a):
    t0, t1 = fT0, fT1
    a(f'v_and_b32 v{t0}, 31, v0'); a(f'v_lshlrev_b32 v{t1}, 2, v{t0}'); a(f'v_add_u32 v{fOMG}, {L_GP}, v{t1}')
    a(f'v_and_b32 v{fG}, 60, v{t1}'); a(f's_lshl_b32 s{sT}, s{sKH}, 6'); a(f's_add_u32 s{sT}, s{sT}, {L_GP}'); a(f'v_add_u32 v{fG}, s{sT}, v{fG}')
    a(f'v_lshrrev_b32 v{t1}, 5, v0'); a(f'v_mul_u32_u24 v{fO}, 272, v{t1}'); a(f'v_min_u32 v{fKV}, 16, v{t0}'); a(f'v_lshl_add_u32 v{fKV}, v{fKV}, 4, v{fO}')
    a(f'v_bfe_u32 v{t0}, v0, 2, 3'); a(f'v_lshl_add_u32 v{fB}, v{t1}, 4, v{t0}'); a(f'v_lshlrev_b32 v{fB}, 8, v{fB}')
    a(f'v_xor_b32 v{t0}, s{sW4}, v{t0}'); a(f'v_lshl_add_u32 v{fB}, v{t0}, 5, v{fB}')
    a(f'v_and_b32 v{t0}, 3, v0'); a(f'v_lshl_add_u32 v{fB}, v{t0}, 3, v{fB}'); a(f'v_xor_b32 v{fB+1}, 128, v{fB}')
    a(f'v_bfe_u32 v{t1}, v0, 3, 1'); a(f'v_and_b32 v{fYW}, 0x70, v{vL16}'); a(f'v_lshl_add_u32 v{fYW}, v{t1}, 14, v{fYW}')
    a(f'v_lshlrev_b32 v{fY}, 7, v{t1}'); a(f'v_lshl_add_u32 v{fY}, v{t0}, 4, v{fY}')
    a(f'v_lshrrev_b32 v{t1}, 4, v0'); a(f'v_lshl_add_u32 v{fYW}, v{t1}, 7, v{fYW}')
    a(f's_lshl_b32 s{sT}, s{sWV}, 11'); a(f'v_add_u32 v{fYW}, s{sT}, v{fYW}'); a(f'v_xor_b32 v{fYW+1}, 64, v{fYW}')
    a(f's_lshl_b32 s{sT}, s{sKH}, 14')
    a(f'v_and_b32 v{t0}, 0xf0, v{vL16}'); a(f'v_lshl_add_u32 v{fO}, v{t1}, 9, s{sT}')
    a(f'v_add_u32 v{fY}, v{fY}, v{fO}'); a(f's_lshl_b32 s{sT}, s{sKH}, 8'); a(f'v_add3_u32 v{fO}, v{fO}, v{t0}, s{sT}'); a(f'v_xor_b32 v{fO2}, 256, v{fO}')
    a(f'v_lshlrev_b32 v{fOUT}, 6, v{t0}')
    a(f'v_bfe_u32 v{t0}, v0, 4, 1'); a(f'v_lshl_add_u32 v{fY}, v{t0}, 6, v{fY}'); a(f'v_lshl_add_u32 v{fOUT}, v{t0}, 9, v{fOUT}')
    a(f'v_bfe_u32 v{t0}, v0, 2, 1'); a(f'v_lshl_add_u32 v{fY}, v{t0}, 3, v{fY}'); a(f's_lshl_b32 s{sT}, s{sKH}, 6'); a(f'v_xor_b32 v{fY}, s{sT}, v{fY}'); a(f'v_xor_b32 v{fY+1}, 64, v{fY}')
    a(f'v_lshrrev_b32 v{t0}, 5, v0'); a(f'v_lshl_add_u32 v{fOUT}, v{t0}, 4, v{fOUT}')
    a(f's_lshl_b32 s{sT}, s{sWV}, 12'); a(f's_add_u32 s{sT}, s{sT}, {L_EP}'); a(f'v_add_u32 v{fHP}, s{sT}, v{vL16}')
    a(f's_lshr_b32 s{sT+1}, s{sIDX}, 2'); a(f's_lshl_b32 s{sT}, s{sW4}, 1'); a(f's_sub_u32 s{sT}, s{sT}, s{sT+1}'); a(f's_lshl_b32 s{sFY}, s{sKH}, 3')
    for bb in range(2):
        if bb: a(f's_add_u32 s{sT}, s{sT}, 1')
        a(f's_and_b32 s{sT+1}, s{sT}, 7'); a(f's_or_b32 s{sT+1}, s{sT+1}, s{sFY}'); a(f's_lshl_b32 s{sT+1}, s{sT+1}, 11')
        a(f'v_add_u32 v{fOW+bb}, s{sT+1}, v{vL16}')
    a(f's_lshl_b32 s{sT}, s{sAT}, 15'); a(f's_lshl_b32 s{sT+1}, s{sWV}, 12'); a(f's_add_u32 s{sT+1}, s{sT}, s{sT+1}')
    a(f's_add_u32 s{sFPQ}, s{sT+1}, {WS_PQ}'); a(f's_add_u32 s{sFY}, s{sT+1}, {WS_Y}')
    a(f's_mul_i32 s{sFKV}, s{sWV}, 4352'); a(f's_add_u32 s{sFKV}, s{sFKV}, {WS_KV}')
    a(f's_lshl_b32 s{sFOUT}, s{sHL}, 7'); a(f's_add_u32 s{sFOUT}, s{sFOUT}, s{sT}'); a(f's_lshl_b32 s{sT}, s{sW4}, 5'); a(f's_add_u32 s{sFOUT}, s{sFOUT}, s{sT}'); a(f's_lshl_b32 s{sT}, s{sKH}, 14'); a(f's_add_u32 s{sFOUT}, s{sFOUT}, s{sT}')

def gen_FIN(a, ST):
    t0, t1 = fT0, fT1
    ST('rdy')
    spoll_loop(a, sPB, C_FK)
    ST('pk')
    for j in range(4):
        a('s_mov_b32 exec_lo, 0x0011ffff'); a('s_mov_b32 exec_hi, 0x0011ffff')
        for q in range(2): a(f'buffer_load_dwordx4 {V(KVF+8*j+4*q,4)}, v{fKV}, {SR(sWS)}, s{sFKV} offen offset:{j*1088+q*544} sc1')
        a('s_mov_b64 exec, -1')
        a(f'buffer_load_dwordx4 {V(PQ+4*j,4)}, v{vL16}, {SR(sWS)}, s{sFPQ} offen offset:{j*1024} sc1')
    B = HP
    for q in (1, 2):
        for cu in range(2): a(f'v_add_u32 v{B+2*q+cu}, {57344*q}, v{fB+cu}')
    a('s_waitcnt vmcnt(12)')
    a('s_barrier')
    ST('J1')
    spoll(a, sR0, sPB, C_FY)
    a(f'ds_read_b32 v{fOMG}, v{fOMG}'); a(f'ds_read_b32 v{fG}, v{fG}')
    Lk = a.newlabel('k'); Lk2 = a.newlabel('k')
    a(f's_cmp_lg_u32 s{sKH}, 0'); a(f's_cbranch_scc1 {Lk}')
    for kh in range(2):
        if kh: a.label(Lk)
        for n in range(8):
            for cu in range(2):
                for jj in range(2):
                    ad = wo_unit(8*kh+n) + jj*2048
                    q = ad // 57344
                    a(f'ds_read_b64_tr_b16 {V(WF+8*n+4*cu+2*jj,2)}, v{(B+2*q if q else fB)+cu} offset:{ad - q*57344}')
        if not kh: a(f's_branch {Lk2}')
    a.label(Lk2)
    a('s_waitcnt lgkmcnt(0)')
    a('s_barrier')
    def yloads():
        for j in range(4): a(f'buffer_load_dwordx4 {V(YL+4*j,4)}, v{vL16}, {SR(sWS)}, s{sFY} offen offset:{j*1024} sc1')
    a(f'v_mul_f32 v{fG}, {F(2.0**-19)}, v{fG}'); a(f's_lshl_b32 s{sT}, s{sKH}, 31'); a(f'v_xor_b32 v{fG+1}, s{sT}, v{fG}')
    a(f'v_sub_f32 v{fOMG}, 1.0, v{fOMG}'); a(f'v_cvt_pk_bf16_f32 v{fOMG}, v{fOMG}, v{fOMG}'); a(f'v_and_b32 v{fOMG}, 0xffff0000, v{fOMG}')
    a(f'v_xor_b32 v{fB}, 16384, v{fHP}')
    for j in range(4):
        D = ACA if j % 2 == 0 else ACB
        a(f's_waitcnt vmcnt({9-3*j})')
        if j == 3:
            Ll = a.newlabel('yl'); Ll2 = a.newlabel('yl')
            a(f's_mov_b32 s{sSC}, s{sR0}')
            a(f's_cmp_lg_u32 s{sR0}, 32'); a(f's_cbranch_scc1 {Ll}')
            yloads(); a(f's_branch {Ll2}')
            a.label(Ll); spoll(a, sR0, sPB, C_FY)
            a.label(Ll2)
        for q in range(4): a(f'v_cvt_pk_bf16_f32 v{KVF+8*j+q}, v{KVF+8*j+2*q}, v{KVF+8*j+2*q+1}')
        a(f'{M32} {V(D,16)}, {V(KVF+8*j,4)}, {V(PQ+4*j,4)}, 0')
        if j == 3: a('s_nop 3')
        if j > 0: fin_o(a, j-1)
    fin_o(a, 3)
    a('s_waitcnt lgkmcnt(0)'); a('s_barrier')
    ST('J3')
    Ll = a.newlabel('yl')
    a(f's_cmp_eq_u32 s{sSC}, 32'); a(f's_cbranch_scc1 {Ll}')
    a(f's_cmp_lg_u32 s{sR0}, 32'); a(f's_cbranch_scc1 {Ll}')
    yloads()
    a.label(Ll)
    BF = KVF; PF = 3
    def rdo(n):
        for su in range(2): a(f'ds_read_b128 {V(BF+(n%4)*8+4*su,4)}, v{fO2 if su else fO} offset:{L_O+n*2048}')
    def rdy(n):
        for su in range(2):
            for jj in range(2): a(f'ds_read_b64_tr_b16 {V(WF+n*8+4*su+2*jj,2)}, v{fY+su} offset:{L_Y+(16*n+2*jj)*128}')
    for n in range(PF): rdo(n)
    for n in range(8):
        b = BF + (n % 4)*8
        a(f's_waitcnt lgkmcnt({2*min(PF-1, 7-n)})' if not (STAMP and n == 0) else 's_waitcnt lgkmcnt(0)')
        for i, (cu, su) in enumerate(((0,0),(0,1),(1,0),(1,1))):
            d = ACB + 8*su + 4*cu
            a(f'{M16} {V(d,4)}, {V(WF+8*n+4*cu,4)}, {V(b+4*su,4)}, {"0" if n==0 else V(d,4)}')
            if i == 0 and n+PF < 8: rdo(n+PF)
    ST('bp')
    Lo = a.newlabel('yo')
    a(f's_cmp_eq_u32 s{sR0}, 32'); a(f's_cbranch_scc1 {Lo}')
    spoll_loop(a, sPB, C_FY)
    yloads()
    a.label(Lo)
    for j in range(4):
        a(f's_waitcnt vmcnt({3-j})'); a(f'ds_write_b128 v{fYW+(j&1)}, {V(YL+4*j,4)} offset:{L_Y+j*512}')
    for cu in range(2): a(f'ds_write_b128 v{fHP}, {V(ACB+8+4*cu,4)} offset:{cu*1024}')
    a('s_waitcnt lgkmcnt(0)'); a('s_barrier')
    ST('J3b')
    for cu in range(2): a(f'ds_read_b128 {V(HP+4*cu,4)}, v{fB} offset:{cu*1024}')
    for n in range(3): rdy(n)
    for n in range(8):
        a(f's_waitcnt lgkmcnt({4*min(2, 7-n)})' if not (STAMP and n == 0) else 's_waitcnt lgkmcnt(0)')
        for su in (1, 0):
            d = ACA + 4*su
            a(f'{M16} {V(d,4)}, {V(TF+4*n,4)}, {V(WF+n*8+4*su,4)}, {"0" if n==0 else V(d,4)}')
        if n+3 < 8: rdy(n+3)
        if n == 5:
            for q in range(0, 8, 2): a(f'v_pk_add_f32 {V(ACB+q,2)}, {V(ACB+q,2)}, {V(HP+q,2)}')
    a(f'ds_write_b128 v{fHP}, {V(ACA+4,4)} offset:2048')
    for r in range(4):
        a(f'v_fmac_f32 v{ACB+r}, v{fG}, v{ACA+r}'); a(f'v_fmac_f32 v{ACB+4+r}, v{fG+1}, v{ACA+r}')
    a('s_waitcnt lgkmcnt(0)'); a('s_barrier')
    a(f'ds_read_b128 {V(HP,4)}, v{fB} offset:2048')
    a('s_waitcnt lgkmcnt(0)')
    for r in range(4):
        a(f'v_fmac_f32 v{ACB+r}, v{fG}, v{HP+r}'); a(f'v_fma_f32 v{ACB+4+r}, -v{fG+1}, v{HP+r}, v{ACB+4+r}')
    for q in range(4): a(f'v_cvt_pk_bf16_f32 v{ACA+q}, v{ACB+2*q}, v{ACB+2*q+1}')
    a(f'v_permlane16_swap_b32 v{ACA}, v{ACA+2}'); a(f'v_permlane16_swap_b32 v{ACA+1}, v{ACA+3}')
    a(f'buffer_store_dwordx4 {V(ACA,4)}, v{fOUT}, {SR(sOUT)}, s{sFOUT} offen')
    a.label('L_end')
    ST('end')
    stamp_flush(a, len(ST.names))

def fin_o(a, j):
    D = ACA if j % 2 == 0 else ACB
    a(f'v_add_f32 v{fT0}, {F(1e-6)}, v{D+8}'); a(f'v_rcp_f32 v{fT0}, v{fT0}'); a(f'v_mul_f32 v{fC}, v{fT0}, v{fOMG}'); a(f'v_mul_f32 v{fC+1}, v{fT0}, v{fOMG}')
    for q in range(0, 8, 2): a(f'v_pk_mul_f32 {V(D+q,2)}, {V(D+q,2)}, {V(fC,2)}')
    for q in range(4): a(f'v_cvt_pk_bf16_f32 v{KVF+8*j+4+q}, v{D+2*q}, v{D+2*q+1}')
    a(f'ds_write_b128 v{fOW+j//2}, {V(KVF+8*j+4,4)} offset:{L_O+(j&1)*1024}')

if __name__ == '__main__':
    a = build()
    out = '; @launch grid=(256,1,1) block=(512,1,1) lds=163840\n.amdgcn_target "amdgcn-amd-amdhsa--gfx950"\n.text\n'
    out += '.p2align 12\n' + kernel_header(NAME) + a.text()
    out += f'.p2align 8\n.fill (33792 - (. - {NAME})) / 4, 4, 0xbf800000\n'
    out += '.section .rodata,"a"\n.p2align 6\n' + kernel_desc(NAME, 256, 102)
    open(sys.argv[1], 'w').write(out)
```

```python
import sys, math, os
sys.path.insert(0,'lib')
from asmgen import *
NAME='gated_mix__spectral_gfnet__linear_attn_block__prompt_kernel'
STAMP = int(os.environ.get('STAMP','0'))
STSEL = [x for x in os.environ.get('STSEL','').split(',') if x]
PROBE = os.environ.get('PROBE','')
OPT = dict(x.split('=') for x in os.environ.get('OPT','').split(',') if x)
def opt(k, d): return int(OPT.get(k, d))

WS_Z=0; ZSTRIDE=16640; WS_PQ=0x420000; WS_Y=0x620000; WS_KV=0x880000; WS_C=0x890000; C_F1=0; C_FK=32768; C_FY=65536; WS_B=0x8b0000; WS_ST=0x8c0000; WS_SIZE=0x900000
HS=16384; BLK=4096; NH=7
def loc(c, part):
    h = 2*c + (0 if part in 'XK' else 1)
    return (h % NH)*HS + (2048 if part in 'XV' else 0)
SC=NH*HS; PS=1088
L_SY=SC; L_GP=SC+256; L_GW=SC+768; L_A=L_GW+2048; L_B=L_A+16384; L_XT=L_B+4*PS*4; L_END=L_XT+8192
L_P1X=L_A; L_WRAW=L_A+8192; L_IN=L_A; L_OT=L_A; L_PL=L_B; L_EX=L_B; L_KVR=L_B+8192
assert L_END <= 163840 and L_KVR+8704 <= L_XT and L_A % 256 == 0 and L_XT % 256 == 0, L_END
L_Y=0; L_O=32768; L_EP=65536; RS=528; RP=784
LOG2E=1.4426950408889634
YA=opt('ya', 32768); YK=opt('yk', 128)
PK=opt('pk', 1); KS=opt('ks', 512)
NREP=opt('nrep', 8)
sX,sWR,sWI,sWQ,sWO,sGW,sOUT,sWS = 8,12,16,20,24,28,32,36
sXCD,sIDX,sP,sHG,sROW0,sROT,sWV,sW4,sHH,sHL = 40,41,42,43,44,45,46,47,48,49
sT=50; sSC=58; sL2E=60; sLW=62; sR0=63; sC=28; sPB=30; sDBG=100; sAT=64; sKH=65; sCNT=66; sLB=67; sSX=6; sSW=7; sU=3
M16 = 'v_mfma_f32_16x16x32_bf16'; M32 = 'v_mfma_f32_32x32x16_bf16'
def SR(d): return f's[{d}:{d+3}]'

class Stamps:
    def __init__(self, a): self.a = a; self.names = []
    def __call__(self, name):
        if PROBE:
            if name == 'start' and PROBE != 'start': self.a('s_mov_b64 s[96:97], 0')
            if name == PROBE: self.a('s_memrealtime s[96:97]'); self.a('s_waitcnt lgkmcnt(0)')
            if name == 'end':
                a = self.a
                a('s_cmp_eq_u64 s[96:97], 0'); a('s_cbranch_scc1 L_done')
                a('s_add_u32 s96, s96, 3000')
                a.label('L_spin'); a('s_sleep 2'); a('s_memrealtime s[98:99]'); a('s_waitcnt lgkmcnt(0)')
                a('s_sub_u32 s98, s98, s96'); a('s_cmp_lt_i32 s98, 0'); a('s_cbranch_scc1 L_spin')
            return
        if not STAMP: return
        if STSEL and name not in STSEL: return
        if not STSEL and name.startswith('_'): return
        if name in self.names: n = self.names.index(name)
        else: n = len(self.names); self.names.append(name)
        assert n < 16, name
        self.a(('s_memtime' if name.startswith('_T') else 's_memrealtime') + f' s[{68+2*n}:{69+2*n}]')
def stamp_flush(a, n):
    if not STAMP: return
    L = a.newlabel('stf')
    a('s_waitcnt lgkmcnt(0)')
    a(f's_cmp_lg_u32 s{sW4}, {opt("stw",0)}'); a(f's_cbranch_scc1 {L}')
    a(f's_lshl_b32 s{sT}, s2, 8'); a(f's_add_u32 s{sT}, s{sT}, {WS_ST}')
    a(f's_lshr_b32 s{sT+1}, s{sWV}, 2'); a(f's_lshl_b32 s{sT+1}, s{sT+1}, 7'); a(f's_add_u32 s{sT}, s{sT}, s{sT+1}')
    a('s_mov_b64 exec, 1'); a('v_mov_b32 v4, 0')
    for i in range(n):
        a(f'v_mov_b32 v2, s{68+2*i}'); a(f'v_mov_b32 v3, s{69+2*i}')
        a(f'buffer_store_dwordx2 v[2:3], v4, {SR(sWS)}, s{sT} offen offset:{8*i}'); a('s_nop 1')
    a.label(L)
def LG(n): return f's_waitcnt lgkmcnt({0 if STAMP else n})'

class Rec:
    def __init__(self): self.l = []
    def __call__(self, s): self.l.append(s)

vL16=1; vPA=2; vSY=3; vS=4; VBASE=10
def arrive(a, stage):
    a(f'v_mov_b32 v{vS+4}, {stage}'); a(f'ds_write_b32 v{vPA}, v{vS+4}')
def sync_read(a, grp): a(f'ds_read_b128 {V(vS,4)}, v{vSY} offset:{16*grp}')
def sync_check(a, grp, stage):
    L = a.newlabel('sw'); L2 = a.newlabel('sd')
    a.label(L)
    a('s_waitcnt lgkmcnt(0)')
    a(f'v_min3_u32 v{vS}, v{vS}, v{vS+1}, v{vS+2}'); a(f'v_min_u32 v{vS}, v{vS}, v{vS+3}')
    a(f'v_readfirstlane_b32 s{sT+7}, v{vS}')
    a(f's_cmp_ge_u32 s{sT+7}, {stage}'); a(f's_cbranch_scc1 {L2}')
    sync_read(a, grp); a(f's_branch {L}')
    a.label(L2)
def sync2(a, sH, sG, T):
    L = a.newlabel('s2')
    a.label(L)
    a(f'ds_read_b128 {V(vS,4)}, v{vSY}'); a(f'ds_read_b128 {V(T,4)}, v{vSY} offset:16')
    a('s_waitcnt lgkmcnt(0)')
    a(f'v_min3_u32 v{vS}, v{vS}, v{vS+1}, v{vS+2}'); a(f'v_min3_u32 v{T}, v{T}, v{T+1}, v{T+2}')
    a(f'v_min_u32 v{vS}, v{vS}, v{vS+3}'); a(f'v_add_u32 v{vS}, {sG-sH}, v{vS}'); a(f'v_min3_u32 v{vS}, v{vS}, v{T}, v{T+3}')
    a(f'v_readfirstlane_b32 s{sT+7}, v{vS}')
    a(f's_cmp_lt_u32 s{sT+7}, {sG}'); a(f's_cbranch_scc1 {L}')
def sync_wait(a, grp, stage): sync_read(a, grp); sync_check(a, grp, stage)
GRP_H=0; GRP_G=1
def signal(a, cset, sgrp, split=False):
    if not split and (opt('vsig', 0) & {C_FK: 1, C_FY: 2}[cset]):
        a(f's_lshl_b32 s{sT+6}, s{sgrp}, 8'); a(f's_add_u32 s{sT+6}, s{sT+6}, {WS_C+cset}')
        a(f'v_lshlrev_b32 v{vS}, 11, v0'); a(f'v_mov_b32 v{vS+1}, 1'); a(f's_mov_b64 exec, {(1 << NREP) - 1}')
        a(f'buffer_atomic_add v{vS+1}, v{vS}, {SR(sWS)}, s{sT+6} offen sc1'); a('s_mov_b64 exec, -1')
        return
    a(f's_lshl_b32 s{sT+6}, s{sgrp}, 8')
    if split: a(f's_add_u32 s{sT+6}, s{sT+6}, s{sLW}')
    a(f's_add_u32 s{sT+6}, s{sC}, s{sT+6}'); a(f's_addc_u32 s{sT+7}, s{sC+1}, 0')
    a(f's_mov_b32 s{sU}, 1')
    for r in range(0, NREP, 4 if split else 1): a(f's_atomic_add s{sU}, s[{sT+6}:{sT+7}], {cset + r*2048}')
def spoll(a, dst, pair, imm):
    a(f's_mov_b32 s{dst}, 0'); a(f's_atomic_add s{dst}, s[{pair}:{pair+1}], {imm} glc')
sR1 = sT+2
def poll2(a, cset): spoll(a, sR0, sPB, cset); spoll(a, sR1, sPB, cset+256)
def test2(a): a(f's_and_b32 s{sR0}, s{sR0}, s{sR1}'); a(f's_cmp_lg_u32 s{sR0}, 32')
def poll2_loop(a, cset, pre=False):
    Lp = a.newlabel('p'); Lc = a.newlabel('c'); Lq = a.newlabel('q')
    a(f's_mov_b32 s{sCNT}, 0x2000')
    if pre: a(f's_branch {Lc}')
    a.label(Lp)
    a(f's_sub_u32 s{sCNT}, s{sCNT}, 1'); a(f's_cbranch_scc1 {Lq}')
    poll2(a, cset)
    a.label(Lc)
    a('s_waitcnt lgkmcnt(0)')
    test2(a); a(f's_cbranch_scc1 {Lp}')
    a.label(Lq)
def signal_last(a, cnt_off, last, cset, sgrp):
    L = a.newlabel('sig')
    a('s_mov_b64 exec, 1')
    a(f'v_mov_b32 v{vS+4}, 1'); a(f'ds_add_rtn_u32 v{vS}, v{vSY}, v{vS+4} offset:{cnt_off}')
    a('s_waitcnt lgkmcnt(0)')
    a(f'v_readfirstlane_b32 s{sT+7}, v{vS}')
    a('s_mov_b64 exec, -1')
    a(f's_cmp_lg_u32 s{sT+7}, {last}'); a(f's_cbranch_scc1 {L}')
    signal(a, cset, sgrp)
    a.label(L)

DQ = 0
WO_ORDER = [8, 0, 9, 10, 11, 12, 13, 14, 15, 1, 2, 3, 4, 5, 6, 7]
NFREE = 12
def fysig(a):
    if opt('ssig', 0): arrive(a, 9); sync_wait(a, GRP_H, 9); signal(a, C_FY, sXCD, True)
    else: signal_last(a, 36, 3, C_FY, sXCD)
def wo_unit(u):
    if u == 8: return L_XT
    if u >= 9: return 32768 + (u-9)*8192
    return [L_KVR, 90112, 98304, 106496, 0, 8192, 16384, 24576][u]
WIN = opt('win', 12)
def rot_calc(a):
    RM = opt('rot', 104)
    a(f's_lshr_b32 s{sT}, s{sIDX}, 2')
    if RM == 8: a(f's_lshl_b32 s{sROT}, s{sHL}, 1'); a(f's_add_u32 s{sROT}, s{sROT}, s{sT}'); a(f's_and_b32 s{sROT}, s{sROT}, 7')
    elif RM == 1: a(f's_mov_b32 s{sROT}, 0')
    elif RM >= 200:
        a(f's_and_b32 s{sROT}, s{sXCD}, {6 if RM == 204 else 2}')
        if RM == 202: a(f's_lshl_b32 s{sROT}, s{sROT}, 1')
    elif RM >= 100:
        a(f's_add_u32 s{sT}, s{sT}, s{sHL}'); a(f's_and_b32 s{sT}, s{sT}, 1'); a(f's_mul_i32 s{sT}, s{sT}, {RM-100}')
        a(f's_lshl_b32 s{sROT}, s{sHH}, 2'); a(f's_add_u32 s{sROT}, s{sROT}, s{sXCD}'); a(f's_add_u32 s{sROT}, s{sROT}, s{sT}'); a(f's_and_b32 s{sROT}, s{sROT}, 7')
    else: a(f's_add_u32 s{sROT}, s{sHL}, s{sT}'); a(f's_and_b32 s{sROT}, s{sROT}, {RM-1}'); a(f's_lshl_b32 s{sROT}, s{sROT}, {1 if RM == 4 else 2}')
def dma_setup(a, vd, t0, t1):
    rot_calc(a)
    a(f's_lshl_b32 s{sLB}, s{sW4}, 12')
    a(f'v_lshrrev_b32 v{t0}, 3, v0'); a(f'v_and_b32 v{t1}, 0x70, v{vL16}'); a(f'v_and_b32 v{vd+2}, 0x30, v0')
    a(f'v_xor_b32 v{vd+4}, v{t1}, v{vd+2}')
    a(f's_lshl_b32 s{sT}, s{sW4}, 4'); a(f's_add_u32 s{sT+1}, s{sT}, s{sROW0}')
    a(f'v_add_u32 v{vd+5}, s{sT+1}, v{t0}'); a(f'v_lshl_add_u32 v{vd+4}, v{vd+5}, 10, v{vd+4}')
    a(f'v_xor_b32 v{vd+5}, 64, v{vd+4}'); a(f'v_add_u32 v{vd+5}, {8192-1024}, v{vd+5}')
    a(f'v_and_b32 v{vd+2}, 16, v0'); a(f'v_lshlrev_b32 v{vd+2}, 1, v{vd+2}'); a(f'v_xor_b32 v{vd+2}, v{vd+2}, v{t1}')
    a(f'v_add_u32 v{t0}, s{sT}, v{t0}'); a(f'v_mul_u32_u24 v{t0}, 3072, v{t0}'); a(f's_lshl_b32 s{sT+1}, s{sHG}, 7')
    a(f'v_add3_u32 v{vd+2}, v{vd+2}, v{t0}, s{sT+1}')
    a(f'v_xor_b32 v{t0}, 64, v{vd+2}')
    a(f'v_add_u32 v{vd}, 1024, v{vd+2}'); a(f'v_add_u32 v{vd+1}, 24576, v{t0}'); a(f'v_add_u32 v{vd+3}, 23552, v{t0}')
def dma_group(g, vd):
    adv = [f's_add_u32 s{sSX}, s{sROT}, {g}', f's_and_b32 s{sSX}, s{sSX}, 7', f's_lshl_b32 s{sSX}, s{sSX}, 7', f's_mul_i32 s{sSW}, s{sSX}, 1536']
    ld = lambda v, srdr, so, off: f'buffer_load_dwordx4 v{v}, {SR(srdr)}, s{so} offen' + (f' offset:{off}' if off else '') + ' lds'
    return [[f's_add_u32 m0, s{sLB}, {loc(g, "X")}'] + adv + [ld(vd+4, sX, sSX, 0)], [ld(vd+5, sX, sSX, 1024)],
            [f's_add_u32 m0, s{sLB}, {loc(g, "K")}', ld(vd, sWQ, sSW, 0)], [ld(vd+1, sWQ, sSW, 1024)],
            [f's_add_u32 m0, s{sLB}, {loc(g, "Q")}', ld(vd+2, sWQ, sSW, 2048)], [ld(vd+3, sWQ, sSW, 3072)],
            [ld(vd+2, sWQ, sSW, 0)], [ld(vd+3, sWQ, sSW, 1024)]]
def emit(a, b, thr=None):
    for l in b[:-1]: a(l)
    if thr is not None: a(f's_waitcnt vmcnt({thr})')
    a(b[-1])

def phi_pack(a, acc, n, out, tmp):
    for j in range(0, n, 2): a(f'v_pk_mul_f32 {V(tmp+j,2)}, {V(acc+j,2)}, s[{sL2E}:{sL2E+1}]')
    for j in range(n):
        a(f'v_exp_f32_e64 v{tmp+j}, v{tmp+j} clamp')
        a(f'v_max_f32 v{acc+j}, {F(1e-6)}, v{acc+j}')
    for j in range(0, n, 2): a(f'v_pk_add_f32 {V(tmp+j,2)}, {V(tmp+j,2)}, {V(acc+j,2)}')
    for j in range(0, n, 2): a(f'v_cvt_pk_bf16_f32 v{out+j//2}, v{tmp+j}, v{tmp+j+1}')
def sincos4(a, base, step, r0, c, s):
    for r in range(4):
        k = r0 + r
        if k == 0: a(f'v_mov_b32 v{s+r}, v{base}')
        else: a(f'v_fmamk_f32 v{s+r}, v{step}, {F(float(k))}, v{base}')
    for r in range(4): a(f'v_cos_f32 v{c+r}, v{s+r}')
    for r in range(4): a(f'v_sin_f32 v{s+r}, v{s+r}')
def mat6(a, dst, c, s):
    a(f'v_cvt_pk_bf16_f32 v{dst+2}, v{c}, v{c+1}'); a(f'v_cvt_pk_bf16_f32 v{dst+3}, v{c+2}, v{c+3}')
    a(f'v_cvt_pk_bf16_f32 v{dst+4}, v{s}, v{s+1}'); a(f'v_cvt_pk_bf16_f32 v{dst+5}, v{s+2}, v{s+3}')
    a(f'v_xor_b32 v{dst+0}, 0x80008000, v{dst+4}'); a(f'v_xor_b32 v{dst+1}, 0x80008000, v{dst+5}')
def cmul_pack(a, re, im, tc, ts, out, tmp, conj_out=False):
    for j in (0, 2):
        a(f'v_pk_mul_f32 {V(tmp+j,2)}, {V(re+j,2)}, {V(tc+j,2)}')
        a(f'v_pk_mul_f32 {V(tmp+4+j,2)}, {V(re+j,2)}, {V(ts+j,2)}')
    for j in (0, 2):
        a(f'v_pk_fma_f32 {V(tmp+j,2)}, {V(im+j,2)}, {V(ts+j,2)}, {V(tmp+j,2)} neg_lo:[1,0,0] neg_hi:[1,0,0]')
        a(f'v_pk_fma_f32 {V(tmp+4+j,2)}, {V(im+j,2)}, {V(tc+j,2)}, {V(tmp+4+j,2)}')
    n = '-' if conj_out else ''
    a(f'v_cvt_pk_bf16_f32 v{out}, v{tmp}, v{tmp+1}'); a(f'v_cvt_pk_bf16_f32 v{out+1}, v{tmp+2}, v{tmp+3}')
    a(f'v_cvt_pk_bf16_f32 v{out+2}, {n}v{tmp+4}, {n}v{tmp+5}'); a(f'v_cvt_pk_bf16_f32 v{out+3}, {n}v{tmp+6}, {n}v{tmp+7}')

TF=10; WF=74; ACA=138; ACB=154; PQ=170; KVF=186; YL=218; FT=234
HP = TF+32
def fin_table(a, hook=None, P=None, D=None):
    if P is None: P = YL; D = FT
    step = D+4; base = D+5; t0 = D+6; t1 = D+7
    a(f's_lshl_b32 s{sT}, s{sHL}, 6'); a(f's_lshl_b32 s{sT+1}, s{sW4}, 4'); a(f's_add_u32 s{sT}, s{sT}, s{sT+1}')
    a(f'v_and_b32 v{t0}, 15, v0'); a(f'v_add_u32 v{t0}, s{sT}, v{t0}'); a(f'v_cvt_f32_u32 v{step}, v{t0}'); a(f'v_mul_f32 v{step}, {F(1/512)}, v{step}')
    a(f'v_lshrrev_b32 v{t1}, 4, v0'); a(f'v_lshl_add_u32 v{t1}, v{t1}, 3, s{sKH}')
    a(f'v_cvt_f32_u32 v{base}, v{t1}'); a(f'v_mul_f32 v{base}, v{base}, v{step}')
    a(f'v_mul_f32 v{D+2}, {F(32.0)}, v{step}'); a(f'v_add_f32 v{step}, v{step}, v{step}')
    C = P; free = P+8
    sincos4(a, base, step, 0, C, C+4)
    a(f'v_cos_f32 v{D}, v{D+2}'); a(f'v_sin_f32 v{D+2}, v{D+2}')
    a(f'v_mov_b32 v{D+1}, v{D}'); a(f'v_mov_b32 v{D+3}, v{D+2}')
    hi = 0
    for n in range(8):
        S_ = C+4
        for j in range(4): a(f'v_cvt_pk_bf16_f32 v{TF+4*n+j}, v{C+j}, v{S_+j}')
        hook(hi); hi += 1
        if n < 7:
            for j in (0, 2, 4, 6): a(f'v_pk_mul_f32 {V(free+j,2)}, {V(C+j,2)}, {V(D,2)}')
            hook(hi); hi += 1
            for j in (0, 2):
                a(f'v_pk_fma_f32 {V(free+j,2)}, {V(S_+j,2)}, {V(D+2,2)}, {V(free+j,2)} neg_lo:[1,0,0] neg_hi:[1,0,0]')
                a(f'v_pk_fma_f32 {V(free+4+j,2)}, {V(C+j,2)}, {V(D+2,2)}, {V(free+4+j,2)}')
            C, free = free, C
            hook(hi); hi += 1
    a(f'v_lshlrev_b32 v{t0}, 31, v{t0}'); a(f'v_xor_b32 v{t0}, 0xbf003f00, v{t0}')
    a(f'v_cmp_eq_u32 vcc, 0, v{t1}'); a(f'v_cndmask_b32 v{TF}, v{TF}, v{t0}, vcc')

def srdc(a, d):
    n = {sX:0x200000, sWQ:512*3072, sWR:2048*514, sWI:2048*514, sWS:WS_SIZE, sGW:1024, sWO:512*1024, sOUT:0x200000}[d]
    a(f's_mov_b32 s{d+2}, {n}'); a(f's_mov_b32 s{d+3}, 0x20000')
def ids_gemm(a):
    a(f's_and_b32 s{sHH}, s2, 1'); a(f's_and_b32 s{sHL}, s{sIDX}, 3')
    if opt('hx', 0): a(f's_xor_b32 s{sHL}, s{sHL}, {opt("hx", 0)}')
    if opt('hhx', 0): a(f's_xor_b32 s{sHH}, s{sHH}, 1')
    a(f's_lshl_b32 s{sHG}, s{sHH}, 2'); a(f's_add_u32 s{sHG}, s{sHG}, s{sHL}')
    a(f's_and_b32 s{sROW0}, s2, 6'); a(f's_lshl_b32 s{sROW0}, s{sROW0}, 7')
    a(f's_and_b32 s{sT}, s{sIDX}, 12'); a(f's_lshl_b32 s{sT}, s{sT}, 4'); a(f's_add_u32 s{sROW0}, s{sROW0}, s{sT}')
    a(f's_and_b32 s{sT}, s{sIDX}, 16'); a(f's_lshl_b32 s{sT}, s{sT}, 6'); a(f's_add_u32 s{sROW0}, s{sROW0}, s{sT}')
def late_common(a):
    for d in (sWS, sWO, sOUT): srdc(a, d)
    a(f's_lshr_b32 s{sAT}, s{sROW0}, 5'); a(f's_add_u32 s{sAT}, s{sAT}, s{sHH}'); a(f's_lshr_b32 s{sKH}, s{sWV}, 2')
    a(f's_add_u32 s{sC}, s{sWS}, {WS_C}'); a(f's_addc_u32 s{sC+1}, s{sWS+1}, 0')
    a(f's_mul_i32 s{sT}, s{sP}, {NREP}'); a(f's_lshr_b32 s{sT}, s{sT}, 8'); a(f's_lshl_b32 s{sT}, s{sT}, 11'); a(f's_lshl_b32 s{sT+1}, s{sW4}, 9'); a(f's_add_u32 s{sT}, s{sT}, s{sT+1}')
    a(f's_add_u32 s{sPB}, s{sC}, s{sT}'); a(f's_addc_u32 s{sPB+1}, s{sC+1}, 0')

def build():
    a = Asm(); ST = Stamps(a); ST('start')
    a('s_cmp_ge_u32 s2, 256'); a(f's_cbranch_scc1 L_done')
    for d, off in ((sX,0),(sWQ,32),(sWR,8),(sWI,16),(sWS,72),(sGW,48),(sWO,40),(sOUT,56),(sDBG,64)):
        a(f's_load_dwordx2 s[{d}:{d+1}], s[0:1], {off}')
    a(f'v_readfirstlane_b32 s{sWV}, v0'); a('v_and_b32 v0, 63, v0')
    a(f's_and_b32 s{sXCD}, s2, 7'); a(f's_lshr_b32 s{sIDX}, s2, 3')
    a('s_getpc_b64 s[4:5]')
    a(f's_lshl_b32 s{sT}, s{sIDX}, 10'); a(f's_lshl_b32 s{sT+1}, s{sWV}, 1'); a(f's_add_u32 s{sT}, s{sT}, s{sT+1}')
    CP = opt('cp', 3)
    if CP in (1, 2): a(f's_load_dword s{sU}, s[4:5], s{sT}')
    if CP == 2: a(f's_add_u32 s{sT}, s{sT}, 64'); a(f's_load_dword s{sU}, s[4:5], s{sT}')
    if CP == 3:
        a(f'v_mov_b32 v{vS+5}, s{sT}'); a('s_mov_b64 exec, 1'); a(f'global_load_dword v{vS+5}, v{vS+5}, s[4:5]'); a('s_mov_b64 exec, -1')
    if CP == 4:
        a(f's_lshl_b32 s{sT+1}, s{sWV}, 4'); a(f'v_lshl_add_u32 v{vS+5}, v0, 7, s{sT+1}'); a(f'v_writelane_b32 v{vS+5}, s{sT}, 8')
        a('s_mov_b64 exec, 0x1ff'); a(f'global_load_dword v{vS+5}, v{vS+5}, s[4:5]'); a('s_mov_b64 exec, -1')
    a(f's_lshr_b32 s{sWV}, s{sWV}, 6'); a(f'v_lshlrev_b32 v{vL16}, 4, v0')
    a(f's_and_b32 s{sW4}, s{sWV}, 3'); a(f's_lshl_b32 s{sLW}, s{sW4}, 11')
    a(f'v_mov_b32 v{vSY}, {L_SY}'); a(f'v_mov_b32 v{vS}, 0'); a(f'v_mov_b32 v{vS+1}, 0')
    a(f'v_lshl_add_u32 v{vPA}, s{sWV}, 2, v{vSY}')
    a(f'ds_write_b32 v{vPA}, v{vS}'); a(f'ds_write_b64 v{vSY}, {V(vS,2)} offset:32')
    srdc(a, sX)
    a(f's_lshl_b32 s{sP}, s{sXCD}, 5'); a(f's_add_u32 s{sP}, s{sP}, s{sIDX}')
    a(f's_cmp_ge_u32 s{sWV}, 4'); a('s_cbranch_scc1 L_G0')
    names0 = list(ST.names)
    H = gen_H0(a, ST); nH = list(ST.names)
    a('s_branch L_H1')
    a.label('L_G0'); a.hist = []; ST.names = list(names0)
    G = gen_G0(a, ST); nG = list(ST.names)
    a('s_branch L_G1')
    a.label('L_H1'); a.hist = []; ST.names = nH
    hiH = gen_H(a, ST, H); nH = list(ST.names)
    a('s_branch L_FIN')
    a.label('L_G1'); a.hist = []; ST.names = nG
    hiG = gen_G(a, ST, G)
    while len(ST.names) < len(nH): ST.names.append('-')
    a.label('L_FIN'); a.hist = []
    gen_FIN(a, ST)
    a.label('L_done'); a('s_endpgm')
    gen_special(a)
    if STAMP: print('H:', nH, '\nG:', ST.names, file=sys.stderr)
    print('instrs', a.count, 'nops', a.nops, 'vgprs', hiH, hiG, file=sys.stderr)
    return a

SP = {}
NT = 'nt ' if opt('wnt', 1) else ''
def rloads(a):
    a(f'buffer_load_dwordx4 v{vL16}, {SR(sX)}, s{sT+6} offen lds')
    a(f'buffer_load_dwordx4 v{vL16}, {SR(sX)}, s{sT+7} offen offset:1024 lds')
def wloads(a, vWs, e0, e1, e3):
    if opt('rpos', 0): a(f's_add_u32 m0, s{sLW}, {L_P1X}'); rloads(a)
    a(f's_add_u32 m0, s{sLW}, {L_WRAW}'); a(f'buffer_load_dwordx4 v{vWs}, {SR(sWR)}, s{sT+3} offen {NT}lds')
    a(f's_add_u32 m0, s{sLW}, {L_WRAW+1024}'); a(f'buffer_load_dwordx4 v{vWs}, {SR(sWI)}, s{sT+3} offen {NT}lds')
    a('s_mov_b64 exec, 0xffff')
    a(f'buffer_load_ushort v{e0}, v{e3}, {SR(sWR)}, 0 offen')
    a(f'buffer_load_ushort v{e1}, v{e3}, {SR(sWI)}, 0 offen')
    a('s_mov_b64 exec, -1')
def gen_H0(a, ST):
    R = Regs(VBASE)
    t0, t1, vWs = R.alloc(), R.alloc(), R.alloc()
    srdc(a, sWR); srdc(a, sWI)
    if opt('noh', 0): a(f's_mov_b32 s{sWR+2}, 0'); a(f's_mov_b32 s{sWI+2}, 0'); a(f's_mov_b32 s{sX+2}, 0')
    a(f's_lshl_b32 s{sT}, s{sXCD}, 17'); a(f's_lshl_b32 s{sT+1}, s{sW4}, 15'); a(f's_add_u32 s{sT}, s{sT}, s{sT+1}')
    a(f's_lshl_b32 s{sT+1}, s{sIDX}, 10'); a(f's_add_u32 s{sT}, s{sT}, s{sT+1}'); a(f's_add_u32 s{sT+1}, s{sT}, {1024*1024-1024}')
    a(f'v_lshrrev_b32 v{t0}, 4, v0'); a(f'v_mul_u32_u24 v{vWs}, {64*514-256}, v{t0}'); a(f'v_add_u32 v{vWs}, v{vWs}, v{vL16}')
    a(f's_and_b32 s{sT+2}, s{sP}, 63'); a(f's_and_b32 s{sT+3}, s{sP}, 0xc0'); a(f's_lshl_b32 s{sT+3}, s{sT+3}, 2'); a(f's_add_u32 s{sT+2}, s{sT+2}, s{sT+3}')
    a(f's_and_b32 s{sT+3}, s{sW4}, 1'); a(f's_lshl_b32 s{sT+3}, s{sT+3}, 10'); a(f's_add_u32 s{sT+2}, s{sT+2}, s{sT+3}')
    a(f's_mul_i32 s{sT+3}, s{sT+2}, 514')
    a(f's_and_b32 s{sT+4}, s{sW4}, 2'); a(f's_lshl_b32 s{sT+4}, s{sT+4}, 7'); a(f's_add_u32 s{sT+3}, s{sT+3}, s{sT+4}')
    e0, e1, e2, e3 = [R.alloc() for _ in range(4)]
    a(f'v_and_b32 v{t1}, 3, v0'); a(f'v_lshl_add_u32 v{e0}, v{t1}, 6, s{sT+2}')
    a(f'v_sub_u32 v{e1}, 0x800, v{e0}'); a(f'v_and_b32 v{e1}, 0x7ff, v{e1}')
    a(f'v_and_b32 v{e2}, 8, v0'); a(f'v_cmp_eq_u32 vcc, 0, v{e2}'); a(f'v_and_b32 v{e2}, 4, v0'); a(f'v_lshlrev_b32 v{e2}, 7, v{e2}')
    a(f'v_cndmask_b32 v{e0}, v{e1}, v{e0}, vcc'); a(f'v_mul_u32_u24 v{e0}, 514, v{e0}'); a(f'v_add_u32 v{e3}, v{e0}, v{e2}')
    srdc(a, sGW)
    a(f's_lshr_b32 s{sT+5}, s{sLW}, 2'); a(f's_and_b32 s{sT+4}, s{sT+5}, 512')
    a(f's_add_u32 m0, s{sLW}, {L_P1X}')
    a('s_waitcnt lgkmcnt(0)'); ST('karg')
    a(f's_mov_b32 s{sT+6}, s{sT}'); a(f's_mov_b32 s{sT+7}, s{sT+1}')
    a(f's_add_u32 s{sU}, s{sIDX}, s{sLW}'); a(f's_cmp_eq_u32 s{sU}, {28+3*2048}'); a('s_cbranch_scc1 L_sp5'); a.label('L_sp5r')
    if opt('rpos', 0) == 0: rloads(a)
    a(f's_add_u32 m0, s{sT+5}, {L_GW}'); a('s_mov_b32 exec_hi, 0')
    a(f'buffer_load_dwordx4 v{vL16}, {SR(sGW)}, s{sT+4} offen lds'); a('s_mov_b32 exec_hi, -1')
    if opt('wpos', 2) == 0: wloads(a, vWs, e0, e1, e3)
    return R, t0, t1, vWs, e0, e1, e2, e3

def gen_H(a, ST, H):
    R, t0, t1, vWs, e0, e1, e2, e3 = H
    vl15, fl15, fg4 = R.alloc(), R.alloc(), R.alloc()
    a(f'v_and_b32 v{vl15}, 15, v0'); a(f'v_cvt_f32_u32 v{fl15}, v{vl15}')
    a(f'v_lshlrev_b32 v{fg4}, 2, v{t0}'); a(f'v_cvt_f32_u32 v{fg4}, v{fg4}')
    F16T = R.alloc(6); tc = R.alloc(8); ts = R.alloc(8); base = R.alloc(); step = R.alloc()
    a(f'v_mul_f32 v{step}, {F(1/16)}, v{fl15}'); a(f'v_mul_f32 v{base}, v{fg4}, v{step}')
    sincos4(a, base, step, 0, tc, ts); mat6(a, F16T, tc, ts)
    F32T = R.alloc(24); m = R.alloc(); mo = R.alloc()
    a(f'v_mul_f32 v{step}, {F(1/32)}, v{fl15}'); a(f'v_mul_f32 v{base}, v{fg4}, v{step}')
    sincos4(a, base, step, 0, tc, ts); mat6(a, F32T, tc, ts)
    a(f'v_and_b32 v{mo}, 1, v{vl15}'); a(f'v_sub_u32 v{mo}, 0, v{mo}'); a(f'v_and_b32 v{mo}, 0x80008000, v{mo}')
    for j in range(6):
        a(f'v_xor_b32 v{F32T+6+j}, v{mo}, v{F32T+j}'); a(f'v_xor_b32 v{F32T+12+j}, 0x80000000, v{F32T+j}'); a(f'v_xor_b32 v{F32T+18+j}, 0x80000000, v{F32T+6+j}')
    a(f'v_mul_f32 v{step}, {F(-1/512)}, v{fl15}'); a(f'v_mul_f32 v{base}, v{fg4}, v{step}')
    sincos4(a, base, step, 0, tc, ts); sincos4(a, base, step, 16, tc+4, ts+4)
    if opt('wpos', 2) == 1: wloads(a, vWs, e0, e1, e3)
    aT = R.alloc(); aZ = R.alloc(); aO = R.alloc(4); stp = R.alloc(); aWt = R.alloc(); aWp = R.alloc()
    a(f'v_lshrrev_b32 v{t0}, 2, v0'); a(f'v_lshlrev_b32 v{aWt}, 3, v{t1}'); a(f'v_lshl_add_u32 v{aT}, v{t0}, 6, v{aWt}')
    a(f's_add_u32 s{sT}, s{sLW}, {L_P1X}'); a(f'v_add_u32 v{aT}, s{sT}, v{aT}')
    a(f'v_bfe_u32 v{m}, v0, 2, 1'); a(f'v_lshl_add_u32 v{aWt}, v{m}, 10, v{aWt}')
    a(f'v_bfe_u32 v{m}, v0, 3, 1'); a(f'v_lshl_add_u32 v{aWt}, v{m}, 8, v{aWt}')
    a(f'v_lshrrev_b32 v{m}, 4, v0'); a(f'v_lshl_add_u32 v{aWt}, v{m}, 5, v{aWt}')
    a(f's_add_u32 s{sT}, s{sLW}, {L_WRAW}'); a(f'v_add_u32 v{aWt}, s{sT}, v{aWt}')
    a(f's_and_b32 s{sT}, s{sW4}, 1'); a(f's_mul_i32 s{sT+1}, s{sT}, {264*4}'); a(f's_add_u32 s{sT+1}, s{sT+1}, {L_PL+520*4}')
    aA_, aB_ = R.alloc(), R.alloc()
    a(f'v_mul_u32_u24 v{aA_}, {PS*4}, v{t1}')
    a(f's_lshl_b32 s{sT+2}, s{sT}, 2'); a(f's_add_u32 s{sT+2}, s{sT+2}, {L_PL+1040*4}'); a(f'v_add_u32 v{aB_}, s{sT+2}, v{aA_}')
    a(f'v_add_u32 v{aA_}, s{sT+1}, v{aA_}')
    a(f's_and_b32 s{sT+2}, s{sW4}, 2'); a(f's_lshl_b32 s{sT+2}, s{sT+2}, 8'); a(f's_add_u32 s{sT+1}, s{sT+1}, s{sT+2}'); a(f'v_lshl_add_u32 v{aWp}, v0, 2, s{sT+1}')
    a(f'v_lshlrev_b32 v{m}, 4, v{m}'); a(f'v_lshl_add_u32 v{aZ}, v{vl15}, 6, v{m}')
    a(f's_mul_i32 s{sT}, s{sW4}, {PS*4}'); a(f's_add_u32 s{sT}, s{sT}, {L_PL}'); a(f'v_add_u32 v{aZ}, s{sT}, v{aZ}')
    a(f's_lshl_b32 s{sT}, s{sW4}, 6'); a(f'v_add_u32 v{t0}, s{sT}, v{t0}')
    a(f'v_cmp_eq_u32 vcc, 1, v{t1}')
    a(f'v_sub_u32 v{aO}, 512, v{t0}'); a(f'v_mov_b32 v{stp}, 64'); a(f'v_mov_b32 v{aO+1}, -64')
    a(f'v_cndmask_b32 v{aO}, v{t0}, v{aO}, vcc'); a(f'v_cndmask_b32 v{stp}, v{stp}, v{aO+1}, vcc')
    a(f'v_cmp_eq_u32 vcc, 2, v{t1}'); a(f'v_add_u32 v{aO+1}, 520, v{t0}'); a(f'v_add_u32 v{aO+2}, 784, v{t0}'); a(f'v_cndmask_b32 v{aO}, v{aO}, v{aO+1}, vcc')
    a(f'v_cmp_eq_u32 vcc, 3, v{t1}'); a(f'v_mov_b32 v{t0}, {L_PL+1024}'); a(f's_mov_b32 s{sT}, {L_PL}'); a(f'v_cndmask_b32 v{aO}, v{aO}, v{aO+2}, vcc')
    a(f'v_lshl_add_u32 v{aO}, v{aO}, 2, s{sT}')
    for j in range(1,4): a(f'v_add_u32 v{aO+j}, v{aO+j-1}, v{stp}')
    a(f'v_cmp_eq_u32 vcc, {L_PL+2048}, v{aO}'); a(f'v_and_b32 v{t1}, 1, v0'); a(f's_mov_b32 s{sT}, {L_PL+1040*4}'); a(f'v_cndmask_b32 v{aO}, v{aO}, v{t0}, vcc')
    a(f'v_lshl_add_u32 v{stp}, v{t1}, 2, s{sT}')
    if opt('wpos', 2) == 2: wloads(a, vWs, e0, e1, e3)
    ids_gemm(a); late_common(a); rot_calc(a)
    X = R.alloc(8); Dr = R.alloc(8); Di = R.alloc(8); tmp = R.alloc(8); IN = R.alloc(32); P = IN; Wt = IN+16; GX = IN+24
    a('s_waitcnt lgkmcnt(0)')
    dp = 'row_mask:0xf bank_mask:0xf'
    def p1():
        ST('const'); a('s_waitcnt vmcnt(4)'); ST('rows')
        for t in range(2):
            for rho in range(2): a(f'ds_read_b64_tr_b16 {V(X+t*4+rho*2,2)}, v{aT} offset:{rho*1024+t*32}')
        for t in range(2):
            a(LG(2-2*t))
            a(f'{M16} {V(Dr+4*t,4)}, {V(X+4*t,4)}, {V(F16T+2,4)}, 0'); a(f'{M16} {V(Di+4*t,4)}, {V(X+4*t,4)}, {V(F16T,4)}, 0')
        for t in range(2): cmul_pack(a, Dr+4*t, Di+4*t, tc+4*t, ts+4*t, X+4*t, tmp)
        for t in range(2):
            for u in range(2):
                T = F32T + (u*2+t)*6
                a(f'{M16} {V(Dr+4*u,4)}, {V(X+4*t,4)}, {V(T+2,4)}, {"0" if t==0 else V(Dr+4*u,4)}')
                a(f'{M16} {V(Di+4*u,4)}, {V(X+4*t,4)}, {V(T,4)}, {"0" if t==0 else V(Di+4*u,4)}')
        a('s_mov_b64 exec, 1')
        a(f'v_add_f32 v{tmp}, v{Dr}, v{Di+4}'); a(f'v_sub_f32 v{Dr}, v{Dr}, v{Di+4}'); a(f'v_sub_f32 v{Di+4}, v{Di}, v{Dr+4}'); a(f'v_add_f32 v{Di}, v{Di}, v{Dr+4}'); a(f'v_mov_b32 v{Dr+4}, v{tmp}')
        a('s_mov_b64 exec, -1')
        for u in range(2):
            for r in range(4): a(f'v_cvt_pk_bf16_f32 v{P+4*u+r}, v{Dr+4*u+r}, v{Di+4*u+r}')
            a(f'ds_write_b128 v{aZ}, {V(P+4*u,4)} offset:{u*1024}')
        a(f's_add_u32 s{sU}, s{sIDX}, s{sLW}'); a(f's_cmp_eq_u32 s{sU}, {28+3*2048}'); a('s_cbranch_scc1 L_sp6'); a.label('L_sp6r')
        ST('p1')
    P1I = opt('p1i', -1)
    if P1I < 0: p1()
    def wprep():
        a('s_waitcnt vmcnt(0)'); ST('_wv')
        for cg in range(2):
            for hf in range(2): a(f'ds_read_b64_tr_b16 {V(Wt+4*cg+2*hf,2)}, v{aWt} offset:{cg*128+hf*512}')
        a(f'v_lshlrev_b32 v{e0}, 16, v{e0}'); a(f'v_lshlrev_b32 v{e1}, 16, v{e1}')
        a(f'v_mul_f32 v{e0}, 0x3e800000, v{e0}'); a(f'v_mul_f32 v{e1}, 0x3e800000, v{e1}')
        a(f'v_add_f32_dpp v{e2}, v{e0}, v{e0} row_ror:8 {dp}'); a(f'v_subrev_f32_dpp v{e3}, v{e1}, v{e1} row_ror:8 {dp}')
        a(f'v_add_f32_dpp v{e0}, v{e2}, v{e2} row_ror:12 {dp}'); a(f'v_add_f32_dpp v{e1}, v{e3}, v{e3} row_ror:12 {dp}')
        a(f'v_subrev_f32_dpp v{tmp}, v{e2}, v{e2} row_ror:12 {dp}'); a(f'v_subrev_f32_dpp v{tmp+1}, v{e3}, v{e3} row_ror:12 {dp}')
        a(f'v_cvt_pk_bf16_f32 v{e0}, v{e0}, v{e1}'); a(f'v_cvt_pk_bf16_f32 v{e1}, v{tmp}, v{tmp+1}')
        a('s_waitcnt lgkmcnt(0)')
        for r in range(4): a(f'ds_write2st64_b32 v{aWp}, v{Wt+r}, v{Wt+4+r} offset0:{r*17} offset1:{r*17+1}')
        a('s_mov_b64 exec, 15')
        a(f'ds_write_b32 v{aA_}, v{e0}'); a(f'ds_write_b32 v{aB_}, v{e1}')
        a('s_mov_b64 exec, -1')
    R.free(vWs)
    if P1I < 0:
        for r, n in ((F16T,6),(aT,1),(aZ,1)): R.free(r, n)
    wc = R.alloc(8); wsn = R.alloc(8)
    B1 = R.alloc(32); tw2c = R.alloc(8); tw2s = R.alloc(8); F64 = R.alloc(24); tw1c = tc; tw1s = ts
    c = Dr; s = Dr+4; fk = R.alloc(); m2 = R.alloc()
    vA, aW, aWr, aE, aI, aO1, aO2, aOr, vY, aGx, aGw, gacc, aI2 = [R.alloc() for _ in range(13)]
    r = Rec()
    sR, sI = sT+4, sT+5
    a(f's_lshl_b32 s{sT}, s{sHH}, 13'); a(f's_and_b32 s{sT+1}, s{sW4}, 2'); a(f's_lshl_b32 s{sT+1}, s{sT+1}, 11'); a(f's_add_u32 s{sT}, s{sT}, s{sT+1}')
    a(f's_and_b32 s{sT+1}, s{sW4}, 1'); a(f's_lshl_b32 s{sT+1}, s{sT+1}, 10'); a(f's_add_u32 s{sT}, s{sT}, s{sT+1}')
    a(f'v_add_u32 v{aGx}, s{sT}, v{vL16}')
    a(f'v_lshrrev_b32 v{t0}, 4, v{aGx}'); a(f'v_xor_b32 v{t0}, v{t0}, v{aGx}'); a(f'v_and_b32 v{t0}, 0x70, v{t0}'); a(f's_lshl_b32 s{sT}, s{sROT}, 7'); a(f's_add_u32 s{sT}, s{sT}, {L_GW}'); a(f'v_add_u32 v{aGw}, s{sT}, v{t0}')
    a(f'v_mov_b32 v{gacc}, 0')
    r(f'v_lshrrev_b32 v{t0}, 2, v0'); r(f'v_and_b32 v{t1}, 3, v0')
    r(f'v_mul_u32_u24 v{vA}, {ZSTRIDE}, v{t0}'); r(f'v_lshl_add_u32 v{vA}, v{t1}, 4, v{vA}')
    r(f'v_lshlrev_b32 v{aW}, 4, v{t0}'); r(f'v_and_b32 v{t0}, 1, v{t1}'); r(f'v_lshl_add_u32 v{aW}, v{t0}, 8, v{aW}')
    r(f'v_lshrrev_b32 v{t0}, 1, v{t1}'); r(f'v_lshl_add_u32 v{aW}, v{t0}, 13, v{aW}')
    r(f's_lshl_b32 s{sT}, s{sW4}, 10'); r(f's_add_u32 s{sT+1}, s{sT}, {L_IN}'); r(f'v_add_u32 v{aW}, s{sT+1}, v{aW}')
    r([f's_cmp_eq_u32 s{sP}, 0', f's_mov_b32 s{sT+1}, {L_EX}', f's_cmov_b32 s{sT+1}, {L_IN+8192}', f'v_add_u32 v{aI2}, s{sT+1}, v{vL16}']); r(f'v_add_u32 v{aE}, s{sT}, v{aI2}')
    r(f'v_add_u32 v{aI}, {L_IN}, v{vL16}')
    r(f'v_lshrrev_b32 v{t0}, 4, v0'); r(f'v_lshlrev_b32 v{aWr}, 10, v{t0}'); r(f'v_lshl_add_u32 v{aWr}, v{vl15}, 4, v{aWr}')
    r(f's_and_b32 s{sT}, s{sW4}, 1'); r(f's_lshl_b32 s{sT}, s{sT}, 12'); r(f's_lshr_b32 s{sT+1}, s{sW4}, 1'); r(f's_lshl_b32 s{sT+1}, s{sT+1}, 9')
    r(f's_add_u32 s{sT}, s{sT}, s{sT+1}'); r(f's_add_u32 s{sT}, s{sT}, {L_IN+8192}'); r(f'v_add_u32 v{aWr}, s{sT}, v{aWr}')
    r(f'v_and_b32 v{t1}, 7, v0'); r(f'v_xor_b32 v{t0}, v{t0}, v{t1}'); r(f'v_lshlrev_b32 v{t0}, 4, v{t0}')
    r(f'v_lshl_add_u32 v{aO1}, v{vl15}, 7, v{t0}'); r(f's_add_u32 s{sT}, s{sLW}, {L_OT}'); r(f'v_add_u32 v{aO1}, s{sT}, v{aO1}'); r(f'v_xor_b32 v{aO2}, 64, v{aO1}')
    r(f'v_lshrrev_b32 v{t0}, 3, v0'); r(f'v_xor_b32 v{aOr}, v{t1}, v{t0}'); r(f'v_lshlrev_b32 v{aOr}, 4, v{aOr}'); r(f'v_lshl_add_u32 v{aOr}, v{t0}, 7, v{aOr}'); r(f'v_add_u32 v{aOr}, s{sT}, v{aOr}')
    r(f'v_mul_u32_u24 v{t0}, {YA}, v{vl15 if opt("yd", 0) else t0}'); r([f'v_lshrrev_b32 v{t1}, 4, v0' if opt('yd', 0) else 's_nop 0', f'v_lshl_add_u32 v{vY}, v{t1}, 4, v{t0}'])
    r(f's_lshl_b32 s{sT}, s{sW4}, 4'); r(f'v_add_u32 v{t0}, s{sT}, v{vl15}'); r(f'v_cvt_f32_u32 v{fk}, v{t0}')
    r(f'v_cvt_f32_u32 v{t0}, s{sT}'); r(f'v_add_f32 v{t0}, v{t0}, v{fg4}')
    for t in range(2):
        if t == 0: r(f'v_mul_f32 v{step}, {F(-1/2048)}, v{fl15}')
        else: r(f'v_add_f32 v{step}, {F(-16/2048)}, v{step}')
        r(f'v_mul_f32 v{base}, v{t0}, v{step}')
        sincos4(r, base, step, 0, tw2c+4*t, tw2s+4*t)
    r(f'v_mul_f32 v{step}, {F(-1/64)}, v{fk}')
    r(f'v_lshrrev_b32 v{t0}, 5, v0'); r(f'v_lshlrev_b32 v{t0}, 2, v{t0}'); r(f'v_cvt_f32_u32 v{t0}, v{t0}')
    r(f'v_bfe_u32 v{t1}, v0, 4, 1')
    r(f'v_xor_b32 v{m}, v{t1}, v0'); r(f'v_lshlrev_b32 v{m}, 31, v{m}'); r(f'v_xor_b32 v{base}, {F(-0.125)}, v{m}')
    r(f'v_lshlrev_b32 v{m}, 31, v{t1}'); r(f'v_fmac_f32 v{base}, v{t0}, v{step}')
    r(f's_mov_b32 s{sSC}, {F(math.sqrt(0.5))}'); r(f's_mov_b32 s{sSC+1}, {F(math.sqrt(0.5))}')
    for k in range(2):
        sincos4(r, base, step, 8*k, c, s)
        for i in range(4):
            r(f'v_cvt_pk_bf16_f32 v{B1+k*8+i}, v{c+i}, -v{s+i}'); r(f'v_cvt_pk_bf16_f32 v{B1+k*8+4+i}, v{s+i}, v{c+i}')
        for i in range(8): r(f'v_xor_b32 v{B1+k*8+i}, v{m}, v{B1+k*8+i}')
    r('s_mov_b32 s4, 0xaaaaaaaa'); r('s_mov_b32 s5, 0xaaaaaaaa')
    r(f'v_bfe_i32 v{m2}, v0, 1, 1'); r(f'v_and_b32 v{m2}, 0x80008000, v{m2}'); r(f'v_xor_b32 v{m}, v{m2}, v{mo}')
    for k in range(2):
        for i in range(4):
            re_, im_ = B1+k*8+i, B1+k*8+4+i
            r(f'v_cndmask_b32 v{re_+16}, v{re_}, v{im_}, s[4:5]'); r(f'v_cndmask_b32 v{im_+16}, v{im_}, v{re_}, s[4:5]')
            r(f'v_xor_b32 v{re_+16}, v{m2}, v{re_+16}'); r(f'v_xor_b32 v{im_+16}, v{m}, v{im_+16}')
    r(f'v_mul_f32 v{step}, {F(-1/2048)}, v{fk}'); r(f'v_mul_f32 v{base}, v{fg4}, v{step}')
    sincos4(r, base, step, 0, tw1c, tw1s); sincos4(r, base, step, 16, tw1c+4, tw1s+4)
    for j in range(0, 8, 2):
        r(f'v_pk_mul_f32 {V(tw1c+j,2)}, {V(tw1c+j,2)}, s[{sSC}:{sSC+1}]'); r(f'v_pk_mul_f32 {V(tw1s+j,2)}, {V(tw1s+j,2)}, s[{sSC}:{sSC+1}]')
    r(f'v_mul_f32 v{step}, {F(1/64)}, v{fk}'); r(f'v_mul_f32 v{base}, v{fg4}, v{step}')
    for k in range(2):
        sincos4(r, base, step, 16*k, c, s); mat6(r, F64+6*k, c, s)
    for j in range(12): r(f'v_xor_b32 v{F64+12+j}, v{mo}, v{F64+j}')
    pend = list(r.l)
    def fill(n):
        while n > 0 and pend:
            x = pend.pop(0)
            for y in (x if isinstance(x, list) else [x]): a(y)
            n -= 1
    print('H const entries', len(pend), file=sys.stderr)
    def readout():
        for j in range(4):
            a(f'ds_read2st64_b32 {V(P+4*j,2)}, v{aO+j} offset0:0 offset1:17'); a(f'ds_read2st64_b32 {V(P+4*j+2,2)}, v{aO+j} offset0:34 offset1:51')
        a(f'ds_read2st64_b32 {V(Wt,2)}, v{stp} offset0:0 offset1:17'); a(f'ds_read2st64_b32 {V(Wt+2,2)}, v{stp} offset0:34 offset1:51')
        a(f's_mul_i32 s{sT}, s{sP}, {ZSTRIDE}'); a(f's_lshl_b32 s{sT+1}, s{sW4}, 12'); a(f's_add_u32 s{sT+1}, s{sT}, s{sT+1}')
        for j in range(4):
            a(LG(8-2*j))
            a(f'buffer_store_dwordx4 {V(P+4*j,4)}, v{vL16}, {SR(sWS)}, s{sT+1} offen offset:{j*1024} sc1')
        Lx = a.newlabel('x')
        a(f's_cmp_lg_u32 s{sW4}, 0'); a(f's_cbranch_scc1 {Lx}')
        a(f's_and_b32 s{sT}, s{sP}, 0x30'); a(f's_lshl_b32 s{sT}, s{sT}, 7'); a(f's_and_b32 s{sT+1}, s{sP}, 15'); a(f's_lshl_b32 s{sT+1}, s{sT+1}, 4'); a(f's_add_u32 s{sT}, s{sT}, s{sT+1}')
        a(f's_and_b32 s{sT+1}, s{sP}, 0xc0'); a(f's_lshl_b32 s{sT+1}, s{sT+1}, 2'); a(f's_add_u32 s{sT}, s{sT}, s{sT+1}'); a(f's_add_u32 s{sT}, s{sT}, {WS_B}')
        a(f'v_lshlrev_b32 v{tmp}, 10, v0')
        a('s_waitcnt lgkmcnt(0)'); a('s_mov_b64 exec, 3')
        a(f'buffer_store_dwordx4 {V(Wt,4)}, v{tmp}, {SR(sWS)}, s{sT} offen sc1')
        a('s_mov_b64 exec, -1')
        a(f's_cmp_ge_u32 s{sP}, 64'); a(f's_cbranch_scc1 {Lx}')
        for j in range(4): a(f'v_mov_b32 v{tmp+j}, 0')
        a(f's_lshl_b32 s{sT}, s{sP}, 10'); a(f's_add_u32 s{sT}, s{sT}, {WS_KV}')
        a(f'buffer_store_dwordx4 {V(tmp,4)}, v{vL16}, {SR(sWS)}, s{sT} offen sc1'); a('s_nop 1')
        a.label(Lx)
        ST('zst')
    per = opt('hfill', 32)
    FB = opt('fb', 3)
    PI = opt('pi', 5)
    sMs = sT+3
    def f1poll(): poll2(a, C_F1)
    def f1test(): test2(a)
    a(f's_mul_i32 s{sMs}, s{sW4}, {64*ZSTRIDE}'); a(f's_lshl_b32 s{sT+1}, s{sP}, 6'); a(f's_add_u32 s{sMs}, s{sMs}, s{sT+1}')
    Bv = R.alloc(8) if False else P - 0
    def msgs():
        Lm = a.newlabel('m')
        a(f's_cmp_lg_u32 s{sP}, 0'); a(f's_cbranch_scc1 {Lm}')
        a(f's_getpc_b64 s[{sSX}:{sSX+1}]'); a('s_branch L_sp3')
        a.label(Lm)
        for j in range(4):
            if j: a(f's_add_u32 s{sMs}, s{sMs}, {16*ZSTRIDE}')
            a(f'buffer_load_dwordx4 {V(IN+4*j,4)}, v{vA}, {SR(sWS)}, s{sMs} offen sc1')
        arrive(a, 3)
    WI = opt('wi', 0)
    if P1I >= 0:
        fill(44); a(f's_waitcnt vmcnt({6 if opt("rpos", 0) else 4})')
    NZ = 8
    fill(opt('hp', 60))
    for cch in range(7):
        if cch == FB: a('s_waitcnt vmcnt(0)')
        ST(f'_hb{cch}')
        a('s_barrier')
        ST(f'_hc{cch}')
        if cch in (1, 2, 4, 6): ST(f'B{cch}')
        if cch == WI+1 and not opt('noh', 0): readout()
        if cch == P1I: p1()
        if loc(cch, 'X') < 65536: a(f'ds_read_b128 {V(GX,4)}, v{aGx} offset:{loc(cch, "X")}')
        else: a(f'v_add_u32 v{GX}, {loc(cch, "X")}, v{aGx}'); a(f'ds_read_b128 {V(GX,4)}, v{GX}')
        a(f'ds_read_b128 {V(GX+4,4)}, v{aGw} offset:{cch*128}')
        nf = opt('h6', 16) if cch == 6 else (opt('h0', 40) if (cch == 0 and P1I < 0) else (per if cch > WI+1 else opt('h1', 20)))
        early = cch > WI+1
        if early and cch not in (FB, 6): fill(10); nf -= 10
        if not early:
            fill(nf); nf = 0
            if cch == WI and not opt('noh', 0): wprep()
        a('s_waitcnt lgkmcnt(0)')
        if cch == FB: signal(a, C_F1, sXCD, True)
        if cch == FB-1:
            Lr = a.newlabel('r'); Lr2 = a.newlabel('r')
            a(f's_cmp_lg_u32 s{sW4}, 0'); a(f's_cbranch_scc1 {Lr2}')
            a(f's_mov_b32 s{sCNT}, 0x2000')
            a.label(Lr)
            a(f's_cmp_ge_u32 s{sR0}, {NZ}'); a(f's_cbranch_scc1 {Lr2}')
            a('s_sleep 8'); a(f's_load_dword s{sR0}, s[{sDBG}:{sDBG+1}], 0 glc'); a('s_waitcnt lgkmcnt(0)')
            a(f's_sub_u32 s{sCNT}, s{sCNT}, 1'); a(f's_cbranch_scc0 {Lr}')
            a.label(Lr2)
        if cch == FB-2:
            Lw = a.newlabel('w')
            a(f's_cmp_lg_u32 s{sW4}, 0'); a(f's_cbranch_scc1 {Lw}')
            a(f's_load_dword s{sR0}, s[{sDBG}:{sDBG+1}], 0'); a.label(Lw)
        if cch == opt('mp', -1):
            a(f's_lshl_b32 s{sT+6}, s{sP}, 11'); a(f's_lshl_b32 s{sT+7}, s{sW4}, 9'); a(f's_add_u32 s{sT+6}, s{sT+6}, s{sT+7}')
            a(f's_add_u32 s{sT+6}, s{sWO}, s{sT+6}'); a(f's_addc_u32 s{sT+7}, s{sWO+1}, 0')
            for j in range(8): a(f's_load_dword s{sU}, s[{sT+6}:{sT+7}], {64*j}')
        if cch == PI:
            assert PI > FB and PI < 6
            f1poll()
            a(f's_cmp_eq_u32 s{sP}, 0'); a('s_cbranch_scc1 L_sp4'); a.label('L_sp4r')
        if cch == 6:
            Ll = a.newlabel('late')
            a(f's_mov_b32 s{sCNT}, 0x2000')
            f1test(); a(f's_cbranch_scc1 {Ll}')
            msgs()
            a(f's_mov_b32 s{sCNT}, 0')
            a.label(Ll)
        for j in range(4): a(f'v_dot2_f32_bf16 v{gacc}, v{GX+j}, v{GX+4+j}, v{gacc}')
        fill(nf)
    a('s_barrier')
    ST('B7')
    a(f'ds_read_b128 {V(GX,4)}, v{aGx} offset:{loc(7, "X")}'); a(f'ds_read_b128 {V(GX+4,4)}, v{aGw} offset:{7*128}')
    Lp = a.newlabel('p'); Lq = a.newlabel('q'); Lok = a.newlabel('ok')
    a(f's_cmp_eq_u32 s{sCNT}, 0'); a(f's_cbranch_scc1 {Lok}')
    a.label(Lp)
    a(f's_sub_u32 s{sCNT}, s{sCNT}, 1'); a(f's_cbranch_scc1 {Lq}')
    f1poll(); a('s_waitcnt lgkmcnt(0)')
    f1test(); a(f's_cbranch_scc1 {Lp}')
    a.label(Lq)
    msgs()
    a.label(Lok)
    fill(10000)
    a('s_waitcnt lgkmcnt(0)')
    for j in range(4): a(f'v_dot2_f32_bf16 v{gacc}, v{GX+j}, v{GX+4+j}, v{gacc}')
    ST('c2')
    for j in range(4):
        a(f's_waitcnt vmcnt({3-j})')
        a(f'ds_write_b128 v{aW}, {V(IN+4*j,4)} offset:{(j&1)*4096 + (j>>1)*512}')
    ST('_ml'); arrive(a, 4); sync_wait(a, GRP_H, 4)
    ST('in')
    Wv = R.alloc(8)
    for n in range(8): a(f'ds_read_b128 {V(IN+4*n,4)}, v{aI} offset:{n*1024}')
    for t in range(2): a(f'ds_read_b128 {V(Wv+4*t,4)}, v{aWr} offset:{t*256}')
    for t in range(2):
        for k in range(4):
            n = t*4+k
            a(LG(9-n))
            a(f'{M16} {V(Dr+4*t,4)}, {V(IN+4*n,4)}, {V(B1+8*k,4)}, {"0" if k==0 else V(Dr+4*t,4)}')
            a(f'{M16} {V(Di+4*t,4)}, {V(IN+4*n,4)}, {V(B1+8*k+4,4)}, {"0" if k==0 else V(Di+4*t,4)}')
    ST('_s1')
    for t in range(2): cmul_pack(a, Dr+4*t, Di+4*t, tw1c+4*t, tw1s+4*t, X+4*t, tmp)
    ST('_t1')
    for t in range(2):
        for u in range(2):
            T = F32T + (u*2+t)*6
            a(f'{M16} {V(Dr+4*u,4)}, {V(T+2,4)}, {V(X+4*t,4)}, {"0" if t==0 else V(Dr+4*u,4)}')
            a(f'{M16} {V(Di+4*u,4)}, {V(T,4)}, {V(X+4*t,4)}, {"0" if t==0 else V(Di+4*u,4)}')
    a('s_waitcnt lgkmcnt(0)')
    a(f's_cmp_eq_u32 s{sP}, 0'); a('s_cbranch_scc1 L_sp2')
    for j in range(8):
        a(f'v_lshlrev_b32 v{wc+j}, 16, v{Wv+j}'); a(f'v_and_b32 v{wsn+j}, 0xffff0000, v{Wv+j}')
    for u in range(2): cmul_pack(a, Dr+4*u, Di+4*u, wc+4*u, wsn+4*u, X+4*u, tmp, conj_out=True)
    a.label('L_sp2r')
    ST('_w')
    for u in range(2):
        for t in range(2):
            T = F32T + (t*2+u)*6
            a(f'{M16} {V(Dr+4*t,4)}, {V(X+4*u,4)}, {V(T+2,4)}, {"0" if u==0 else V(Dr+4*t,4)}')
            a(f'{M16} {V(Di+4*t,4)}, {V(X+4*u,4)}, {V(T,4)}, {"0" if u==0 else V(Di+4*t,4)}')
    for t in range(2):
        cmul_pack(a, Dr+4*t, Di+4*t, tw2c+4*t, tw2s+4*t, X+4*t, tmp)
        a(f'ds_write_b128 v{aE}, {V(X+4*t,4)} offset:{t*4096}')
    ST('_e0')
    arrive(a, 7); sync_wait(a, GRP_H, 7)
    ST('_e1')
    for n in range(8): a(f'ds_read_b128 {V(IN+4*n,4)}, v{aI2} offset:{n*1024}')
    for t in range(2):
        for k in range(4):
            n = t*4+k; T = F64 + 6*k
            a(LG(7-n))
            a(f'{M16} {V(Dr+4*t,4)}, {V(IN+4*n,4)}, {V(T+2,4)}, {"0" if k==0 else V(Dr+4*t,4)}')
            a(f'{M16} {V(Di+4*t,4)}, {V(IN+4*n,4)}, {V(T,4)}, {"0" if k==0 else V(Di+4*t,4)}')
    ST('_s4')
    a(f's_mul_i32 s{sT}, s{sW4}, {16*YA}'); a(f's_mul_i32 s{sT+1}, s{sP}, {YK}'); a(f's_add_u32 s{sT}, s{sT}, s{sT+1}'); a(f's_add_u32 s{sT}, s{sT}, {WS_Y}')
    a(f's_add_u32 s{sT+1}, s{sT}, {8*YA}')
    for t in range(2):
        a(f'v_cvt_pk_bf16_f32 v{X+4*t}, v{Dr+4*t}, v{Dr+4*t+1}'); a(f'v_cvt_pk_bf16_f32 v{X+4*t+1}, v{Dr+4*t+2}, v{Dr+4*t+3}')
        a(f'v_cvt_pk_bf16_f32 v{X+4*t+2}, v{Di+4*t}, v{Di+4*t+1}'); a(f'v_cvt_pk_bf16_f32 v{X+4*t+3}, v{Di+4*t+2}, v{Di+4*t+3}')
        if opt('yd', 0): a(f'buffer_store_dwordx4 {V(X+4*t,4)}, v{vY}, {SR(sWS)}, s{sT} offen offset:{64*t} sc1')
        else: a(f'ds_write_b128 v{aO1 if t==0 else aO2}, {V(X+4*t,4)}')
    if not opt('yd', 0):
        a(f'ds_read_b128 {V(IN,4)}, v{aOr}'); a(f'ds_read_b128 {V(IN+4,4)}, v{aOr} offset:1024')
        a(LG(1)); a(f'buffer_store_dwordx4 {V(IN,4)}, v{vY}, {SR(sWS)}, s{sT} offen sc1')
        a('s_waitcnt lgkmcnt(0)'); a(f'buffer_store_dwordx4 {V(IN+4,4)}, v{vY}, {SR(sWS)}, s{sT+1} offen sc1')
    ST('yst')
    a(f'v_add_f32_dpp v{gacc}, v{gacc}, v{gacc} quad_perm:[1,0,3,2] {dp}')
    a(f'v_add_f32_dpp v{gacc}, v{gacc}, v{gacc} quad_perm:[2,3,0,1] {dp}')
    a(f'v_add_f32_dpp v{gacc}, v{gacc}, v{gacc} row_half_mirror {dp}')
    a(f'v_lshrrev_b32 v{t0}, 3, v0'); a(f's_lshl_b32 s{sT}, s{sW4}, 5'); a(f's_add_u32 s{sT}, s{sT}, {L_GP}'); a(f'v_lshl_add_u32 v{t0}, v{t0}, 2, s{sT}')
    a(f'v_cvt_pk_bf16_f32 v{gacc}, v{gacc}, v{gacc}'); a(f'v_and_b32 v{gacc}, 0xffff0000, v{gacc}')
    a(f'v_mul_f32 v{gacc}, {F(-LOG2E)}, v{gacc}'); a(f'v_exp_f32 v{gacc}, v{gacc}'); a(f'v_add_f32 v{gacc}, 1.0, v{gacc}'); a(f'v_rcp_f32 v{gacc}, v{gacc}')
    a(f'v_cvt_pk_bf16_f32 v{gacc}, v{gacc}, v{gacc}'); a(f'v_and_b32 v{gacc}, 0xffff0000, v{gacc}')
    a(f'ds_write_b32 v{t0}, v{gacc}')
    arrive(a, 8)
    HT = opt('ht', 3)
    if HT == 0: fin_table(a, lambda i: None)
    fin_setup(a)
    ST('_su'); a('s_waitcnt vmcnt(0)'); ST('_ak'); fysig(a); ST('fy')
    if HT == 3: fin_table(a, lambda i: None, PQ, ACA)
    sync_wait(a, GRP_G, 15)
    pull_wo(a, 0)
    if HT == 2: fin_table(a, lambda i: None, PQ, ACA)
    a(f's_mov_b32 s{sSC}, 0')
    Lg = a.newlabel('yg'); Ld = a.newlabel('yd')
    for _ in range(opt('yp', 0)):
        poll2(a, C_FY); a('s_waitcnt lgkmcnt(0)')
        test2(a); a(f's_cbranch_scc0 {Lg}')
    poll2(a, C_FY)
    a(f's_branch {Ld}')
    a.label(Lg)
    yloads(a); a(f's_mov_b32 s{sSC}, 1')
    a.label(Ld)
    ST('_h9')
    SP.update(locals())
    return R.hi

def gen_special(a):
    g = SP
    t0, t1, B1 = [g[k] for k in ('t0','t1','B1')]
    IN, Dr, Di, Wv, tmp, wc, wsn, X, vl15 = [g[k] for k in ('IN','Dr','Di','Wv','tmp','wc','wsn','X','vl15')]
    a.label('L_sp5'); a.hist = []
    srdc(a, sWS)
    a(f'v_lshlrev_b32 v{vS+2}, 8, v0'); a(f's_mul_i32 s{sU}, s{sXCD}, {48*256}'); a(f's_add_u32 s{sU}, s{sU}, {WS_C}')
    a('s_mov_b32 exec_hi, 0xffff')
    a(f'buffer_store_dword v{vS}, v{vS+2}, {SR(sWS)}, s{sU} offen sc1')
    a('s_mov_b32 exec_hi, -1')
    a('s_branch L_sp5r')
    a.label('L_sp6')
    a(f's_mov_b32 s{sU}, 1'); a(f's_atomic_add s{sU}, s[{sDBG}:{sDBG+1}], 0')
    a('s_branch L_sp6r')
    a.label('L_sp4'); a.hist = []
    for j in range(8): spoll(a, 20+j, sC, C_F1+256*j)
    a('s_branch L_sp4r')
    a.label('L_sp3'); a.hist = []
    a(f's_mov_b32 s{sT+7}, 0x2000')
    a('s_branch L_sp3c')
    a.label('L_sp3p')
    a(f's_sub_u32 s{sT+7}, s{sT+7}, 1'); a('s_cbranch_scc1 L_sp3q')
    for j in range(8): spoll(a, 20+j, sC, C_F1+256*j)
    a.label('L_sp3c')
    a('s_waitcnt lgkmcnt(0)')
    for j in range(1, 8): a(f's_and_b32 s20, s20, s{20+j}')
    a('s_cmp_lg_u32 s20, 32'); a('s_cbranch_scc1 L_sp3p')
    a.label('L_sp3q')
    a(f's_add_u32 s{sT+6}, s{sLW}, {WS_B}')
    a(f'buffer_load_dwordx4 {V(wsn,4)}, v{vL16}, {SR(sWS)}, s{sT+6} offen sc1'); a(f'buffer_load_dwordx4 {V(wsn+4,4)}, v{vL16}, {SR(sWS)}, s{sT+6} offen offset:1024 sc1')
    a(f's_add_u32 s{sSX}, s{sSX}, 4'); a(f's_addc_u32 s{sSX+1}, s{sSX+1}, 0'); a(f's_setpc_b64 s[{sSX}:{sSX+1}]')
    a.label('L_sp2'); a.hist = []
    bc = IN; bs = IN+8; N = IN+16; t2 = IN+24; Nr = B1; Ni = B1+8; Yr = B1+16; Yi = B1+24
    a(f'v_lshrrev_b32 v{t0}, 4, v0'); a(f's_lshl_b32 s{sT}, s{sW4}, 4'); a(f'v_lshl_add_u32 v{t0}, v{t0}, 8, v{vl15}'); a(f'v_add_u32 v{t0}, s{sT}, v{t0}')
    a(f'v_sub_u32 v{t1}, {2047-64*19}, v{t0}'); a(f's_mov_b32 s{sT}, {L_EX}'); a(f'v_lshl_add_u32 v{t1}, v{t1}, 2, s{sT}')
    a(f'v_subrev_u32 v{t0}, 1, v{t0}'); a(f'v_and_b32 v{t2}, 2047, v{t0}')
    a(f'v_lshl_add_u32 v{t0}, v{t0}, 2, s{sT}'); a(f'v_lshl_add_u32 v{t2}, v{t2}, 2, s{sT}')
    for j in range(8): a(f'v_cvt_pk_bf16_f32 v{N+j}, v{Dr+j}, v{Di+j}')
    a(f'ds_write_b32 v{t2}, v{N}'); a(f'ds_write_b32 v{t0}, v{N+1} offset:256')
    for j in (2, 4, 6):
        o = 16*(j//4) + j%4
        a(f'ds_write2st64_b32 v{t0}, v{N+j}, v{N+j+1} offset0:{o} offset1:{o+1}')
    arrive(a, 6); sync_read(a, GRP_H)
    for j in range(8):
        a(f'v_lshlrev_b32 v{bc+j}, 16, v{wsn+j}'); a(f'v_and_b32 v{bs+j}, 0xffff0000, v{wsn+j}')
    sync_check(a, GRP_H, 6)
    for j in range(0, 8, 2):
        o = 19 - 16*(j//4) - j%4
        a(f'ds_read2st64_b32 {V(N+j,2)}, v{t1} offset0:{o} offset1:{o-1}')
    for j in range(8):
        a(f'v_lshlrev_b32 v{wc+j}, 16, v{Wv+j}'); a(f'v_and_b32 v{wsn+j}, 0xffff0000, v{Wv+j}')
    ng = 'neg_lo:[1,0,0] neg_hi:[1,0,0]'
    for j in range(0, 8, 2):
        a(f'v_pk_mul_f32 {V(Yr+j,2)}, {V(Dr+j,2)}, {V(wc+j,2)}'); a(f'v_pk_mul_f32 {V(Yi+j,2)}, {V(Dr+j,2)}, {V(wsn+j,2)}')
    for j in range(0, 8, 2):
        a(f'v_pk_fma_f32 {V(Yr+j,2)}, {V(Di+j,2)}, {V(wsn+j,2)}, {V(Yr+j,2)} {ng}'); a(f'v_pk_fma_f32 {V(Yi+j,2)}, {V(Di+j,2)}, {V(wc+j,2)}, {V(Yi+j,2)}')
    a('s_waitcnt lgkmcnt(0)')
    for j in range(8):
        a(f'v_lshlrev_b32 v{Nr+j}, 16, v{N+j}'); a(f'v_and_b32 v{Ni+j}, 0xffff0000, v{N+j}')
    for j in range(0, 8, 2):
        a(f'v_pk_fma_f32 {V(Yr+j,2)}, {V(Nr+j,2)}, {V(bc+j,2)}, {V(Yr+j,2)}'); a(f'v_pk_fma_f32 {V(Yi+j,2)}, {V(Nr+j,2)}, {V(bs+j,2)}, {V(Yi+j,2)}')
    for j in range(0, 8, 2):
        a(f'v_pk_fma_f32 {V(Yr+j,2)}, {V(Ni+j,2)}, {V(bs+j,2)}, {V(Yr+j,2)}'); a(f'v_pk_fma_f32 {V(Yi+j,2)}, {V(Ni+j,2)}, {V(bc+j,2)}, {V(Yi+j,2)} {ng}')
    for u in range(2):
        a(f'v_cvt_pk_bf16_f32 v{X+4*u}, v{Yr+4*u}, v{Yr+4*u+1}'); a(f'v_cvt_pk_bf16_f32 v{X+4*u+1}, v{Yr+4*u+2}, v{Yr+4*u+3}')
        a(f'v_cvt_pk_bf16_f32 v{X+4*u+2}, -v{Yi+4*u}, -v{Yi+4*u+1}'); a(f'v_cvt_pk_bf16_f32 v{X+4*u+3}, -v{Yi+4*u+2}, -v{Yi+4*u+3}')
    a('s_nop 1'); a('s_branch L_sp2r')

def gen_G0(a, ST):
    R = Regs(190)
    vd = R.alloc(6); t0, t1 = R.alloc(), R.alloc()
    srdc(a, sWQ); ids_gemm(a)
    dma_setup(a, vd, t0, t1)
    B0 = dma_group(0, vd)
    for l in B0[0][:-1]: a(l)
    a('s_waitcnt lgkmcnt(0)'); ST('karg')
    a(B0[0][-1])
    for b in B0[1:]: emit(a, b)
    return R, vd, t0, t1

def gen_G(a, ST, G):
    R, vd, t0, t1 = G
    bf = 42; NB = 3; BS = 28; accK = 126; accV = 142; accQ = 158; tmp = 174
    late_common(a)
    Q = []; QD = []; cum = [8]
    for g in range(1, 8):
        B = dma_group(g, vd)
        if g >= 8-DQ:
            Q += B[:6]
            QD += [[B[4][0]] + B[0][1:5] + B[6], B[7]]
        else: Q += B
        cum.append(8 + len(Q))
    NQ = cum[-1]
    iss = [8]
    def dma(limit):
        if iss[0] < min(limit, NQ):
            emit(a, Q[iss[0]-8], WIN-1 if iss[0] >= WIN else None); iss[0] += 1
    fin_table(a, lambda i: None); fin_setup(a)
    aA = R.alloc(4); aB = R.alloc(2)
    a(f'v_bfe_u32 v{t1}, v0, 1, 3'); a(f'v_lshrrev_b32 v{t0}, 4, v0'); a(f'v_xor_b32 v{t1}, v{t1}, v{t0}'); a(f'v_lshlrev_b32 v{t1}, 4, v{t1}')
    a(f'v_and_b32 v{aA}, 15, v0'); a(f'v_lshl_add_u32 v{aA}, v{aA}, 7, v{t1}')
    a(f'v_xor_b32 v{aA+1}, 64, v{aA}'); a(f'v_add_u32 v{aA+2}, 65536, v{aA}'); a(f'v_add_u32 v{aA+3}, 65536, v{aA+1}')
    a(f'v_lshrrev_b32 v{t0}, 5, v0'); a(f'v_lshlrev_b32 v{aB}, 12, v{t0}')
    a(f'v_bfe_u32 v{t1}, v0, 4, 1'); a(f'v_lshl_add_u32 v{aB}, v{t1}, 10, v{aB}')
    a(f'v_bfe_u32 v{t1}, v0, 2, 2'); a(f'v_lshl_add_u32 v{aB}, v{t1}, 7, v{aB}')
    a(f'v_bfe_u32 v{t1}, v0, 3, 2'); a(f'v_xor_b32 v{t1}, s{sW4}, v{t1}'); a(f'v_lshl_add_u32 v{aB}, v{t1}, 5, v{aB}')
    a(f'v_and_b32 v{t1}, 3, v0'); a(f'v_lshl_add_u32 v{aB}, v{t1}, 3, v{aB}')
    a(f'v_add_u32 v{aB+1}, 65536, v{aB}')
    a(f's_mov_b32 s{sL2E}, {F(LOG2E)}'); a(f's_mov_b32 s{sL2E+1}, {F(LOG2E)}')
    aK, aR, vAt, vPq, aZ2, vAz = [R.alloc() for _ in range(6)]; vwo = YL+4
    a(f's_mul_i32 s{sT}, s{sW4}, 1088'); a(f's_add_u32 s{sT+1}, s{sT}, {L_KVR}')
    a(f'v_add_u32 v{aK}, s{sT+1}, v{vL16}'); a(f'v_add_u32 v{aZ2}, s{sT+1}, v0')
    a(f'v_lshrrev_b32 v{t0}, 2, v0'); a(f'v_mul_u32_u24 v{t0}, 240, v{t0}'); a(f'v_lshl_add_u32 v{vAz}, v0, 2, v{t0}'); a(f'v_add_u32 v{vAz}, 32768, v{vAz}')
    a(f'v_and_b32 v{t1}, 0xf0, v{vL16}')
    a(f'v_lshlrev_b32 v{vAt}, 2, v0'); a(f'v_add_u32 v{aR}, s{sT+1}, v{vAt}')
    if PK: a(f'v_lshrrev_b32 v{t0}, 4, v0'); a(f'v_lshl_add_u32 v{vAt}, v{t0}, 2, v{t1}')
    a(f'v_bfe_u32 v{t0}, v0, 4, 1'); a(f'v_lshl_add_u32 v{vPq}, v{t0}, 9, v{t1}'); a(f'v_lshrrev_b32 v{t0}, 5, v0'); a(f'v_lshl_add_u32 v{vPq}, v{t0}, 8, v{vPq}')
    a(f'v_lshrrev_b32 v{t0}, 4, v0'); a(f'v_lshlrev_b32 v{vwo}, 5, v{t0}'); a(f'v_xor_b32 v{t1}, v{t1}, v{vwo}')
    a(f'v_and_b32 v{vwo}, 128, v{t1}'); a(f'v_mad_u32_u24 v{t1}, v{vwo}, 3, v{t1}')
    a(f'v_lshl_add_u32 v{vwo}, v{t0}, 10, v{t1}'); a(f'v_xor_b32 v{vwo+1}, 512, v{vwo}'); a(f'v_add_u32 v{vwo+1}, 3072, v{vwo+1}')
    sA0, sPq, sWu, sWo, sTo = sT, sT+2, sT+3, sT+4, sT+5
    a(f's_lshl_b32 s{sT+1}, s{sHG}, 12'); a(f's_lshl_b32 s{sA0}, s{sW4}, 10'); a(f's_add_u32 s{sA0}, s{sA0}, s{sT+1}'); a(f's_add_u32 s{sA0}, s{sA0}, {WS_KV}')
    a(f's_lshl_b32 s{sPq}, s{sROW0}, 10'); a(f's_lshl_b32 s{sT+1}, s{sHG}, 12'); a(f's_add_u32 s{sPq}, s{sPq}, s{sT+1}')
    a(f's_lshl_b32 s{sT+1}, s{sW4}, 10'); a(f's_add_u32 s{sPq}, s{sPq}, s{sT+1}'); a(f's_add_u32 s{sPq}, s{sPq}, {WS_PQ}')
    a(f's_lshl_b32 s{sT+1}, s{sHL}, 7'); a(f's_lshl_b32 s{sWo}, s{sW4}, 13'); a(f's_add_u32 s{sWo}, s{sWo}, s{sT+1}')
    a(f's_lshr_b32 s{sTo}, s{sIDX}, 2')
    ones = R.alloc(4); m64 = aK if False else YL
    if PK:
        for j in range(4): a(f'v_mov_b32 v{m64+j}, {F(-64.0)}')
    for j in range(4): a(f'v_mov_b32 v{ones+j}, 0x3f803f80')
    ST('_su')
    while iss[0] < opt('w0', 12): dma(64)
    ST('iss')
    def buf(c, k): return bf + ((c*2+k) % NB)*BS
    def rdlist(c, k, qonly=False):
        b = buf(c, k); L = []
        def tr(dst, ad):
            q = ad // 65536; L.append(f'ds_read_b64_tr_b16 {V(dst,2)}, v{aB+q} offset:{ad-q*65536}')
        def xr(t):
            ad = loc(c, 'X') + t*BLK; q = ad // 65536
            L.append(f'ds_read_b128 {V(b+4*t,4)}, v{aA+2*q+k} offset:{ad-q*65536}')
        def wr(i):
            for jj in range(2): tr(b+16+4*i+2*jj, loc(c, 'KVQ'[i]) + 2*k*BLK + jj*512)
        if qonly: wr(2); xr(0); xr(1); xr(2); xr(3); return L
        wr(0); xr(0); xr(1); wr(1); xr(2); xr(3)
        if c < 8-DQ: wr(2)
        if opt('nord', 0) and 0 < c < 7: L = ['s_nop 0']*10
        return L
    def mm(c, k, i, t):
        if opt('nomm', 0) and 0 < c < 7: return
        b = buf(c, k); acc = (accK, accV, accQ)[i] + 4*t; C = "0" if (c == 0 and k == 0) else V(acc,4)
        if i < 2: a(f'{M16} {V(acc,4)}, {V(b+4*t,4)}, {V(b+16+4*i,4)}, {C}')
        else: a(f'{M16} {V(acc,4)}, {V(b+24,4)}, {V(b+4*t,4)}, {C}')
    nwo = [0]
    def wo_dma(thr=None):
        i = nwo[0]
        if i >= 32: return
        u, ii = WO_ORDER[i//2], i & 1
        if ii == 0:
            a(f's_add_u32 m0, s{sLW}, {wo_unit(u)}')
            a(f's_add_u32 s{sWu}, s{sTo}, {u & 7}'); a(f's_and_b32 s{sWu}, s{sWu}, 7')
            if u >= 8: a(f's_or_b32 s{sWu}, s{sWu}, 8')
            a(f's_lshl_b32 s{sWu}, s{sWu}, 15'); a(f's_add_u32 s{sWu}, s{sWu}, s{sWo}')
        if thr is not None: a(f's_waitcnt vmcnt({thr})')
        a(f'buffer_load_dwordx4 v{vwo+ii}, {SR(sWO)}, s{sWu} offen' + (' offset:1024' if ii else '') + ' lds')
        nwo[0] += 1
    order = [(i, t) for i in range(3) for t in range(4)]
    LAG = 6; AH = opt('ah', 8)
    assert AH == 8
    lagged = []
    for c in range(8):
        ST(f'_ga{c}')
        while iss[0] < (cum[min(c+1, 7)] if c else 8 + opt('ah0', 4)): dma(64)
        a(f's_waitcnt vmcnt({iss[0] - cum[c] + nwo[0]}) lgkmcnt(0)')
        ST(f'_gb{c}')
        a('s_barrier')
        ST(f'_gc{c}'); ST(f'_T{c}')
        if c in (0, 1, 2, 4, 7): ST(f'B{c}')
        if c == opt('gpc', 7) and opt('gp', 1): a(f's_setprio {opt("gp", 1)}')
        lim = cum[min(c+2, 7)]
        last = c == 7
        od = order if c < 8-DQ else order[:8]
        r0 = rdlist(c, 0); r1 = rdlist(c, 1)
        for l in r0: a(l)
        for l in r1[:5]: a(l)
        if last:
            for b in QD: emit(a, b)
        if c == 0:
            for _ in range(4): dma(lim)
        for n, m_ in enumerate(lagged):
            mm(*m_)
            if n % 3 == 0: dma(lim)
        a(LG(5))
        if last:
            for l in r1[5:]: a(l)
        for n, (i, t) in enumerate(order[:4] if last else od):
            mm(c, 0, i, t)
            if last: continue
            if n < len(r1)-5: a(r1[5+n])
            elif n % 2 == 1 or len(od) == 8: dma(lim)
        a('s_waitcnt lgkmcnt(0)')
        lg = LAG if len(od) == 12 else 4
        for n, (i, t) in enumerate(order[:4] if last else od[:len(od)-lg]):
            mm(c, 1, i, t)
            if n % 3 == 0: dma(lim)
        lagged = [(c, 1, i, t) for (i, t) in od[len(od)-lg:]]
        if c == opt('pr', -1):
            assert c >= 5
            while iss[0] < NQ: dma(64)
            for _ in range(4): wo_dma(WIN-1)
    sync_read(a, GRP_H)
    pk = accK; vv = accK+8; Dk = accV; Dz = accV+4
    restm = [(k, 1, t) for k in range(2) for t in range(4)]
    if DQ == 0: restm += [(k, 2, t) for k in range(2) for t in range(4)]
    for _ in range(5): mm(7, *restm.pop(0))
    rr = Rec(); phi_pack(rr, accK, 16, pk, tmp)
    WB = opt('wb', 4)
    for n, l in enumerate(rr.l):
        a(l)
        if n % 3 == 2 and restm: mm(7, *restm.pop(0))
        if WB and n % (len(rr.l)//WB) == 4: wo_dma()
    assert not restm
    for j in range(8): a(f'v_cvt_pk_bf16_f32 v{vv+j}, v{accV+2*j}, v{accV+2*j+1}')
    a(f'{M16} {V(Dk,4)}, {V(pk,4)}, {V(vv,4)}, 0'); a(f'{M16} {V(Dz,4)}, {V(pk,4)}, {V(ones,4)}, {V(m64,4) if PK else 0}')
    a(f'{M16} {V(Dk,4)}, {V(pk+4,4)}, {V(vv+4,4)}, {V(Dk,4)}'); a(f'{M16} {V(Dz,4)}, {V(pk+4,4)}, {V(ones,4)}, {V(Dz,4)}')
    ST('kvm')
    if PK:
        sync_check(a, GRP_H, 3); a.fence(2)
        Pp = accV+8
        a(f'v_cvt_pk_bf16_f32 v{Pp}, v{Dk}, v{Dk+1}'); a(f'v_cvt_pk_bf16_f32 v{Pp+1}, v{Dk+2}, v{Dk+3}')
        a(f'v_cvt_pk_bf16_f32 v{Pp+2}, v{Dz}, v{Dz+1}'); a(f'v_cvt_pk_bf16_f32 v{Pp+3}, v{Dz+2}, v{Dz+3}')
        a(f'v_permlane16_swap_b32 v{Pp}, v{Pp+1}'); a(f'v_permlane16_swap_b32 v{Pp+2}, v{Pp+3}')
        for h in range(2): a(f'buffer_atomic_pk_add_bf16 v{Pp+h}, v{vAt}, {SR(sWS)}, s{sA0} offen' + (f' offset:{KS}' if h else ''))
        a('s_mov_b32 exec_lo, 0x00010001'); a('s_mov_b32 exec_hi, 0x00010001')
        for h in range(2): a(f'buffer_atomic_pk_add_bf16 v{Pp+2+h}, v{vAt}, {SR(sWS)}, s{sA0} offen offset:{256+h*KS}')
        a('s_mov_b64 exec, -1')
    else:
        a(f'ds_write_b128 v{aK}, {V(Dk,4)}')
        a('s_mov_b32 exec_lo, 0x00010001'); a('s_mov_b32 exec_hi, 0x00010001')
        a(f'ds_write_b128 v{aZ2}, {V(Dz,4)} offset:1024')
        a('s_mov_b64 exec, -1')
        Pp = accV+8
        a(f'ds_read2st64_b32 {V(Pp,2)}, v{aR} offset0:0 offset1:1'); a(f'ds_read2st64_b32 {V(Pp+2,2)}, v{aR} offset0:2 offset1:3'); a(f'ds_read_b32 v{Pp+4}, v{aR} offset:1024')
        sync_check(a, GRP_H, 3)
        for rnd in range(4): a(f'buffer_atomic_add_f32 v{Pp+rnd}, v{vAt}, {SR(sWS)}, s{sA0} offen' + (f' offset:{rnd*256}' if rnd else ''))
        a('s_mov_b64 exec, 0xffff'); a(f'buffer_atomic_add_f32 v{Pp+4}, v{vAz}, {SR(sWS)}, s{sA0} offen'); a('s_mov_b64 exec, -1')
    ST('atom')
    if DQ:
        a(f's_waitcnt vmcnt({5 + nwo[0]})')
        arrive(a, 10); sync_wait(a, GRP_G, 10)
        ST('_wq')
        steps = [(c, k) for c in range(8-DQ, 8) for k in range(2)]
        for st_ in steps[:2]:
            for l in rdlist(*st_, qonly=True): a(l)
        for n, (c, k) in enumerate(steps):
            a(LG(6 if n+1 < len(steps) else 0))
            mm(c, k, 2, 0)
            if n+2 < len(steps):
                for l in rdlist(*steps[n+2], qonly=True): a(l)
            for t in range(1, 4): mm(c, k, 2, t)
    arrive(a, 11)
    phi_pack(a, accQ, 16, accK, tmp)
    for rt in range(2):
        a(f'v_permlane32_swap_b32 v{accK+4*rt}, v{accK+4*rt+2}'); a(f'v_permlane32_swap_b32 v{accK+4*rt+1}, v{accK+4*rt+3}')
    a(f'buffer_store_dwordx4 {V(accK,4)}, v{vPq}, {SR(sWS)}, s{sPq} offen sc1')
    a(f's_add_u32 s{sPq}, s{sPq}, 32768')
    a(f'buffer_store_dwordx4 {V(accK+4,4)}, v{vPq}, {SR(sWS)}, s{sPq} offen sc1')
    ST('qst')
    if opt('gp', 1): a('s_setprio 0')
    WW = opt('ww', 10); NS = opt('ns', 8)
    for i in range(NS): wo_dma()
    OW = [fOW, fOW+1, fYW, fYW+1]
    for j in range(32): a(f'v_mov_b32 v{KVF+j}, 0x45004500')
    a(f's_lshl_b32 s{sT}, s{sW4}, 2'); a(f's_and_b32 s{sT+2}, s{sT}, 8'); a(f's_sub_u32 s{sT}, s{sT}, s{sTo}')
    for bb in range(4):
        if bb: a(f's_add_u32 s{sT}, s{sT}, 1')
        a(f's_and_b32 s{sT+1}, s{sT}, 7'); a(f's_or_b32 s{sT+1}, s{sT+1}, s{sT+2}'); a(f's_lshl_b32 s{sT+1}, s{sT+1}, 11')
        a(f'v_add_u32 v{OW[bb]}, s{sT+1}, v{vL16}')
    a(f's_add_u32 s{sT}, s{sFKV}, 4096'); a(f's_add_u32 s{sT+1}, s{sFPQ}, 4096')
    a(f's_waitcnt vmcnt({NS})'); signal_last(a, 32, 3, C_FK, sHG); ST('fk')
    while nwo[0] < 2*NFREE: wo_dma(WW-1)
    a(f's_waitcnt vmcnt({2*NFREE-18})')
    ST('_g2'); arrive(a, 13); sync2(a, 4, 13, PQ); ST('_g3')
    poll2(a, C_FK)
    rr = Rec(); pull_wo(rr, 1)
    for n, l in enumerate(rr.l):
        a(l)
        if n % 4 == 3: wo_dma(WW-1)
    assert nwo[0] == 32
    assert R.hi <= YL, R.hi
    ST('tab')
    pre_fin_G(a, ST)
    return R.hi

fT0, fT1, fOMG, fG, fYW, fO, fHP, fOUT, fKV, fF, fP, fO2 = [FT+8+i for i in (0,1,2,4,6,8,9,10,11,12,13,3)]
fY = FT; fC = FT+2; fOW = FT+4; fB = FT+6
sFY, sFPQ, sFKV, sFOUT, sFFK, sFFY = 12, 13, 14, 15, 16, 17
def fin_setup(a):
    t0, t1 = fT0, fT1
    a(f'v_and_b32 v{t0}, 31, v0'); a(f'v_lshlrev_b32 v{t1}, 2, v{t0}'); a(f'v_add_u32 v{fOMG}, {L_GP}, v{t1}')
    a(f'v_and_b32 v{fG}, 60, v{t1}'); a(f's_lshl_b32 s{sT}, s{sKH}, 6'); a(f's_add_u32 s{sT}, s{sT}, {L_GP}'); a(f'v_add_u32 v{fG}, s{sT}, v{fG}')
    a(f'v_lshrrev_b32 v{t1}, 5, v0')
    if PK: a(f'v_min_u32 v{fKV}, 16, v{t0}'); a(f'v_mul_u32_u24 v{fO}, {KS}, v{t1}'); a(f'v_lshl_add_u32 v{fKV}, v{fKV}, 4, v{fO}')
    else: a(f'v_cmp_gt_u32 vcc, 16, v{t0}'); a(f'v_lshlrev_b32 v{fKV}, 4, v{t0}'); a(f'v_mov_b32 v{fO}, 32768'); a(f'v_cndmask_b32 v{fKV}, v{fO}, v{fKV}, vcc'); a(f'v_lshl_add_u32 v{fKV}, v{t1}, 8, v{fKV}')
    a(f'v_bfe_u32 v{t0}, v0, 2, 3'); a(f'v_lshl_add_u32 v{fB}, v{t1}, 4, v{t0}'); a(f'v_lshlrev_b32 v{fB}, 8, v{fB}')
    a(f'v_xor_b32 v{t0}, s{sW4}, v{t0}'); a(f'v_lshl_add_u32 v{fB}, v{t0}, 5, v{fB}')
    a(f'v_and_b32 v{t0}, 3, v0'); a(f'v_lshl_add_u32 v{fB}, v{t0}, 3, v{fB}'); a(f'v_xor_b32 v{fB+1}, 128, v{fB}')
    a(f'v_bfe_u32 v{t1}, v0, 3, 1'); a(f'v_and_b32 v{fYW}, 0x70, v{vL16}'); a(f'v_lshl_add_u32 v{fYW}, v{t1}, 14, v{fYW}')
    a(f'v_lshlrev_b32 v{fY}, 7, v{t1}'); a(f'v_lshl_add_u32 v{fY}, v{t0}, 4, v{fY}')
    a(f'v_lshrrev_b32 v{t1}, 4, v0'); a(f'v_lshl_add_u32 v{fYW}, v{t1}, 7, v{fYW}')
    a(f's_lshl_b32 s{sT}, s{sW4}, 12'); a(f'v_add_u32 v{fYW}, s{sT}, v{fYW}'); a(f'v_xor_b32 v{fYW+1}, 64, v{fYW}')
    a(f's_lshl_b32 s{sT}, s{sKH}, 14')
    a(f'v_and_b32 v{t0}, 0xf0, v{vL16}'); a(f'v_lshl_add_u32 v{fO}, v{t1}, 9, s{sT}')
    a(f'v_add_u32 v{fY}, v{fY}, v{fO}'); a(f's_lshl_b32 s{sT}, s{sKH}, 8'); a(f'v_add3_u32 v{fO}, v{fO}, v{t0}, s{sT}'); a(f'v_xor_b32 v{fO2}, 256, v{fO}')
    a(f'v_bfe_u32 v{t0}, v0, 4, 1'); a(f'v_lshl_add_u32 v{fY}, v{t0}, 6, v{fY}')
    a(f'v_bfe_u32 v{t0}, v0, 2, 1'); a(f'v_lshl_add_u32 v{fY}, v{t0}, 3, v{fY}'); a(f's_lshl_b32 s{sT}, s{sKH}, 6'); a(f'v_xor_b32 v{fY}, s{sT}, v{fY}'); a(f'v_xor_b32 v{fY+1}, 64, v{fY}')
    a(f's_lshl_b32 s{sT}, s{sWV}, 12'); a(f's_add_u32 s{sT}, s{sT}, {L_EP}'); a(f'v_add_u32 v{fHP}, s{sT}, v{vL16}')
    a(f's_lshl_b32 s{sT}, s{sAT}, 15'); a(f's_lshl_b32 s{sFKV}, s{sW4}, 13'); a(f's_add_u32 s{sT+1}, s{sT}, s{sFKV}')
    a(f's_add_u32 s{sFPQ}, s{sT+1}, {WS_PQ}'); a(f's_add_u32 s{sFY}, s{sT+1}, {WS_Y}'); a(f's_add_u32 s{sFKV}, s{sFKV}, {WS_KV}')

def pull_wo(a, kh):
    B = ACB
    for q in (1, 2):
        for cu in range(2): a(f'v_add_u32 v{B+2*q+cu}, {57344*q}, v{fB+cu}')
    for n in range(8):
        for cu in range(2):
            for jj in range(2):
                ad = wo_unit(8*kh+n) + jj*2048
                q = ad // 57344
                a(f'ds_read_b64_tr_b16 {V(WF+8*n+4*cu+2*jj,2)}, v{(B+2*q if q else fB)+cu} offset:{ad - q*57344}')
YR = [HP+4*j for j in range(8)]
def yloads(a):
    for j in range(8):
        if j == 4: a(f's_add_u32 s{sFY}, s{sFY}, 4096')
        a(f'buffer_load_dwordx4 {V(YR[j],4)}, v{vL16}, {SR(sWS)}, s{sFY} offen offset:{(j&3)*1024} sc1')
def pre_fin_G(a, ST):
    assert PK
    KV8 = [KVF + 4*j for j in range(8)]; PQ8 = [HP + 4*j for j in range(8)]; OF = [PQ, PQ+4, PQ+8, PQ+12]
    OW = [fOW, fOW+1, fYW, fYW+1]
    LA = opt('la', 6)
    def ld(j):
        a('s_mov_b32 exec_lo, 0x0011ffff'); a('s_mov_b32 exec_hi, 0x0011ffff')
        a(f'buffer_load_dwordx4 {V(KV8[j],4)}, v{fKV}, {SR(sWS)}, s{sFKV if j < 4 else sT} offen offset:{(j&3)*1024} sc1')
        a('s_mov_b64 exec, -1')
        a(f'buffer_load_dwordx4 {V(PQ8[j],4)}, v{vL16}, {SR(sWS)}, s{sFPQ if j < 4 else sT+1} offen offset:{(j&3)*1024} sc1')
    Lc = a.newlabel('c'); Ld = a.newlabel('d')
    a('s_waitcnt lgkmcnt(0)'); ST('_g4')
    arrive(a, 14)
    test2(a); a(f's_cbranch_scc0 {Lc}')
    poll2(a, C_FK)
    a('s_waitcnt vmcnt(0)'); arrive(a, 15)
    poll2_loop(a, C_FK, True)
    a.label(Lc)
    ST('pk')
    for j in range(LA): ld(j)
    ST('rdy')
    a(f's_waitcnt vmcnt({2*LA})'); arrive(a, 15)
    sync2(a, 8, 14, PQ)
    a(f'ds_read_b32 v{fOMG}, v{fOMG}')
    a('s_waitcnt lgkmcnt(0)')
    a(f'v_sub_f32 v{fOMG}, 1.0, v{fOMG}'); a(f'v_cvt_pk_bf16_f32 v{fOMG}, v{fOMG}, v{fOMG}'); a(f'v_and_b32 v{fOMG}, 0xffff0000, v{fOMG}')
    ST('_g5')
    def fo(j):
        D = ACA if j % 2 == 0 else ACB; O = OF[j % 4]
        a(f'v_add_f32 v{D+8}, v{D+8}, v{D+9}')
        a(f'v_add_f32 v{fT0}, {F(1e-6)}, v{D+8}'); a(f'v_rcp_f32 v{fT0}, v{fT0}'); a(f'v_mul_f32 v{fC}, v{fT0}, v{fOMG}'); a(f'v_mul_f32 v{fC+1}, v{fT0}, v{fOMG}')
        for q in range(0, 8, 2): a(f'v_pk_mul_f32 {V(D+q,2)}, {V(D+q,2)}, {V(fC,2)}')
        for q in range(4): a(f'v_cvt_pk_bf16_f32 v{O+q}, v{D+2*q}, v{D+2*q+1}')
        a(f'ds_write_b128 v{OW[j//2]}, {V(O,4)} offset:{L_O+(j&1)*1024}')
    for j in range(8):
        D = ACA if j % 2 == 0 else ACB
        a(f's_waitcnt vmcnt({2*(min(8, LA+j) - j - 1)})')
        a(f'{M32} {V(D,16)}, {V(KV8[j],4)}, {V(PQ8[j],4)}, 0')
        if j in (0, 4): ST(f'_a{j}')
        if LA + j < 8: ld(LA + j)
        if j > 0: fo(j-1)
    fo(7)
    a(f's_mov_b32 s{sSC}, 2'); ST('_g6')

def gen_FIN(a, ST):
    t0, t1 = fT0, fT1
    a(f'v_xor_b32 v{fF}, 64, v{fG}')
    a(f'v_xor_b32 v{fB}, 16384, v{fHP}')
    a('s_waitcnt lgkmcnt(0)'); a('s_barrier')
    a(f'ds_read_b32 v{fG}, v{fG}'); a(f'ds_read_b32 v{fF}, v{fF}')
    ST('J3')
    Ll = a.newlabel('yl')
    a(f's_cmp_lg_u32 s{sSC}, 0'); a(f's_cbranch_scc1 {Ll}')
    test2(a); a(f's_cbranch_scc1 {Ll}')
    yloads(a); a(f's_mov_b32 s{sSC}, 1')
    a.label(Ll)
    BF = KVF; PF = 3
    def rdo(n):
        for su in range(2): a(f'ds_read_b128 {V(BF+(n%4)*8+4*su,4)}, v{fO2 if su else fO} offset:{L_O+n*2048}')
    def rdy(n):
        for su in range(2):
            for jj in range(2): a(f'ds_read_b64_tr_b16 {V(WF+n*8+4*su+2*jj,2)}, v{fY+su} offset:{L_Y+(16*n+2*jj)*128}')
    for n in range(PF): rdo(n)
    for n in range(8):
        b = BF + (n % 4)*8
        a(f's_waitcnt lgkmcnt({2*min(PF-1, 7-n)})' if not (STAMP and n == 0) else 's_waitcnt lgkmcnt(0)')
        for i, (cu, su) in enumerate(((0,0),(0,1),(1,0),(1,1))):
            d = ACB + 8*su + 4*cu
            a(f'{M16} {V(d,4)}, {V(WF+8*n+4*cu,4)}, {V(b+4*su,4)}, {"0" if n==0 else V(d,4)}')
            if i == 0 and n+PF < 8: rdo(n+PF)
    ST('bp')
    Lo = a.newlabel('yo'); Lz = a.newlabel('yz')
    a(f's_cmp_eq_u32 s{sSC}, 2'); a(f's_cbranch_scc1 {Lz}')
    a(f's_cmp_eq_u32 s{sSC}, 1'); a(f's_cbranch_scc1 {Lo}')
    poll2_loop(a, C_FY)
    yloads(a)
    a.label(Lo)
    for j in range(8):
        a(f's_waitcnt vmcnt({7-j})'); a(f'ds_write_b128 v{fYW+(j&1)}, {V(YR[j],4)} offset:{L_Y+j*512}')
    a.label(Lz)
    a(f'v_mul_f32 v{fG}, {F(2.0**-19)}, v{fG}'); a(f's_lshl_b32 s{sT}, s{sKH}, 31'); a(f'v_xor_b32 v{fG+1}, s{sT}, v{fG}'); a(f'v_mul_f32 v{fF}, {F(2.0**-19)}, v{fF}')
    a.fence(2)
    for cu in range(2): a(f'ds_write_b128 v{fHP}, {V(ACB+8+4*cu,4)} offset:{cu*1024}')
    a('s_waitcnt lgkmcnt(0)'); a('s_barrier')
    ST('J3b')
    for cu in range(2): a(f'ds_read_b128 {V(HP+4*cu,4)}, v{fB} offset:{cu*1024}')
    for n in range(3): rdy(n)
    for n in range(8):
        a(f's_waitcnt lgkmcnt({4*min(2, 7-n)})' if not (STAMP and n == 0) else 's_waitcnt lgkmcnt(0)')
        for su in (1, 0):
            d = ACA + 4*su
            a(f'{M16} {V(d,4)}, {V(TF+4*n,4)}, {V(WF+n*8+4*su,4)}, {"0" if n==0 else V(d,4)}')
        if n+3 < 8: rdy(n+3)
        if n == 5:
            for q in range(0, 8, 2): a(f'v_pk_add_f32 {V(ACB+q,2)}, {V(ACB+q,2)}, {V(HP+q,2)}')
        if n == 1:
            eP, eQ, eR, eS, eO, eM = fOW, fOW+1, fYW, fYW+1, fOUT, fKV
            a(f'v_and_b32 v{t0}, 15, v0'); a(f'v_mul_u32_u24 v{eP}, {RP}, v{t0}'); a(f'v_and_b32 v{t1}, 0x30, v0'); a(f's_lshl_b32 s{sT}, s{sW4}, 6')
            a(f'v_add3_u32 v{eP}, v{eP}, v{t1}, s{sT}')
            a(f's_mul_i32 s{sT}, s{sKH}, {16*RP}'); a(f's_sub_u32 s{sT+1}, {16*RP}, s{sT}')
            a(f'v_add_u32 v{eQ}, s{sT+1}, v{eP}'); a(f'v_add_u32 v{eP}, s{sT}, v{eP}')
        if n == 2:
            a(f'v_lshrrev_b32 v{t1}, 4, v0'); a(f's_lshl_b32 s{sT}, s{sWV}, 2'); a(f'v_add_u32 v{t1}, s{sT}, v{t1}')
            a(f'v_mul_u32_u24 v{eR}, {RP}, v{t1}'); a(f'v_and_b32 v{eS}, 7, v0'); a(f'v_lshl_add_u32 v{eS}, v{eS}, 5, v{eR}'); a(f'v_lshl_add_u32 v{eR}, v{t0}, 5, v{eR}')
        if n == 3:
            a(f'v_and_b32 v{eM}, 8, v0'); a(f'v_mad_u32_u24 v{t0}, v{eM}, 3, v{t0}'); a(f'v_lshlrev_b32 v{t0}, 4, v{t0}'); a(f'v_lshl_add_u32 v{eO}, v{t1}, 10, v{t0}')
            a(f's_xor_b32 s{sT}, s{sKH}, 1'); a(f's_lshl_b32 s{sT}, s{sT}, 3'); a(f'v_and_b32 v{eM}, s{sT}, v{eM}'); a(f'v_lshlrev_b32 v{eM}, 28, v{eM}'); a(f'v_xor_b32 v{fC}, 1.0, v{eM}'); a(f'v_mov_b32 v{fC+1}, v{fC}')
            a(f's_lshl_b32 s{sT}, s{sAT}, 15'); a(f's_lshl_b32 s{sT+1}, s{sHL}, 7'); a(f's_add_u32 s{sFOUT}, s{sT}, s{sT+1}')
    for r in range(4): a(f'v_mul_f32 v{ACA+4+r}, v{fF}, v{ACA+4+r}')
    a(f'ds_write_b128 v{eQ}, {V(ACA+4,4)} offset:{L_O+512}')
    for r in range(4): a(f'v_fmac_f32 v{ACB+r}, v{fG}, v{ACA+r}')
    a(f'ds_write_b128 v{eP}, {V(ACB,4)} offset:{L_O}')
    for r in range(4): a(f'v_fmac_f32 v{ACB+4+r}, v{fG+1}, v{ACA+r}')
    a(f'ds_write_b128 v{eP}, {V(ACB+4,4)} offset:{L_O+256}')
    a('s_waitcnt lgkmcnt(0)'); a('s_barrier')
    for q in range(2): a(f'ds_read_b128 {V(HP+4*q,4)}, v{eR} offset:{L_O+16*q}'); a(f'ds_read_b128 {V(HP+8+4*q,4)}, v{eS} offset:{L_O+512+16*q}')
    for q in range(2):
        a(f's_waitcnt lgkmcnt({2-2*q})')
        for j in (0, 2): a(f'v_pk_fma_f32 {V(HP+4*q+j,2)}, {V(HP+8+4*q+j,2)}, {V(fC,2)}, {V(HP+4*q+j,2)}')
        for j in (0, 2): a(f'v_cvt_pk_bf16_f32 v{ACA+2*q+j//2}, v{HP+4*q+j}, v{HP+4*q+j+1}')
    OF = {0:'', 1:' sc1', 2:' nt', 3:' sc0 sc1', 4:' sc1 nt'}[opt('of', 2)]
    a(f'buffer_store_dwordx4 {V(ACA,4)}, v{eO}, {SR(sOUT)}, s{sFOUT} offen{OF}')
    a.label('L_end')
    ST('end')
    stamp_flush(a, len(ST.names))

if __name__ == '__main__':
    a = build()
    if opt('al', 0):
        from align import align
        a.lines = align(a.lines, minrun=opt('mr', 5))
    out = '; @launch grid=(256,1,1) block=(512,1,1) lds=163840\n.amdgcn_target "amdgcn-amd-amdhsa--gfx950"\n.text\n'
    out += '.p2align 12\n' + kernel_header(NAME) + a.text()
    out += f'.p2align 8\n.fill (33792 - (. - {NAME})) / 4, 4, 0xbf800000\n'
    out += '.section .rodata,"a"\n.p2align 6\n' + kernel_desc(NAME, 256, 102)
    open(sys.argv[1], 'w').write(out)
```

```python
import sys, math, os
sys.path.insert(0,'lib')
from asmgen import *
NAME='gated_mix__spectral_gfnet__linear_attn_block__prompt_kernel'
STAMP = int(os.environ.get('STAMP','0'))
STSEL = [x for x in os.environ.get('STSEL','').split(',') if x]
PROBE = os.environ.get('PROBE','')
OPT = dict(x.split('=') for x in os.environ.get('OPT','').split(',') if x)
def opt(k, d): return int(OPT.get(k, d))

WS_Z=0; ZSTRIDE=16640; WS_PQ=0x420000; WS_Y=0x620000; WS_KV=0x880000; WS_C=0x890000; C_F1=0; C_FK=32768; C_FY=65536; WS_B=0x8b0000; WS_ST=0x8c0000; WS_SIZE=0x900000
HS=16384; BLK=4096; NH=7
def loc(c, part):
    h = 2*c + (0 if part in 'XK' else 1)
    return (h % NH)*HS + (2048 if part in 'XV' else 0)
SC=NH*HS; PS=1088
L_SY=SC; L_GP=SC+256; L_GW=SC+768; L_A=L_GW+2048; L_B=L_A+16384; L_XT=L_B+4*PS*4; L_END=L_XT+8192
L_P1X=L_A; L_WRAW=L_A+8192; L_IN=L_A; L_OT=L_A; L_PL=L_B; L_EX=L_B; L_KVR=L_B+8192
assert L_END <= 163840 and L_KVR+8704 <= L_XT and L_A % 256 == 0 and L_XT % 256 == 0, L_END
L_Y=0; L_O=32768; L_EP=65536; RS=528; RP=784
LOG2E=1.4426950408889634
YA=opt('ya', 32768); YK=opt('yk', 128)
PK=opt('pk', 1); KS=opt('ks', 512)
QX=opt('qx', 0); assert QX in (0, 1)
NREP=opt('nrep', 8)
sX,sWR,sWI,sWQ,sWO,sGW,sOUT,sWS = 8,12,16,20,24,28,32,36
sXCD,sIDX,sP,sHG,sROW0,sROT,sWV,sW4,sHH,sHL = 40,41,42,43,44,45,46,47,48,49
sT=50; sSC=58; sL2E=60; sLW=62; sR0=63; sC=28; sPB=30; sDBG=100; sAT=64; sKH=65; sCNT=66; sLB=67; sSX=6; sSW=7; sU=3
M16 = 'v_mfma_f32_16x16x32_bf16'; M32 = 'v_mfma_f32_32x32x16_bf16'
def SR(d): return f's[{d}:{d+3}]'

class Stamps:
    def __init__(self, a): self.a = a; self.names = []
    def __call__(self, name):
        if PROBE:
            if name == 'start' and PROBE != 'start': self.a('s_mov_b64 s[96:97], 0')
            if name == PROBE: self.a('s_memrealtime s[96:97]'); self.a('s_waitcnt lgkmcnt(0)')
            if name == 'end':
                a = self.a
                a('s_cmp_eq_u64 s[96:97], 0'); a('s_cbranch_scc1 L_done')
                a('s_add_u32 s96, s96, 3000')
                a.label('L_spin'); a('s_sleep 2'); a('s_memrealtime s[98:99]'); a('s_waitcnt lgkmcnt(0)')
                a('s_sub_u32 s98, s98, s96'); a('s_cmp_lt_i32 s98, 0'); a('s_cbranch_scc1 L_spin')
            return
        if not STAMP: return
        if STSEL and name not in STSEL: return
        if not STSEL and name.startswith('_'): return
        if name in self.names: n = self.names.index(name)
        else: n = len(self.names); self.names.append(name)
        assert n < 16, name
        self.a(('s_memtime' if name.startswith('_T') else 's_memrealtime') + f' s[{68+2*n}:{69+2*n}]')
def stamp_flush(a, n):
    if not STAMP: return
    L = a.newlabel('stf')
    a('s_waitcnt lgkmcnt(0)')
    a(f's_cmp_lg_u32 s{sW4}, {opt("stw",0)}'); a(f's_cbranch_scc1 {L}')
    a(f's_lshl_b32 s{sT}, s2, 8'); a(f's_add_u32 s{sT}, s{sT}, {WS_ST}')
    a(f's_lshr_b32 s{sT+1}, s{sWV}, 2'); a(f's_lshl_b32 s{sT+1}, s{sT+1}, 7'); a(f's_add_u32 s{sT}, s{sT}, s{sT+1}')
    a('s_mov_b64 exec, 1'); a('v_mov_b32 v4, 0')
    for i in range(n):
        a(f'v_mov_b32 v2, s{68+2*i}'); a(f'v_mov_b32 v3, s{69+2*i}')
        a(f'buffer_store_dwordx2 v[2:3], v4, {SR(sWS)}, s{sT} offen offset:{8*i}'); a('s_nop 1')
    a.label(L)
def LG(n): return f's_waitcnt lgkmcnt({0 if STAMP else n})'

class Rec:
    def __init__(self): self.l = []
    def __call__(self, s): self.l.append(s)

vL16=1; vPA=2; vSY=3; vS=4; VBASE=10
def arrive(a, stage):
    a(f'v_mov_b32 v{vS+4}, {stage}'); a(f'ds_write_b32 v{vPA}, v{vS+4}')
def sync_read(a, grp): a(f'ds_read_b128 {V(vS,4)}, v{vSY} offset:{16*grp}')
def sync_check(a, grp, stage):
    L = a.newlabel('sw'); L2 = a.newlabel('sd')
    a.label(L)
    a('s_waitcnt lgkmcnt(0)')
    a(f'v_min3_u32 v{vS}, v{vS}, v{vS+1}, v{vS+2}'); a(f'v_min_u32 v{vS}, v{vS}, v{vS+3}')
    a(f'v_readfirstlane_b32 s{sT+7}, v{vS}')
    a(f's_cmp_ge_u32 s{sT+7}, {stage}'); a(f's_cbranch_scc1 {L2}')
    sync_read(a, grp); a(f's_branch {L}')
    a.label(L2)
def sync2(a, sH, sG, T):
    L = a.newlabel('s2')
    a.label(L)
    a(f'ds_read_b128 {V(vS,4)}, v{vSY}'); a(f'ds_read_b128 {V(T,4)}, v{vSY} offset:16')
    a('s_waitcnt lgkmcnt(0)')
    a(f'v_min3_u32 v{vS}, v{vS}, v{vS+1}, v{vS+2}'); a(f'v_min3_u32 v{T}, v{T}, v{T+1}, v{T+2}')
    a(f'v_min_u32 v{vS}, v{vS}, v{vS+3}'); a(f'v_add_u32 v{vS}, {sG-sH}, v{vS}'); a(f'v_min3_u32 v{vS}, v{vS}, v{T}, v{T+3}')
    a(f'v_readfirstlane_b32 s{sT+7}, v{vS}')
    a(f's_cmp_lt_u32 s{sT+7}, {sG}'); a(f's_cbranch_scc1 {L}')
def sync_wait(a, grp, stage): sync_read(a, grp); sync_check(a, grp, stage)
GRP_H=0; GRP_G=1
def signal(a, cset, sgrp, split=False):
    if not split and (opt('vsig', 0) & {C_FK: 1, C_FY: 2}[cset]):
        a(f's_lshl_b32 s{sT+6}, s{sgrp}, 8'); a(f's_add_u32 s{sT+6}, s{sT+6}, {WS_C+cset}')
        a(f'v_lshlrev_b32 v{vS}, 11, v0'); a(f'v_mov_b32 v{vS+1}, 1'); a(f's_mov_b64 exec, {(1 << NREP) - 1}')
        a(f'buffer_atomic_add v{vS+1}, v{vS}, {SR(sWS)}, s{sT+6} offen sc1'); a('s_mov_b64 exec, -1')
        return
    a(f's_lshl_b32 s{sT+6}, s{sgrp}, 8')
    if split: a(f's_add_u32 s{sT+6}, s{sT+6}, s{sLW}')
    a(f's_add_u32 s{sT+6}, s{sC}, s{sT+6}'); a(f's_addc_u32 s{sT+7}, s{sC+1}, 0')
    a(f's_mov_b32 s{sU}, 1')
    for r in range(0, NREP, 4 if split else 1): a(f's_atomic_add s{sU}, s[{sT+6}:{sT+7}], {cset + r*2048}')
def spoll(a, dst, pair, imm):
    a(f's_mov_b32 s{dst}, 0'); a(f's_atomic_add s{dst}, s[{pair}:{pair+1}], {imm} glc')
sR1 = sT+2
def poll2(a, cset): spoll(a, sR0, sPB, cset); spoll(a, sR1, sPB, cset+256)
def test2(a): a(f's_and_b32 s{sR0}, s{sR0}, s{sR1}'); a(f's_cmp_lg_u32 s{sR0}, 32')
def poll2_loop(a, cset, pre=False):
    Lp = a.newlabel('p'); Lc = a.newlabel('c'); Lq = a.newlabel('q')
    a(f's_mov_b32 s{sCNT}, 0x2000')
    if pre: a(f's_branch {Lc}')
    a.label(Lp)
    a(f's_sub_u32 s{sCNT}, s{sCNT}, 1'); a(f's_cbranch_scc1 {Lq}')
    poll2(a, cset)
    a.label(Lc)
    a('s_waitcnt lgkmcnt(0)')
    test2(a); a(f's_cbranch_scc1 {Lp}')
    a.label(Lq)
def signal_last(a, cnt_off, last, cset, sgrp):
    L = a.newlabel('sig')
    a('s_mov_b64 exec, 1')
    a(f'v_mov_b32 v{vS+4}, 1'); a(f'ds_add_rtn_u32 v{vS}, v{vSY}, v{vS+4} offset:{cnt_off}')
    a('s_waitcnt lgkmcnt(0)')
    a(f'v_readfirstlane_b32 s{sT+7}, v{vS}')
    a('s_mov_b64 exec, -1')
    a(f's_cmp_lg_u32 s{sT+7}, {last}'); a(f's_cbranch_scc1 {L}')
    signal(a, cset, sgrp)
    a.label(L)

DQ = 0
WO_ORDER = [8, 0, 9, 10, 11, 12, 13, 14, 15, 1, 2, 3, 4, 5, 6, 7]
NFREE = 12
def fysig(a):
    if opt('ssig', 0): arrive(a, 9); sync_wait(a, GRP_H, 9); signal(a, C_FY, sXCD, True)
    else: signal_last(a, 36, 3, C_FY, sXCD)
def wo_unit(u):
    if u == 8: return L_XT
    if u >= 9: return 32768 + (u-9)*8192
    return [L_KVR, 90112, 98304, 106496, 0, 8192, 16384, 24576][u]
WIN = opt('win', 12)
def rot_calc(a):
    RM = opt('rot', 104)
    a(f's_lshr_b32 s{sT}, s{sIDX}, 2')
    if RM == 8: a(f's_lshl_b32 s{sROT}, s{sHL}, 1'); a(f's_add_u32 s{sROT}, s{sROT}, s{sT}'); a(f's_and_b32 s{sROT}, s{sROT}, 7')
    elif RM == 1: a(f's_mov_b32 s{sROT}, 0')
    elif RM >= 200:
        a(f's_and_b32 s{sROT}, s{sXCD}, {6 if RM == 204 else 2}')
        if RM == 202: a(f's_lshl_b32 s{sROT}, s{sROT}, 1')
    elif RM >= 100:
        a(f's_add_u32 s{sT}, s{sT}, s{sHL}'); a(f's_and_b32 s{sT}, s{sT}, 1'); a(f's_mul_i32 s{sT}, s{sT}, {RM-100}')
        a(f's_lshl_b32 s{sROT}, s{sHH}, 2'); a(f's_add_u32 s{sROT}, s{sROT}, s{sXCD}'); a(f's_add_u32 s{sROT}, s{sROT}, s{sT}'); a(f's_and_b32 s{sROT}, s{sROT}, 7')
    else: a(f's_add_u32 s{sROT}, s{sHL}, s{sT}'); a(f's_and_b32 s{sROT}, s{sROT}, {RM-1}'); a(f's_lshl_b32 s{sROT}, s{sROT}, {1 if RM == 4 else 2}')
def dma_setup(a, vd, t0, t1):
    rot_calc(a)
    a(f's_lshl_b32 s{sLB}, s{sW4}, 12')
    a(f'v_lshrrev_b32 v{t0}, 3, v0'); a(f'v_and_b32 v{t1}, 0x70, v{vL16}'); a(f'v_and_b32 v{vd+2}, 0x30, v0')
    a(f'v_xor_b32 v{vd+4}, v{t1}, v{vd+2}')
    a(f's_lshl_b32 s{sT}, s{sW4}, 4'); a(f's_add_u32 s{sT+1}, s{sT}, s{sROW0}')
    a(f'v_add_u32 v{vd+5}, s{sT+1}, v{t0}'); a(f'v_lshl_add_u32 v{vd+4}, v{vd+5}, 10, v{vd+4}')
    a(f'v_xor_b32 v{vd+5}, 64, v{vd+4}'); a(f'v_add_u32 v{vd+5}, {8192-1024}, v{vd+5}')
    a(f'v_and_b32 v{vd+2}, 16, v0'); a(f'v_lshlrev_b32 v{vd+2}, 1, v{vd+2}'); a(f'v_xor_b32 v{vd+2}, v{vd+2}, v{t1}')
    a(f'v_add_u32 v{t0}, s{sT}, v{t0}'); a(f'v_mul_u32_u24 v{t0}, 3072, v{t0}'); a(f's_lshl_b32 s{sT+1}, s{sHG}, 7')
    a(f'v_add3_u32 v{vd+2}, v{vd+2}, v{t0}, s{sT+1}')
    a(f'v_xor_b32 v{t0}, 64, v{vd+2}')
    a(f'v_add_u32 v{vd}, 1024, v{vd+2}'); a(f'v_add_u32 v{vd+1}, 24576, v{t0}'); a(f'v_add_u32 v{vd+3}, 23552, v{t0}')
    if QX: a(f'v_xor_b32 v{vd+6}, {QX*128}, v{vd+2}'); a(f'v_xor_b32 v{vd+7}, {QX*128}, v{vd+3}')
def dma_group(g, vd):
    adv = [f's_add_u32 s{sSX}, s{sROT}, {g}', f's_and_b32 s{sSX}, s{sSX}, 7', f's_lshl_b32 s{sSX}, s{sSX}, 7', f's_mul_i32 s{sSW}, s{sSX}, 1536']
    ld = lambda v, srdr, so, off: f'buffer_load_dwordx4 v{v}, {SR(srdr)}, s{so} offen' + (f' offset:{off}' if off else '') + ' lds'
    return [[f's_add_u32 m0, s{sLB}, {loc(g, "X")}'] + adv + [ld(vd+4, sX, sSX, 0)], [ld(vd+5, sX, sSX, 1024)],
            [f's_add_u32 m0, s{sLB}, {loc(g, "K")}', ld(vd, sWQ, sSW, 0)], [ld(vd+1, sWQ, sSW, 1024)],
            [f's_add_u32 m0, s{sLB}, {loc(g, "Q")}', ld(vd+2, sWQ, sSW, 2048)], [ld(vd+3, sWQ, sSW, 3072)],
            [ld(vd+(6 if QX else 2), sWQ, sSW, 0)], [ld(vd+(7 if QX else 3), sWQ, sSW, 1024)]]
def emit(a, b, thr=None):
    for l in b[:-1]: a(l)
    if thr is not None: a(f's_waitcnt vmcnt({thr})')
    a(b[-1])

sWu, sWo, sTo = sT+3, sT+4, sT+5
def wo_setup(a, vwo, t0, t1):
    a(f'v_and_b32 v{t1}, 0xf0, v{vL16}')
    a(f'v_lshrrev_b32 v{t0}, 4, v0'); a(f'v_lshlrev_b32 v{vwo}, 5, v{t0}'); a(f'v_xor_b32 v{t1}, v{t1}, v{vwo}')
    a(f'v_and_b32 v{vwo}, 128, v{t1}'); a(f'v_mad_u32_u24 v{t1}, v{vwo}, 3, v{t1}')
    a(f'v_lshl_add_u32 v{vwo}, v{t0}, 10, v{t1}'); a(f'v_xor_b32 v{vwo+1}, 512, v{vwo}'); a(f'v_add_u32 v{vwo+1}, 3072, v{vwo+1}')
    a(f's_lshl_b32 s{sTo}, s{sHL}, 7'); a(f's_lshl_b32 s{sWo}, s{sW4}, 13'); a(f's_add_u32 s{sWo}, s{sWo}, s{sTo}')
    a(f's_lshr_b32 s{sTo}, s{sIDX}, 2')
def wo_one(a, vwo, u, ii, thr=None):
    if ii == 0:
        a(f's_add_u32 m0, s{sLW}, {wo_unit(u)}')
        a(f's_add_u32 s{sWu}, s{sTo}, {u & 7}'); a(f's_and_b32 s{sWu}, s{sWu}, 7')
        if u >= 8: a(f's_or_b32 s{sWu}, s{sWu}, 8')
        a(f's_lshl_b32 s{sWu}, s{sWu}, 15'); a(f's_add_u32 s{sWu}, s{sWu}, s{sWo}')
    if thr is not None: a(f's_waitcnt vmcnt({thr})')
    a(f'buffer_load_dwordx4 v{vwo+ii}, {SR(sWO)}, s{sWu} offen' + (' offset:1024' if ii else '') + ' lds')
NG = opt('ng', 16)
def phi_pack(a, acc, n, out, tmp):
    for j in range(0, n, 2): a(f'v_pk_mul_f32 {V(tmp+j,2)}, {V(acc+j,2)}, s[{sL2E}:{sL2E+1}]')
    for j in range(n):
        a(f'v_exp_f32_e64 v{tmp+j}, v{tmp+j} clamp')
        a(f'v_max_f32 v{acc+j}, {F(1e-6)}, v{acc+j}')
    for j in range(0, n, 2): a(f'v_pk_add_f32 {V(tmp+j,2)}, {V(tmp+j,2)}, {V(acc+j,2)}')
    for j in range(0, n, 2): a(f'v_cvt_pk_bf16_f32 v{out+j//2}, v{tmp+j}, v{tmp+j+1}')
def sincos4(a, base, step, r0, c, s):
    for r in range(4):
        k = r0 + r
        if k == 0: a(f'v_mov_b32 v{s+r}, v{base}')
        else: a(f'v_fmamk_f32 v{s+r}, v{step}, {F(float(k))}, v{base}')
    for r in range(4): a(f'v_cos_f32 v{c+r}, v{s+r}')
    for r in range(4): a(f'v_sin_f32 v{s+r}, v{s+r}')
def mat6(a, dst, c, s):
    a(f'v_cvt_pk_bf16_f32 v{dst+2}, v{c}, v{c+1}'); a(f'v_cvt_pk_bf16_f32 v{dst+3}, v{c+2}, v{c+3}')
    a(f'v_cvt_pk_bf16_f32 v{dst+4}, v{s}, v{s+1}'); a(f'v_cvt_pk_bf16_f32 v{dst+5}, v{s+2}, v{s+3}')
    a(f'v_xor_b32 v{dst+0}, 0x80008000, v{dst+4}'); a(f'v_xor_b32 v{dst+1}, 0x80008000, v{dst+5}')
def cmul_pack(a, re, im, tc, ts, out, tmp, conj_out=False):
    for j in (0, 2):
        a(f'v_pk_mul_f32 {V(tmp+j,2)}, {V(re+j,2)}, {V(tc+j,2)}')
        a(f'v_pk_mul_f32 {V(tmp+4+j,2)}, {V(re+j,2)}, {V(ts+j,2)}')
    for j in (0, 2):
        a(f'v_pk_fma_f32 {V(tmp+j,2)}, {V(im+j,2)}, {V(ts+j,2)}, {V(tmp+j,2)} neg_lo:[1,0,0] neg_hi:[1,0,0]')
        a(f'v_pk_fma_f32 {V(tmp+4+j,2)}, {V(im+j,2)}, {V(tc+j,2)}, {V(tmp+4+j,2)}')
    n = '-' if conj_out else ''
    a(f'v_cvt_pk_bf16_f32 v{out}, v{tmp}, v{tmp+1}'); a(f'v_cvt_pk_bf16_f32 v{out+1}, v{tmp+2}, v{tmp+3}')
    a(f'v_cvt_pk_bf16_f32 v{out+2}, {n}v{tmp+4}, {n}v{tmp+5}'); a(f'v_cvt_pk_bf16_f32 v{out+3}, {n}v{tmp+6}, {n}v{tmp+7}')

TF=10; WF=74; ACA=138; ACB=154; PQ=170; KVF=186; YL=218; FT=234
HP = TF+32
def fin_table(a, hook=None, P=None, D=None):
    if P is None: P = YL; D = FT
    step = D+4; base = D+5; t0 = D+6; t1 = D+7
    a(f's_lshl_b32 s{sT}, s{sHL}, 6'); a(f's_lshl_b32 s{sT+1}, s{sW4}, 4'); a(f's_add_u32 s{sT}, s{sT}, s{sT+1}')
    a(f'v_and_b32 v{t0}, 15, v0'); a(f'v_add_u32 v{t0}, s{sT}, v{t0}'); a(f'v_cvt_f32_u32 v{step}, v{t0}'); a(f'v_mul_f32 v{step}, {F(1/512)}, v{step}')
    a(f'v_lshrrev_b32 v{t1}, 4, v0'); a(f'v_lshl_add_u32 v{t1}, v{t1}, 3, s{sKH}')
    a(f'v_cvt_f32_u32 v{base}, v{t1}'); a(f'v_mul_f32 v{base}, v{base}, v{step}')
    a(f'v_mul_f32 v{D+2}, {F(32.0)}, v{step}'); a(f'v_add_f32 v{step}, v{step}, v{step}')
    C = P; free = P+8
    sincos4(a, base, step, 0, C, C+4)
    a(f'v_cos_f32 v{D}, v{D+2}'); a(f'v_sin_f32 v{D+2}, v{D+2}')
    a(f'v_mov_b32 v{D+1}, v{D}'); a(f'v_mov_b32 v{D+3}, v{D+2}')
    hi = 0
    for n in range(8):
        S_ = C+4
        for j in range(4): a(f'v_cvt_pk_bf16_f32 v{TF+4*n+j}, v{C+j}, v{S_+j}')
        hook(hi); hi += 1
        if n < 7:
            for j in (0, 2, 4, 6): a(f'v_pk_mul_f32 {V(free+j,2)}, {V(C+j,2)}, {V(D,2)}')
            hook(hi); hi += 1
            for j in (0, 2):
                a(f'v_pk_fma_f32 {V(free+j,2)}, {V(S_+j,2)}, {V(D+2,2)}, {V(free+j,2)} neg_lo:[1,0,0] neg_hi:[1,0,0]')
                a(f'v_pk_fma_f32 {V(free+4+j,2)}, {V(C+j,2)}, {V(D+2,2)}, {V(free+4+j,2)}')
            C, free = free, C
            hook(hi); hi += 1
    a(f'v_lshlrev_b32 v{t0}, 31, v{t0}'); a(f'v_xor_b32 v{t0}, 0xbf003f00, v{t0}')
    a(f'v_cmp_eq_u32 vcc, 0, v{t1}'); a(f'v_cndmask_b32 v{TF}, v{TF}, v{t0}, vcc')

def srdc(a, d):
    n = {sX:0x200000, sWQ:512*3072, sWR:2048*514, sWI:2048*514, sWS:WS_SIZE, sGW:1024, sWO:512*1024, sOUT:0x200000}[d]
    a(f's_mov_b32 s{d+2}, {n}'); a(f's_mov_b32 s{d+3}, 0x20000')
def ids_gemm(a):
    a(f's_and_b32 s{sHH}, s2, 1'); a(f's_and_b32 s{sHL}, s{sIDX}, 3')
    if opt('hx', 0): a(f's_xor_b32 s{sHL}, s{sHL}, {opt("hx", 0)}')
    if opt('hhx', 0): a(f's_xor_b32 s{sHH}, s{sHH}, 1')
    a(f's_lshl_b32 s{sHG}, s{sHH}, 2'); a(f's_add_u32 s{sHG}, s{sHG}, s{sHL}')
    a(f's_and_b32 s{sROW0}, s2, 6'); a(f's_lshl_b32 s{sROW0}, s{sROW0}, 7')
    a(f's_and_b32 s{sT}, s{sIDX}, 12'); a(f's_lshl_b32 s{sT}, s{sT}, 4'); a(f's_add_u32 s{sROW0}, s{sROW0}, s{sT}')
    a(f's_and_b32 s{sT}, s{sIDX}, 16'); a(f's_lshl_b32 s{sT}, s{sT}, 6'); a(f's_add_u32 s{sROW0}, s{sROW0}, s{sT}')
def late_common(a):
    for d in (sWS, sWO, sOUT): srdc(a, d)
    a(f's_lshr_b32 s{sAT}, s{sROW0}, 5'); a(f's_add_u32 s{sAT}, s{sAT}, s{sHH}'); a(f's_lshr_b32 s{sKH}, s{sWV}, 2')
    a(f's_add_u32 s{sC}, s{sWS}, {WS_C}'); a(f's_addc_u32 s{sC+1}, s{sWS+1}, 0')
    a(f's_mul_i32 s{sT}, s{sP}, {NREP}'); a(f's_lshr_b32 s{sT}, s{sT}, 8'); a(f's_lshl_b32 s{sT}, s{sT}, 11'); a(f's_lshl_b32 s{sT+1}, s{sW4}, 9'); a(f's_add_u32 s{sT}, s{sT}, s{sT+1}')
    a(f's_add_u32 s{sPB}, s{sC}, s{sT}'); a(f's_addc_u32 s{sPB+1}, s{sC+1}, 0')

def build():
    a = Asm(); ST = Stamps(a); ST('start')
    a('s_cmp_ge_u32 s2, 256'); a(f's_cbranch_scc1 L_done')
    for d, off in ((sX,0),(sWQ,32),(sWR,8),(sWI,16),(sWS,72),(sGW,48),(sWO,40),(sOUT,56),(sDBG,64)):
        a(f's_load_dwordx2 s[{d}:{d+1}], s[0:1], {off}')
    a(f'v_readfirstlane_b32 s{sWV}, v0'); a('v_and_b32 v0, 63, v0')
    a(f's_and_b32 s{sXCD}, s2, 7'); a(f's_lshr_b32 s{sIDX}, s2, 3')
    a('s_getpc_b64 s[4:5]')
    a(f's_lshl_b32 s{sT}, s{sIDX}, 10'); a(f's_lshl_b32 s{sT+1}, s{sWV}, 1'); a(f's_add_u32 s{sT}, s{sT}, s{sT+1}')
    CP = opt('cp', 3)
    if CP in (1, 2): a(f's_load_dword s{sU}, s[4:5], s{sT}')
    if CP == 2: a(f's_add_u32 s{sT}, s{sT}, 64'); a(f's_load_dword s{sU}, s[4:5], s{sT}')
    if CP == 3:
        a(f'v_mov_b32 v{vS+5}, s{sT}'); a('s_mov_b64 exec, 1'); a(f'global_load_dword v{vS+5}, v{vS+5}, s[4:5]'); a('s_mov_b64 exec, -1')
    if CP == 4:
        a(f's_lshl_b32 s{sT+1}, s{sWV}, 4'); a(f'v_lshl_add_u32 v{vS+5}, v0, 7, s{sT+1}'); a(f'v_writelane_b32 v{vS+5}, s{sT}, 8')
        a('s_mov_b64 exec, 0x1ff'); a(f'global_load_dword v{vS+5}, v{vS+5}, s[4:5]'); a('s_mov_b64 exec, -1')
    a(f's_lshr_b32 s{sWV}, s{sWV}, 6'); a(f'v_lshlrev_b32 v{vL16}, 4, v0')
    a(f's_and_b32 s{sW4}, s{sWV}, 3'); a(f's_lshl_b32 s{sLW}, s{sW4}, 11')
    a(f'v_mov_b32 v{vSY}, {L_SY}'); a(f'v_mov_b32 v{vS}, 0'); a(f'v_mov_b32 v{vS+1}, 0')
    a(f'v_lshl_add_u32 v{vPA}, s{sWV}, 2, v{vSY}')
    a(f'ds_write_b32 v{vPA}, v{vS}'); a(f'ds_write_b64 v{vSY}, {V(vS,2)} offset:32')
    srdc(a, sX)
    a(f's_lshl_b32 s{sP}, s{sXCD}, 5'); a(f's_add_u32 s{sP}, s{sP}, s{sIDX}')
    a(f's_cmp_ge_u32 s{sWV}, 4'); a('s_cbranch_scc1 L_G0')
    names0 = list(ST.names)
    H = gen_H0(a, ST); nH = list(ST.names)
    a('s_branch L_H1')
    a.label('L_G0'); a.hist = []; ST.names = list(names0)
    G = gen_G0(a, ST); nG = list(ST.names)
    a('s_branch L_G1')
    a.label('L_H1'); a.hist = []; ST.names = nH
    hiH = gen_H(a, ST, H); nH = list(ST.names)
    a('s_branch L_FIN')
    a.label('L_G1'); a.hist = []; ST.names = nG
    hiG = gen_G(a, ST, G)
    while len(ST.names) < len(nH): ST.names.append('-')
    a.label('L_FIN'); a.hist = []
    gen_FIN(a, ST)
    a.label('L_done'); a('s_endpgm')
    gen_special(a)
    if STAMP: print('H:', nH, '\nG:', ST.names, file=sys.stderr)
    print('instrs', a.count, 'nops', a.nops, 'vgprs', hiH, hiG, file=sys.stderr)
    return a

SP = {}
NT = 'nt ' if opt('wnt', 1) else ''
def rloads(a):
    a(f'buffer_load_dwordx4 v{vL16}, {SR(sX)}, s{sT+6} offen lds')
    a(f'buffer_load_dwordx4 v{vL16}, {SR(sX)}, s{sT+7} offen offset:1024 lds')
def wloads(a, vWs, e0, e1, e3):
    if opt('rpos', 0): a(f's_add_u32 m0, s{sLW}, {L_P1X}'); rloads(a)
    a(f's_add_u32 m0, s{sLW}, {L_WRAW}'); a(f'buffer_load_dwordx4 v{vWs}, {SR(sWR)}, s{sT+3} offen {NT}lds')
    a(f's_add_u32 m0, s{sLW}, {L_WRAW+1024}'); a(f'buffer_load_dwordx4 v{vWs}, {SR(sWI)}, s{sT+3} offen {NT}lds')
    a('s_mov_b64 exec, 0xffff')
    a(f'buffer_load_ushort v{e0}, v{e3}, {SR(sWR)}, 0 offen')
    a(f'buffer_load_ushort v{e1}, v{e3}, {SR(sWI)}, 0 offen')
    a('s_mov_b64 exec, -1')
def gen_H0(a, ST):
    R = Regs(VBASE)
    t0, t1, vWs = R.alloc(), R.alloc(), R.alloc()
    srdc(a, sWR); srdc(a, sWI)
    if opt('noh', 0): a(f's_mov_b32 s{sWR+2}, 0'); a(f's_mov_b32 s{sWI+2}, 0'); a(f's_mov_b32 s{sX+2}, 0')
    a(f's_lshl_b32 s{sT}, s{sXCD}, 17'); a(f's_lshl_b32 s{sT+1}, s{sW4}, 15'); a(f's_add_u32 s{sT}, s{sT}, s{sT+1}')
    a(f's_lshl_b32 s{sT+1}, s{sIDX}, 10'); a(f's_add_u32 s{sT}, s{sT}, s{sT+1}'); a(f's_add_u32 s{sT+1}, s{sT}, {1024*1024-1024}')
    a(f'v_lshrrev_b32 v{t0}, 4, v0'); a(f'v_mul_u32_u24 v{vWs}, {64*514-256}, v{t0}'); a(f'v_add_u32 v{vWs}, v{vWs}, v{vL16}')
    a(f's_and_b32 s{sT+2}, s{sP}, 63'); a(f's_and_b32 s{sT+3}, s{sP}, 0xc0'); a(f's_lshl_b32 s{sT+3}, s{sT+3}, 2'); a(f's_add_u32 s{sT+2}, s{sT+2}, s{sT+3}')
    a(f's_and_b32 s{sT+3}, s{sW4}, 1'); a(f's_lshl_b32 s{sT+3}, s{sT+3}, 10'); a(f's_add_u32 s{sT+2}, s{sT+2}, s{sT+3}')
    a(f's_mul_i32 s{sT+3}, s{sT+2}, 514')
    a(f's_and_b32 s{sT+4}, s{sW4}, 2'); a(f's_lshl_b32 s{sT+4}, s{sT+4}, 7'); a(f's_add_u32 s{sT+3}, s{sT+3}, s{sT+4}')
    e0, e1, e2, e3 = [R.alloc() for _ in range(4)]
    a(f'v_and_b32 v{t1}, 3, v0'); a(f'v_lshl_add_u32 v{e0}, v{t1}, 6, s{sT+2}')
    a(f'v_sub_u32 v{e1}, 0x800, v{e0}'); a(f'v_and_b32 v{e1}, 0x7ff, v{e1}')
    a(f'v_and_b32 v{e2}, 8, v0'); a(f'v_cmp_eq_u32 vcc, 0, v{e2}'); a(f'v_and_b32 v{e2}, 4, v0'); a(f'v_lshlrev_b32 v{e2}, 7, v{e2}')
    a(f'v_cndmask_b32 v{e0}, v{e1}, v{e0}, vcc'); a(f'v_mul_u32_u24 v{e0}, 514, v{e0}'); a(f'v_add_u32 v{e3}, v{e0}, v{e2}')
    srdc(a, sGW)
    a(f's_lshr_b32 s{sT+5}, s{sLW}, 2'); a(f's_and_b32 s{sT+4}, s{sT+5}, 512')
    a(f's_add_u32 m0, s{sLW}, {L_P1X}')
    a('s_waitcnt lgkmcnt(0)'); ST('karg')
    a(f's_mov_b32 s{sT+6}, s{sT}'); a(f's_mov_b32 s{sT+7}, s{sT+1}')
    a(f's_add_u32 s{sU}, s{sIDX}, s{sLW}'); a(f's_cmp_eq_u32 s{sU}, {28+3*2048}'); a('s_cbranch_scc1 L_sp5'); a.label('L_sp5r')
    if opt('rpos', 0) == 0: rloads(a)
    a(f's_add_u32 m0, s{sT+5}, {L_GW}'); a('s_mov_b32 exec_hi, 0')
    a(f'buffer_load_dwordx4 v{vL16}, {SR(sGW)}, s{sT+4} offen lds'); a('s_mov_b32 exec_hi, -1')
    if opt('wpos', 2) == 0: wloads(a, vWs, e0, e1, e3)
    return R, t0, t1, vWs, e0, e1, e2, e3

def gen_H(a, ST, H):
    R, t0, t1, vWs, e0, e1, e2, e3 = H
    vl15, fl15, fg4 = R.alloc(), R.alloc(), R.alloc()
    a(f'v_and_b32 v{vl15}, 15, v0'); a(f'v_cvt_f32_u32 v{fl15}, v{vl15}')
    a(f'v_lshlrev_b32 v{fg4}, 2, v{t0}'); a(f'v_cvt_f32_u32 v{fg4}, v{fg4}')
    F16T = R.alloc(6); tc = R.alloc(8); ts = R.alloc(8); base = R.alloc(); step = R.alloc()
    a(f'v_mul_f32 v{step}, {F(1/16)}, v{fl15}'); a(f'v_mul_f32 v{base}, v{fg4}, v{step}')
    sincos4(a, base, step, 0, tc, ts); mat6(a, F16T, tc, ts)
    F32T = R.alloc(24); m = R.alloc(); mo = R.alloc()
    a(f'v_mul_f32 v{step}, {F(1/32)}, v{fl15}'); a(f'v_mul_f32 v{base}, v{fg4}, v{step}')
    sincos4(a, base, step, 0, tc, ts); mat6(a, F32T, tc, ts)
    a(f'v_and_b32 v{mo}, 1, v{vl15}'); a(f'v_sub_u32 v{mo}, 0, v{mo}'); a(f'v_and_b32 v{mo}, 0x80008000, v{mo}')
    for j in range(6):
        a(f'v_xor_b32 v{F32T+6+j}, v{mo}, v{F32T+j}'); a(f'v_xor_b32 v{F32T+12+j}, 0x80000000, v{F32T+j}'); a(f'v_xor_b32 v{F32T+18+j}, 0x80000000, v{F32T+6+j}')
    a(f'v_mul_f32 v{step}, {F(-1/512)}, v{fl15}'); a(f'v_mul_f32 v{base}, v{fg4}, v{step}')
    sincos4(a, base, step, 0, tc, ts); sincos4(a, base, step, 16, tc+4, ts+4)
    if opt('wpos', 2) == 1: wloads(a, vWs, e0, e1, e3)
    aT = R.alloc(); aZ = R.alloc(); aO = R.alloc(4); stp = R.alloc(); aWt = R.alloc(); aWp = R.alloc()
    a(f'v_lshrrev_b32 v{t0}, 2, v0'); a(f'v_lshlrev_b32 v{aWt}, 3, v{t1}'); a(f'v_lshl_add_u32 v{aT}, v{t0}, 6, v{aWt}')
    a(f's_add_u32 s{sT}, s{sLW}, {L_P1X}'); a(f'v_add_u32 v{aT}, s{sT}, v{aT}')
    a(f'v_bfe_u32 v{m}, v0, 2, 1'); a(f'v_lshl_add_u32 v{aWt}, v{m}, 10, v{aWt}')
    a(f'v_bfe_u32 v{m}, v0, 3, 1'); a(f'v_lshl_add_u32 v{aWt}, v{m}, 8, v{aWt}')
    a(f'v_lshrrev_b32 v{m}, 4, v0'); a(f'v_lshl_add_u32 v{aWt}, v{m}, 5, v{aWt}')
    a(f's_add_u32 s{sT}, s{sLW}, {L_WRAW}'); a(f'v_add_u32 v{aWt}, s{sT}, v{aWt}')
    a(f's_and_b32 s{sT}, s{sW4}, 1'); a(f's_mul_i32 s{sT+1}, s{sT}, {264*4}'); a(f's_add_u32 s{sT+1}, s{sT+1}, {L_PL+520*4}')
    aA_, aB_ = R.alloc(), R.alloc()
    a(f'v_mul_u32_u24 v{aA_}, {PS*4}, v{t1}')
    a(f's_lshl_b32 s{sT+2}, s{sT}, 2'); a(f's_add_u32 s{sT+2}, s{sT+2}, {L_PL+1040*4}'); a(f'v_add_u32 v{aB_}, s{sT+2}, v{aA_}')
    a(f'v_add_u32 v{aA_}, s{sT+1}, v{aA_}')
    a(f's_and_b32 s{sT+2}, s{sW4}, 2'); a(f's_lshl_b32 s{sT+2}, s{sT+2}, 8'); a(f's_add_u32 s{sT+1}, s{sT+1}, s{sT+2}'); a(f'v_lshl_add_u32 v{aWp}, v0, 2, s{sT+1}')
    a(f'v_lshlrev_b32 v{m}, 4, v{m}'); a(f'v_lshl_add_u32 v{aZ}, v{vl15}, 6, v{m}')
    a(f's_mul_i32 s{sT}, s{sW4}, {PS*4}'); a(f's_add_u32 s{sT}, s{sT}, {L_PL}'); a(f'v_add_u32 v{aZ}, s{sT}, v{aZ}')
    a(f's_lshl_b32 s{sT}, s{sW4}, 6'); a(f'v_add_u32 v{t0}, s{sT}, v{t0}')
    a(f'v_cmp_eq_u32 vcc, 1, v{t1}')
    a(f'v_sub_u32 v{aO}, 512, v{t0}'); a(f'v_mov_b32 v{stp}, 64'); a(f'v_mov_b32 v{aO+1}, -64')
    a(f'v_cndmask_b32 v{aO}, v{t0}, v{aO}, vcc'); a(f'v_cndmask_b32 v{stp}, v{stp}, v{aO+1}, vcc')
    a(f'v_cmp_eq_u32 vcc, 2, v{t1}'); a(f'v_add_u32 v{aO+1}, 520, v{t0}'); a(f'v_add_u32 v{aO+2}, 784, v{t0}'); a(f'v_cndmask_b32 v{aO}, v{aO}, v{aO+1}, vcc')
    a(f'v_cmp_eq_u32 vcc, 3, v{t1}'); a(f'v_mov_b32 v{t0}, {L_PL+1024}'); a(f's_mov_b32 s{sT}, {L_PL}'); a(f'v_cndmask_b32 v{aO}, v{aO}, v{aO+2}, vcc')
    a(f'v_lshl_add_u32 v{aO}, v{aO}, 2, s{sT}')
    for j in range(1,4): a(f'v_add_u32 v{aO+j}, v{aO+j-1}, v{stp}')
    a(f'v_cmp_eq_u32 vcc, {L_PL+2048}, v{aO}'); a(f'v_and_b32 v{t1}, 1, v0'); a(f's_mov_b32 s{sT}, {L_PL+1040*4}'); a(f'v_cndmask_b32 v{aO}, v{aO}, v{t0}, vcc')
    a(f'v_lshl_add_u32 v{stp}, v{t1}, 2, s{sT}')
    if opt('wpos', 2) == 2: wloads(a, vWs, e0, e1, e3)
    ids_gemm(a); late_common(a); rot_calc(a)
    X = R.alloc(8); Dr = R.alloc(8); Di = R.alloc(8); tmp = R.alloc(8); IN = R.alloc(32); P = IN; Wt = IN+16; GX = IN+24
    a('s_waitcnt lgkmcnt(0)')
    dp = 'row_mask:0xf bank_mask:0xf'
    def p1():
        ST('const'); a(f's_waitcnt vmcnt({4 if opt("wpos", 2) < 3 else 0})'); ST('rows')
        for t in range(2):
            for rho in range(2): a(f'ds_read_b64_tr_b16 {V(X+t*4+rho*2,2)}, v{aT} offset:{rho*1024+t*32}')
        for t in range(2):
            a(LG(2-2*t))
            a(f'{M16} {V(Dr+4*t,4)}, {V(X+4*t,4)}, {V(F16T+2,4)}, 0'); a(f'{M16} {V(Di+4*t,4)}, {V(X+4*t,4)}, {V(F16T,4)}, 0')
        for t in range(2): cmul_pack(a, Dr+4*t, Di+4*t, tc+4*t, ts+4*t, X+4*t, tmp)
        for t in range(2):
            for u in range(2):
                T = F32T + (u*2+t)*6
                a(f'{M16} {V(Dr+4*u,4)}, {V(X+4*t,4)}, {V(T+2,4)}, {"0" if t==0 else V(Dr+4*u,4)}')
                a(f'{M16} {V(Di+4*u,4)}, {V(X+4*t,4)}, {V(T,4)}, {"0" if t==0 else V(Di+4*u,4)}')
        a('s_mov_b64 exec, 1')
        a(f'v_add_f32 v{tmp}, v{Dr}, v{Di+4}'); a(f'v_sub_f32 v{Dr}, v{Dr}, v{Di+4}'); a(f'v_sub_f32 v{Di+4}, v{Di}, v{Dr+4}'); a(f'v_add_f32 v{Di}, v{Di}, v{Dr+4}'); a(f'v_mov_b32 v{Dr+4}, v{tmp}')
        a('s_mov_b64 exec, -1')
        for u in range(2):
            for r in range(4): a(f'v_cvt_pk_bf16_f32 v{P+4*u+r}, v{Dr+4*u+r}, v{Di+4*u+r}')
            a(f'ds_write_b128 v{aZ}, {V(P+4*u,4)} offset:{u*1024}')
        a(f's_add_u32 s{sU}, s{sIDX}, s{sLW}'); a(f's_cmp_eq_u32 s{sU}, {28+3*2048}'); a('s_cbranch_scc1 L_sp6'); a.label('L_sp6r')
        ST('p1')
    P1I = opt('p1i', -1)
    if P1I < 0: p1()
    if opt('wpos', 2) == 3: wloads(a, vWs, e0, e1, e3)
    def wprep():
        a('s_waitcnt vmcnt(0)'); ST('_wv')
        for cg in range(2):
            for hf in range(2): a(f'ds_read_b64_tr_b16 {V(Wt+4*cg+2*hf,2)}, v{aWt} offset:{cg*128+hf*512}')
        a(f'v_lshlrev_b32 v{e0}, 16, v{e0}'); a(f'v_lshlrev_b32 v{e1}, 16, v{e1}')
        a(f'v_mul_f32 v{e0}, 0x3e800000, v{e0}'); a(f'v_mul_f32 v{e1}, 0x3e800000, v{e1}')
        a(f'v_add_f32_dpp v{e2}, v{e0}, v{e0} row_ror:8 {dp}'); a(f'v_subrev_f32_dpp v{e3}, v{e1}, v{e1} row_ror:8 {dp}')
        a(f'v_add_f32_dpp v{e0}, v{e2}, v{e2} row_ror:12 {dp}'); a(f'v_add_f32_dpp v{e1}, v{e3}, v{e3} row_ror:12 {dp}')
        a(f'v_subrev_f32_dpp v{tmp}, v{e2}, v{e2} row_ror:12 {dp}'); a(f'v_subrev_f32_dpp v{tmp+1}, v{e3}, v{e3} row_ror:12 {dp}')
        a(f'v_cvt_pk_bf16_f32 v{e0}, v{e0}, v{e1}'); a(f'v_cvt_pk_bf16_f32 v{e1}, v{tmp}, v{tmp+1}')
        a('s_waitcnt lgkmcnt(0)')
        for r in range(4): a(f'ds_write2st64_b32 v{aWp}, v{Wt+r}, v{Wt+4+r} offset0:{r*17} offset1:{r*17+1}')
        a('s_mov_b64 exec, 15')
        a(f'ds_write_b32 v{aA_}, v{e0}'); a(f'ds_write_b32 v{aB_}, v{e1}')
        a('s_mov_b64 exec, -1')
    R.free(vWs)
    if P1I < 0:
        for r, n in ((F16T,6),(aT,1),(aZ,1)): R.free(r, n)
    wc = R.alloc(8); wsn = R.alloc(8)
    B1 = R.alloc(32); tw2c = R.alloc(8); tw2s = R.alloc(8); F64 = R.alloc(24); tw1c = tc; tw1s = ts
    c = Dr; s = Dr+4; fk = R.alloc(); m2 = R.alloc()
    vA, aW, aWr, aE, aI, aO1, aO2, aOr, vY, aGx, aGw, gacc, aI2 = [R.alloc() for _ in range(13)]
    r = Rec()
    sR, sI = sT+4, sT+5
    a(f's_lshl_b32 s{sT}, s{sHH}, 13'); a(f's_and_b32 s{sT+1}, s{sW4}, 2'); a(f's_lshl_b32 s{sT+1}, s{sT+1}, 11'); a(f's_add_u32 s{sT}, s{sT}, s{sT+1}')
    a(f's_and_b32 s{sT+1}, s{sW4}, 1'); a(f's_lshl_b32 s{sT+1}, s{sT+1}, 10'); a(f's_add_u32 s{sT}, s{sT}, s{sT+1}')
    a(f'v_add_u32 v{aGx}, s{sT}, v{vL16}')
    a(f'v_lshrrev_b32 v{t0}, 4, v{aGx}'); a(f'v_xor_b32 v{t0}, v{t0}, v{aGx}'); a(f'v_and_b32 v{t0}, 0x70, v{t0}'); a(f's_lshl_b32 s{sT}, s{sROT}, 7'); a(f's_add_u32 s{sT}, s{sT}, {L_GW}'); a(f'v_add_u32 v{aGw}, s{sT}, v{t0}')
    a(f'v_mov_b32 v{gacc}, 0')
    r(f'v_lshrrev_b32 v{t0}, 2, v0'); r(f'v_and_b32 v{t1}, 3, v0')
    r(f'v_mul_u32_u24 v{vA}, {ZSTRIDE}, v{t0}'); r(f'v_lshl_add_u32 v{vA}, v{t1}, 4, v{vA}')
    r(f'v_lshlrev_b32 v{aW}, 4, v{t0}'); r(f'v_and_b32 v{t0}, 1, v{t1}'); r(f'v_lshl_add_u32 v{aW}, v{t0}, 8, v{aW}')
    r(f'v_lshrrev_b32 v{t0}, 1, v{t1}'); r(f'v_lshl_add_u32 v{aW}, v{t0}, 13, v{aW}')
    r(f's_lshl_b32 s{sT}, s{sW4}, 10'); r(f's_add_u32 s{sT+1}, s{sT}, {L_IN}'); r(f'v_add_u32 v{aW}, s{sT+1}, v{aW}')
    r([f's_cmp_eq_u32 s{sP}, 0', f's_mov_b32 s{sT+1}, {L_EX}', f's_cmov_b32 s{sT+1}, {L_IN+8192}', f'v_add_u32 v{aI2}, s{sT+1}, v{vL16}']); r(f'v_add_u32 v{aE}, s{sT}, v{aI2}')
    r(f'v_add_u32 v{aI}, {L_IN}, v{vL16}')
    r(f'v_lshrrev_b32 v{t0}, 4, v0'); r(f'v_lshlrev_b32 v{aWr}, 10, v{t0}'); r(f'v_lshl_add_u32 v{aWr}, v{vl15}, 4, v{aWr}')
    r(f's_and_b32 s{sT}, s{sW4}, 1'); r(f's_lshl_b32 s{sT}, s{sT}, 12'); r(f's_lshr_b32 s{sT+1}, s{sW4}, 1'); r(f's_lshl_b32 s{sT+1}, s{sT+1}, 9')
    r(f's_add_u32 s{sT}, s{sT}, s{sT+1}'); r(f's_add_u32 s{sT}, s{sT}, {L_IN+8192}'); r(f'v_add_u32 v{aWr}, s{sT}, v{aWr}')
    r(f'v_and_b32 v{t1}, 7, v0'); r(f'v_xor_b32 v{t0}, v{t0}, v{t1}'); r(f'v_lshlrev_b32 v{t0}, 4, v{t0}')
    r(f'v_lshl_add_u32 v{aO1}, v{vl15}, 7, v{t0}'); r(f's_add_u32 s{sT}, s{sLW}, {L_OT}'); r(f'v_add_u32 v{aO1}, s{sT}, v{aO1}'); r(f'v_xor_b32 v{aO2}, 64, v{aO1}')
    r(f'v_lshrrev_b32 v{t0}, 3, v0'); r(f'v_xor_b32 v{aOr}, v{t1}, v{t0}'); r(f'v_lshlrev_b32 v{aOr}, 4, v{aOr}'); r(f'v_lshl_add_u32 v{aOr}, v{t0}, 7, v{aOr}'); r(f'v_add_u32 v{aOr}, s{sT}, v{aOr}')
    r(f'v_mul_u32_u24 v{t0}, {YA}, v{vl15 if opt("yd", 0) else t0}'); r([f'v_lshrrev_b32 v{t1}, 4, v0' if opt('yd', 0) else 's_nop 0', f'v_lshl_add_u32 v{vY}, v{t1}, 4, v{t0}'])
    r(f's_lshl_b32 s{sT}, s{sW4}, 4'); r(f'v_add_u32 v{t0}, s{sT}, v{vl15}'); r(f'v_cvt_f32_u32 v{fk}, v{t0}')
    r(f'v_cvt_f32_u32 v{t0}, s{sT}'); r(f'v_add_f32 v{t0}, v{t0}, v{fg4}')
    for t in range(2):
        if t == 0: r(f'v_mul_f32 v{step}, {F(-1/2048)}, v{fl15}')
        else: r(f'v_add_f32 v{step}, {F(-16/2048)}, v{step}')
        r(f'v_mul_f32 v{base}, v{t0}, v{step}')
        sincos4(r, base, step, 0, tw2c+4*t, tw2s+4*t)
    r(f'v_mul_f32 v{step}, {F(-1/64)}, v{fk}')
    r(f'v_lshrrev_b32 v{t0}, 5, v0'); r(f'v_lshlrev_b32 v{t0}, 2, v{t0}'); r(f'v_cvt_f32_u32 v{t0}, v{t0}')
    r(f'v_bfe_u32 v{t1}, v0, 4, 1')
    r(f'v_xor_b32 v{m}, v{t1}, v0'); r(f'v_lshlrev_b32 v{m}, 31, v{m}'); r(f'v_xor_b32 v{base}, {F(-0.125)}, v{m}')
    r(f'v_lshlrev_b32 v{m}, 31, v{t1}'); r(f'v_fmac_f32 v{base}, v{t0}, v{step}')
    r(f's_mov_b32 s{sSC}, {F(math.sqrt(0.5))}'); r(f's_mov_b32 s{sSC+1}, {F(math.sqrt(0.5))}')
    for k in range(2):
        sincos4(r, base, step, 8*k, c, s)
        for i in range(4):
            r(f'v_cvt_pk_bf16_f32 v{B1+k*8+i}, v{c+i}, -v{s+i}'); r(f'v_cvt_pk_bf16_f32 v{B1+k*8+4+i}, v{s+i}, v{c+i}')
        for i in range(8): r(f'v_xor_b32 v{B1+k*8+i}, v{m}, v{B1+k*8+i}')
    r('s_mov_b32 s4, 0xaaaaaaaa'); r('s_mov_b32 s5, 0xaaaaaaaa')
    r(f'v_bfe_i32 v{m2}, v0, 1, 1'); r(f'v_and_b32 v{m2}, 0x80008000, v{m2}'); r(f'v_xor_b32 v{m}, v{m2}, v{mo}')
    for k in range(2):
        for i in range(4):
            re_, im_ = B1+k*8+i, B1+k*8+4+i
            r(f'v_cndmask_b32 v{re_+16}, v{re_}, v{im_}, s[4:5]'); r(f'v_cndmask_b32 v{im_+16}, v{im_}, v{re_}, s[4:5]')
            r(f'v_xor_b32 v{re_+16}, v{m2}, v{re_+16}'); r(f'v_xor_b32 v{im_+16}, v{m}, v{im_+16}')
    r(f'v_mul_f32 v{step}, {F(-1/2048)}, v{fk}'); r(f'v_mul_f32 v{base}, v{fg4}, v{step}')
    sincos4(r, base, step, 0, tw1c, tw1s); sincos4(r, base, step, 16, tw1c+4, tw1s+4)
    for j in range(0, 8, 2):
        r(f'v_pk_mul_f32 {V(tw1c+j,2)}, {V(tw1c+j,2)}, s[{sSC}:{sSC+1}]'); r(f'v_pk_mul_f32 {V(tw1s+j,2)}, {V(tw1s+j,2)}, s[{sSC}:{sSC+1}]')
    r(f'v_mul_f32 v{step}, {F(1/64)}, v{fk}'); r(f'v_mul_f32 v{base}, v{fg4}, v{step}')
    for k in range(2):
        sincos4(r, base, step, 16*k, c, s); mat6(r, F64+6*k, c, s)
    for j in range(12): r(f'v_xor_b32 v{F64+12+j}, v{mo}, v{F64+j}')
    pend = list(r.l)
    def fill(n):
        while n > 0 and pend:
            x = pend.pop(0)
            for y in (x if isinstance(x, list) else [x]): a(y)
            n -= 1
    print('H const entries', len(pend), file=sys.stderr)
    def readout():
        for j in range(4):
            a(f'ds_read2st64_b32 {V(P+4*j,2)}, v{aO+j} offset0:0 offset1:17'); a(f'ds_read2st64_b32 {V(P+4*j+2,2)}, v{aO+j} offset0:34 offset1:51')
        a(f'ds_read2st64_b32 {V(Wt,2)}, v{stp} offset0:0 offset1:17'); a(f'ds_read2st64_b32 {V(Wt+2,2)}, v{stp} offset0:34 offset1:51')
        a(f's_mul_i32 s{sT}, s{sP}, {ZSTRIDE}'); a(f's_lshl_b32 s{sT+1}, s{sW4}, 12'); a(f's_add_u32 s{sT+1}, s{sT}, s{sT+1}')
        for j in range(4):
            a(LG(8-2*j))
            a(f'buffer_store_dwordx4 {V(P+4*j,4)}, v{vL16}, {SR(sWS)}, s{sT+1} offen offset:{j*1024} sc1')
        Lx = a.newlabel('x')
        a(f's_cmp_lg_u32 s{sW4}, 0'); a(f's_cbranch_scc1 {Lx}')
        a(f's_and_b32 s{sT}, s{sP}, 0x30'); a(f's_lshl_b32 s{sT}, s{sT}, 7'); a(f's_and_b32 s{sT+1}, s{sP}, 15'); a(f's_lshl_b32 s{sT+1}, s{sT+1}, 4'); a(f's_add_u32 s{sT}, s{sT}, s{sT+1}')
        a(f's_and_b32 s{sT+1}, s{sP}, 0xc0'); a(f's_lshl_b32 s{sT+1}, s{sT+1}, 2'); a(f's_add_u32 s{sT}, s{sT}, s{sT+1}'); a(f's_add_u32 s{sT}, s{sT}, {WS_B}')
        a(f'v_lshlrev_b32 v{tmp}, 10, v0')
        a('s_waitcnt lgkmcnt(0)'); a('s_mov_b64 exec, 3')
        a(f'buffer_store_dwordx4 {V(Wt,4)}, v{tmp}, {SR(sWS)}, s{sT} offen sc1')
        a('s_mov_b64 exec, -1')
        a(f's_cmp_ge_u32 s{sP}, 64'); a(f's_cbranch_scc1 {Lx}')
        for j in range(4): a(f'v_mov_b32 v{tmp+j}, 0')
        a(f's_lshl_b32 s{sT}, s{sP}, 10'); a(f's_add_u32 s{sT}, s{sT}, {WS_KV}')
        a(f'buffer_store_dwordx4 {V(tmp,4)}, v{vL16}, {SR(sWS)}, s{sT} offen sc1'); a('s_nop 1')
        a.label(Lx)
        ST('zst')
    per = opt('hfill', 32)
    FB = opt('fb', 3)
    PI = opt('pi', 5)
    sMs = sT+3
    def f1poll(): poll2(a, C_F1)
    def f1test(): test2(a)
    a(f's_mul_i32 s{sMs}, s{sW4}, {64*ZSTRIDE}'); a(f's_lshl_b32 s{sT+1}, s{sP}, 6'); a(f's_add_u32 s{sMs}, s{sMs}, s{sT+1}')
    Bv = R.alloc(8) if False else P - 0
    def msgs():
        Lm = a.newlabel('m')
        a(f's_cmp_lg_u32 s{sP}, 0'); a(f's_cbranch_scc1 {Lm}')
        a(f's_getpc_b64 s[{sSX}:{sSX+1}]'); a('s_branch L_sp3')
        a.label(Lm)
        for j in range(4):
            if j: a(f's_add_u32 s{sMs}, s{sMs}, {16*ZSTRIDE}')
            a(f'buffer_load_dwordx4 {V(IN+4*j,4)}, v{vA}, {SR(sWS)}, s{sMs} offen sc1')
        arrive(a, 3)
    WI = opt('wi', 0)
    if P1I >= 0:
        fill(44); a(f's_waitcnt vmcnt({6 if opt("rpos", 0) else 4})')
    NZ = 8
    fill(opt('hp', 60))
    for cch in range(7):
        if cch == FB: a('s_waitcnt vmcnt(0)')
        ST(f'_hb{cch}')
        a('s_barrier')
        ST(f'_hc{cch}')
        if cch in (1, 2, 4, 6): ST(f'B{cch}')
        if cch == WI+1 and not opt('noh', 0): readout()
        if cch == P1I: p1()
        if loc(cch, 'X') < 65536: a(f'ds_read_b128 {V(GX,4)}, v{aGx} offset:{loc(cch, "X")}')
        else: a(f'v_add_u32 v{GX}, {loc(cch, "X")}, v{aGx}'); a(f'ds_read_b128 {V(GX,4)}, v{GX}')
        a(f'ds_read_b128 {V(GX+4,4)}, v{aGw} offset:{cch*128}')
        nf = opt('h6', 16) if cch == 6 else (opt('h0', 40) if (cch == 0 and P1I < 0) else (per if cch > WI+1 else opt('h1', 20)))
        early = cch > WI+1
        if early and cch not in (FB, 6): fill(10); nf -= 10
        if not early:
            fill(nf); nf = 0
            if cch == WI and not opt('noh', 0): wprep()
        a('s_waitcnt lgkmcnt(0)')
        if cch == FB: signal(a, C_F1, sXCD, True)
        if cch == FB-1:
            Lr = a.newlabel('r'); Lr2 = a.newlabel('r')
            a(f's_cmp_lg_u32 s{sW4}, 0'); a(f's_cbranch_scc1 {Lr2}')
            a(f's_mov_b32 s{sCNT}, 0x2000')
            a.label(Lr)
            a(f's_cmp_ge_u32 s{sR0}, {NZ}'); a(f's_cbranch_scc1 {Lr2}')
            a('s_sleep 8'); a(f's_load_dword s{sR0}, s[{sDBG}:{sDBG+1}], 0 glc'); a('s_waitcnt lgkmcnt(0)')
            a(f's_sub_u32 s{sCNT}, s{sCNT}, 1'); a(f's_cbranch_scc0 {Lr}')
            a.label(Lr2)
        if cch == FB-2:
            Lw = a.newlabel('w')
            a(f's_cmp_lg_u32 s{sW4}, 0'); a(f's_cbranch_scc1 {Lw}')
            a(f's_load_dword s{sR0}, s[{sDBG}:{sDBG+1}], 0'); a.label(Lw)
        if cch == opt('mp', -1):
            a(f's_lshl_b32 s{sT+6}, s{sP}, 11'); a(f's_lshl_b32 s{sT+7}, s{sW4}, 9'); a(f's_add_u32 s{sT+6}, s{sT+6}, s{sT+7}')
            a(f's_add_u32 s{sT+6}, s{sWO}, s{sT+6}'); a(f's_addc_u32 s{sT+7}, s{sWO+1}, 0')
            for j in range(8): a(f's_load_dword s{sU}, s[{sT+6}:{sT+7}], {64*j}')
        if cch == PI:
            assert PI > FB and PI < 6
            f1poll()
            a(f's_cmp_eq_u32 s{sP}, 0'); a('s_cbranch_scc1 L_sp4'); a.label('L_sp4r')
        if cch == 6:
            Ll = a.newlabel('late')
            a(f's_mov_b32 s{sCNT}, 0x2000')
            f1test(); a(f's_cbranch_scc1 {Ll}')
            msgs()
            a(f's_mov_b32 s{sCNT}, 0')
            a.label(Ll)
        for j in range(4): a(f'v_dot2_f32_bf16 v{gacc}, v{GX+j}, v{GX+4+j}, v{gacc}')
        fill(nf)
    a('s_barrier')
    ST('B7')
    a(f'ds_read_b128 {V(GX,4)}, v{aGx} offset:{loc(7, "X")}'); a(f'ds_read_b128 {V(GX+4,4)}, v{aGw} offset:{7*128}')
    if opt('sl', 1): fill(opt('h7', 20)); a('s_barrier')
    Lp = a.newlabel('p'); Lq = a.newlabel('q'); Lok = a.newlabel('ok')
    a(f's_cmp_eq_u32 s{sCNT}, 0'); a(f's_cbranch_scc1 {Lok}')
    a.label(Lp)
    a(f's_sub_u32 s{sCNT}, s{sCNT}, 1'); a(f's_cbranch_scc1 {Lq}')
    f1poll(); a('s_waitcnt lgkmcnt(0)')
    f1test(); a(f's_cbranch_scc1 {Lp}')
    a.label(Lq)
    msgs()
    a.label(Lok)
    fill(10000)
    a('s_waitcnt lgkmcnt(0)')
    for j in range(4): a(f'v_dot2_f32_bf16 v{gacc}, v{GX+j}, v{GX+4+j}, v{gacc}')
    ST('c2')
    for j in range(4):
        a(f's_waitcnt vmcnt({3-j})')
        a(f'ds_write_b128 v{aW}, {V(IN+4*j,4)} offset:{(j&1)*4096 + (j>>1)*512}')
    ST('_ml'); arrive(a, 4); sync_wait(a, GRP_H, 4)
    ST('in')
    Wv = R.alloc(8)
    for n in range(8): a(f'ds_read_b128 {V(IN+4*n,4)}, v{aI} offset:{n*1024}')
    for t in range(2): a(f'ds_read_b128 {V(Wv+4*t,4)}, v{aWr} offset:{t*256}')
    for t in range(2):
        for k in range(4):
            n = t*4+k
            a(LG(9-n))
            a(f'{M16} {V(Dr+4*t,4)}, {V(IN+4*n,4)}, {V(B1+8*k,4)}, {"0" if k==0 else V(Dr+4*t,4)}')
            a(f'{M16} {V(Di+4*t,4)}, {V(IN+4*n,4)}, {V(B1+8*k+4,4)}, {"0" if k==0 else V(Di+4*t,4)}')
    ST('_s1')
    for t in range(2): cmul_pack(a, Dr+4*t, Di+4*t, tw1c+4*t, tw1s+4*t, X+4*t, tmp)
    ST('_t1')
    for t in range(2):
        for u in range(2):
            T = F32T + (u*2+t)*6
            a(f'{M16} {V(Dr+4*u,4)}, {V(T+2,4)}, {V(X+4*t,4)}, {"0" if t==0 else V(Dr+4*u,4)}')
            a(f'{M16} {V(Di+4*u,4)}, {V(T,4)}, {V(X+4*t,4)}, {"0" if t==0 else V(Di+4*u,4)}')
    a('s_waitcnt lgkmcnt(0)')
    a(f's_cmp_eq_u32 s{sP}, 0'); a('s_cbranch_scc1 L_sp2')
    for j in range(8):
        a(f'v_lshlrev_b32 v{wc+j}, 16, v{Wv+j}'); a(f'v_and_b32 v{wsn+j}, 0xffff0000, v{Wv+j}')
    for u in range(2): cmul_pack(a, Dr+4*u, Di+4*u, wc+4*u, wsn+4*u, X+4*u, tmp, conj_out=True)
    a.label('L_sp2r')
    ST('_w')
    for u in range(2):
        for t in range(2):
            T = F32T + (t*2+u)*6
            a(f'{M16} {V(Dr+4*t,4)}, {V(X+4*u,4)}, {V(T+2,4)}, {"0" if u==0 else V(Dr+4*t,4)}')
            a(f'{M16} {V(Di+4*t,4)}, {V(X+4*u,4)}, {V(T,4)}, {"0" if u==0 else V(Di+4*t,4)}')
    for t in range(2):
        cmul_pack(a, Dr+4*t, Di+4*t, tw2c+4*t, tw2s+4*t, X+4*t, tmp)
        a(f'ds_write_b128 v{aE}, {V(X+4*t,4)} offset:{t*4096}')
    ST('_e0')
    arrive(a, 7); sync_wait(a, GRP_H, 7)
    ST('_e1')
    for n in range(8): a(f'ds_read_b128 {V(IN+4*n,4)}, v{aI2} offset:{n*1024}')
    for t in range(2):
        for k in range(4):
            n = t*4+k; T = F64 + 6*k
            a(LG(7-n))
            a(f'{M16} {V(Dr+4*t,4)}, {V(IN+4*n,4)}, {V(T+2,4)}, {"0" if k==0 else V(Dr+4*t,4)}')
            a(f'{M16} {V(Di+4*t,4)}, {V(IN+4*n,4)}, {V(T,4)}, {"0" if k==0 else V(Di+4*t,4)}')
    ST('_s4')
    a(f's_mul_i32 s{sT}, s{sW4}, {16*YA}'); a(f's_mul_i32 s{sT+1}, s{sP}, {YK}'); a(f's_add_u32 s{sT}, s{sT}, s{sT+1}'); a(f's_add_u32 s{sT}, s{sT}, {WS_Y}')
    a(f's_add_u32 s{sT+1}, s{sT}, {8*YA}')
    for t in range(2):
        a(f'v_cvt_pk_bf16_f32 v{X+4*t}, v{Dr+4*t}, v{Dr+4*t+1}'); a(f'v_cvt_pk_bf16_f32 v{X+4*t+1}, v{Dr+4*t+2}, v{Dr+4*t+3}')
        a(f'v_cvt_pk_bf16_f32 v{X+4*t+2}, v{Di+4*t}, v{Di+4*t+1}'); a(f'v_cvt_pk_bf16_f32 v{X+4*t+3}, v{Di+4*t+2}, v{Di+4*t+3}')
        if opt('yd', 0): a(f'buffer_store_dwordx4 {V(X+4*t,4)}, v{vY}, {SR(sWS)}, s{sT} offen offset:{64*t} sc1')
        else: a(f'ds_write_b128 v{aO1 if t==0 else aO2}, {V(X+4*t,4)}')
    if not opt('yd', 0):
        a(f'ds_read_b128 {V(IN,4)}, v{aOr}'); a(f'ds_read_b128 {V(IN+4,4)}, v{aOr} offset:1024')
        a(LG(1)); a(f'buffer_store_dwordx4 {V(IN,4)}, v{vY}, {SR(sWS)}, s{sT} offen sc1')
        a('s_waitcnt lgkmcnt(0)'); a(f'buffer_store_dwordx4 {V(IN+4,4)}, v{vY}, {SR(sWS)}, s{sT+1} offen sc1')
    ST('yst')
    a(f'v_add_f32_dpp v{gacc}, v{gacc}, v{gacc} quad_perm:[1,0,3,2] {dp}')
    a(f'v_add_f32_dpp v{gacc}, v{gacc}, v{gacc} quad_perm:[2,3,0,1] {dp}')
    a(f'v_add_f32_dpp v{gacc}, v{gacc}, v{gacc} row_half_mirror {dp}')
    a(f'v_lshrrev_b32 v{t0}, 3, v0'); a(f's_lshl_b32 s{sT}, s{sW4}, 5'); a(f's_add_u32 s{sT}, s{sT}, {L_GP}'); a(f'v_lshl_add_u32 v{t0}, v{t0}, 2, s{sT}')
    a(f'v_cvt_pk_bf16_f32 v{gacc}, v{gacc}, v{gacc}'); a(f'v_and_b32 v{gacc}, 0xffff0000, v{gacc}')
    a(f'v_mul_f32 v{gacc}, {F(-LOG2E)}, v{gacc}'); a(f'v_exp_f32 v{gacc}, v{gacc}'); a(f'v_add_f32 v{gacc}, 1.0, v{gacc}'); a(f'v_rcp_f32 v{gacc}, v{gacc}')
    a(f'v_cvt_pk_bf16_f32 v{gacc}, v{gacc}, v{gacc}'); a(f'v_and_b32 v{gacc}, 0xffff0000, v{gacc}')
    a(f'ds_write_b32 v{t0}, v{gacc}')
    arrive(a, 8)
    HT = opt('ht', 3)
    if HT == 0: fin_table(a, lambda i: None)
    hl = [(u, ii) for u in WO_ORDER[NG:] for ii in range(2)]
    nh = 0
    if hl:
        vwo = YL
        sync_read(a, GRP_G); wo_setup(a, vwo, YL+2, YL+3); sync_check(a, GRP_G, 11)
    rr = Rec(); fin_setup(rr)
    for n, l in enumerate(rr.l):
        a(l)
        if n % 6 == 0 and hl and nh < opt('hf', 10): wo_one(a, vwo, *hl.pop(0)); nh += 1
    ST('_su'); a(f's_waitcnt vmcnt({nh})'); ST('_ak'); fysig(a); ST('fy')
    while hl: wo_one(a, vwo, *hl.pop(0))
    if HT == 3: fin_table(a, lambda i: None, PQ, ACA)
    if NG < 16: a('s_waitcnt vmcnt(0)'); arrive(a, 10); sync2(a, 10, 15, KVF)
    else: sync_wait(a, GRP_G, 15)
    pull_wo(a, 0)
    if HT == 2: fin_table(a, lambda i: None, PQ, ACA)
    a(f's_mov_b32 s{sSC}, 0')
    Lg = a.newlabel('yg'); Ld = a.newlabel('yd')
    for _ in range(opt('yp', 0)):
        poll2(a, C_FY); a('s_waitcnt lgkmcnt(0)')
        test2(a); a(f's_cbranch_scc0 {Lg}')
    poll2(a, C_FY)
    a(f's_branch {Ld}')
    a.label(Lg)
    yloads(a); a(f's_mov_b32 s{sSC}, 1')
    a.label(Ld)
    ST('_h9')
    SP.update(locals())
    return R.hi

def gen_special(a):
    g = SP
    t0, t1, B1 = [g[k] for k in ('t0','t1','B1')]
    IN, Dr, Di, Wv, tmp, wc, wsn, X, vl15 = [g[k] for k in ('IN','Dr','Di','Wv','tmp','wc','wsn','X','vl15')]
    a.label('L_sp5'); a.hist = []
    srdc(a, sWS)
    a(f'v_lshlrev_b32 v{vS+2}, 8, v0'); a(f's_mul_i32 s{sU}, s{sXCD}, {48*256}'); a(f's_add_u32 s{sU}, s{sU}, {WS_C}')
    a('s_mov_b32 exec_hi, 0xffff')
    a(f'buffer_store_dword v{vS}, v{vS+2}, {SR(sWS)}, s{sU} offen sc1')
    a('s_mov_b32 exec_hi, -1')
    a('s_branch L_sp5r')
    a.label('L_sp6')
    a(f's_mov_b32 s{sU}, 1'); a(f's_atomic_add s{sU}, s[{sDBG}:{sDBG+1}], 0')
    a('s_branch L_sp6r')
    a.label('L_sp4'); a.hist = []
    for j in range(8): spoll(a, 8+j, sC, C_F1+256*j)
    a('s_branch L_sp4r')
    a.label('L_sp3'); a.hist = []
    a(f's_mov_b32 s{sT+7}, 0x2000')
    a('s_branch L_sp3c')
    a.label('L_sp3p')
    a(f's_sub_u32 s{sT+7}, s{sT+7}, 1'); a('s_cbranch_scc1 L_sp3q')
    for j in range(8): spoll(a, 8+j, sC, C_F1+256*j)
    a.label('L_sp3c')
    a('s_waitcnt lgkmcnt(0)')
    for j in range(1, 8): a(f's_and_b32 s8, s8, s{8+j}')
    a('s_cmp_lg_u32 s8, 32'); a('s_cbranch_scc1 L_sp3p')
    a.label('L_sp3q')
    a(f's_add_u32 s{sT+6}, s{sLW}, {WS_B}')
    a(f'buffer_load_dwordx4 {V(wsn,4)}, v{vL16}, {SR(sWS)}, s{sT+6} offen sc1'); a(f'buffer_load_dwordx4 {V(wsn+4,4)}, v{vL16}, {SR(sWS)}, s{sT+6} offen offset:1024 sc1')
    a(f's_add_u32 s{sSX}, s{sSX}, 4'); a(f's_addc_u32 s{sSX+1}, s{sSX+1}, 0'); a(f's_setpc_b64 s[{sSX}:{sSX+1}]')
    a.label('L_sp2'); a.hist = []
    bc = IN; bs = IN+8; N = IN+16; t2 = IN+24; Nr = B1; Ni = B1+8; Yr = B1+16; Yi = B1+24
    a(f'v_lshrrev_b32 v{t0}, 4, v0'); a(f's_lshl_b32 s{sT}, s{sW4}, 4'); a(f'v_lshl_add_u32 v{t0}, v{t0}, 8, v{vl15}'); a(f'v_add_u32 v{t0}, s{sT}, v{t0}')
    a(f'v_sub_u32 v{t1}, {2047-64*19}, v{t0}'); a(f's_mov_b32 s{sT}, {L_EX}'); a(f'v_lshl_add_u32 v{t1}, v{t1}, 2, s{sT}')
    a(f'v_subrev_u32 v{t0}, 1, v{t0}'); a(f'v_and_b32 v{t2}, 2047, v{t0}')
    a(f'v_lshl_add_u32 v{t0}, v{t0}, 2, s{sT}'); a(f'v_lshl_add_u32 v{t2}, v{t2}, 2, s{sT}')
    for j in range(8): a(f'v_cvt_pk_bf16_f32 v{N+j}, v{Dr+j}, v{Di+j}')
    a(f'ds_write_b32 v{t2}, v{N}'); a(f'ds_write_b32 v{t0}, v{N+1} offset:256')
    for j in (2, 4, 6):
        o = 16*(j//4) + j%4
        a(f'ds_write2st64_b32 v{t0}, v{N+j}, v{N+j+1} offset0:{o} offset1:{o+1}')
    arrive(a, 6); sync_read(a, GRP_H)
    for j in range(8):
        a(f'v_lshlrev_b32 v{bc+j}, 16, v{wsn+j}'); a(f'v_and_b32 v{bs+j}, 0xffff0000, v{wsn+j}')
    sync_check(a, GRP_H, 6)
    for j in range(0, 8, 2):
        o = 19 - 16*(j//4) - j%4
        a(f'ds_read2st64_b32 {V(N+j,2)}, v{t1} offset0:{o} offset1:{o-1}')
    for j in range(8):
        a(f'v_lshlrev_b32 v{wc+j}, 16, v{Wv+j}'); a(f'v_and_b32 v{wsn+j}, 0xffff0000, v{Wv+j}')
    ng = 'neg_lo:[1,0,0] neg_hi:[1,0,0]'
    for j in range(0, 8, 2):
        a(f'v_pk_mul_f32 {V(Yr+j,2)}, {V(Dr+j,2)}, {V(wc+j,2)}'); a(f'v_pk_mul_f32 {V(Yi+j,2)}, {V(Dr+j,2)}, {V(wsn+j,2)}')
    for j in range(0, 8, 2):
        a(f'v_pk_fma_f32 {V(Yr+j,2)}, {V(Di+j,2)}, {V(wsn+j,2)}, {V(Yr+j,2)} {ng}'); a(f'v_pk_fma_f32 {V(Yi+j,2)}, {V(Di+j,2)}, {V(wc+j,2)}, {V(Yi+j,2)}')
    a('s_waitcnt lgkmcnt(0)')
    for j in range(8):
        a(f'v_lshlrev_b32 v{Nr+j}, 16, v{N+j}'); a(f'v_and_b32 v{Ni+j}, 0xffff0000, v{N+j}')
    for j in range(0, 8, 2):
        a(f'v_pk_fma_f32 {V(Yr+j,2)}, {V(Nr+j,2)}, {V(bc+j,2)}, {V(Yr+j,2)}'); a(f'v_pk_fma_f32 {V(Yi+j,2)}, {V(Nr+j,2)}, {V(bs+j,2)}, {V(Yi+j,2)}')
    for j in range(0, 8, 2):
        a(f'v_pk_fma_f32 {V(Yr+j,2)}, {V(Ni+j,2)}, {V(bs+j,2)}, {V(Yr+j,2)}'); a(f'v_pk_fma_f32 {V(Yi+j,2)}, {V(Ni+j,2)}, {V(bc+j,2)}, {V(Yi+j,2)} {ng}')
    for u in range(2):
        a(f'v_cvt_pk_bf16_f32 v{X+4*u}, v{Yr+4*u}, v{Yr+4*u+1}'); a(f'v_cvt_pk_bf16_f32 v{X+4*u+1}, v{Yr+4*u+2}, v{Yr+4*u+3}')
        a(f'v_cvt_pk_bf16_f32 v{X+4*u+2}, -v{Yi+4*u}, -v{Yi+4*u+1}'); a(f'v_cvt_pk_bf16_f32 v{X+4*u+3}, -v{Yi+4*u+2}, -v{Yi+4*u+3}')
    a('s_nop 1'); a('s_branch L_sp2r')

def gen_G0(a, ST):
    R = Regs(190)
    vd = R.alloc(8); t0, t1 = R.alloc(), R.alloc()
    srdc(a, sWQ); ids_gemm(a)
    dma_setup(a, vd, t0, t1)
    B0 = dma_group(0, vd)
    for l in B0[0][:-1]: a(l)
    a('s_waitcnt lgkmcnt(0)'); ST('karg')
    a(B0[0][-1])
    for b in B0[1:]: emit(a, b)
    return R, vd, t0, t1

def gen_G(a, ST, G):
    R, vd, t0, t1 = G
    bf = 42; NB = 3; BS = 28; accK = 126; accV = 142; accQ = 158; tmp = 174
    late_common(a)
    Q = []; QD = []; cum = [8]
    for g in range(1, 8):
        B = dma_group(g, vd)
        if g >= 8-DQ:
            Q += B[:6]
            QD += [[B[4][0]] + B[0][1:5] + B[6], B[7]]
        else: Q += B
        cum.append(8 + len(Q))
    NQ = cum[-1]
    iss = [8]
    def dma(limit):
        if iss[0] < min(limit, NQ):
            emit(a, Q[iss[0]-8], WIN-1 if iss[0] >= WIN else None); iss[0] += 1
    fin_table(a, lambda i: None); fin_setup(a)
    aA = R.alloc(4); aB = R.alloc(2)
    a(f'v_bfe_u32 v{t1}, v0, 1, 3'); a(f'v_lshrrev_b32 v{t0}, 4, v0'); a(f'v_xor_b32 v{t1}, v{t1}, v{t0}'); a(f'v_lshlrev_b32 v{t1}, 4, v{t1}')
    a(f'v_and_b32 v{aA}, 15, v0'); a(f'v_lshl_add_u32 v{aA}, v{aA}, 7, v{t1}')
    a(f'v_xor_b32 v{aA+1}, 64, v{aA}'); a(f'v_add_u32 v{aA+2}, 65536, v{aA}'); a(f'v_add_u32 v{aA+3}, 65536, v{aA+1}')
    a(f'v_lshrrev_b32 v{t0}, 5, v0'); a(f'v_lshlrev_b32 v{aB}, 12, v{t0}')
    a(f'v_bfe_u32 v{t1}, v0, 4, 1'); a(f'v_lshl_add_u32 v{aB}, v{t1}, 10, v{aB}')
    a(f'v_bfe_u32 v{t1}, v0, 2, 2'); a(f'v_lshl_add_u32 v{aB}, v{t1}, 7, v{aB}')
    a(f'v_bfe_u32 v{t1}, v0, 3, 2'); a(f'v_xor_b32 v{t1}, s{sW4}, v{t1}'); a(f'v_lshl_add_u32 v{aB}, v{t1}, 5, v{aB}')
    a(f'v_and_b32 v{t1}, 3, v0'); a(f'v_lshl_add_u32 v{aB}, v{t1}, 3, v{aB}')
    a(f'v_add_u32 v{aB+1}, 65536, v{aB}')
    a(f's_mov_b32 s{sL2E}, {F(LOG2E)}'); a(f's_mov_b32 s{sL2E+1}, {F(LOG2E)}')
    aK, aR, vAt, vPq, aZ2, vAz = [R.alloc() for _ in range(6)]; vwo = YL+4
    a(f's_mul_i32 s{sT}, s{sW4}, 1088'); a(f's_add_u32 s{sT+1}, s{sT}, {L_KVR}')
    a(f'v_add_u32 v{aK}, s{sT+1}, v{vL16}'); a(f'v_add_u32 v{aZ2}, s{sT+1}, v0')
    a(f'v_lshrrev_b32 v{t0}, 2, v0'); a(f'v_mul_u32_u24 v{t0}, 240, v{t0}'); a(f'v_lshl_add_u32 v{vAz}, v0, 2, v{t0}'); a(f'v_add_u32 v{vAz}, 32768, v{vAz}')
    a(f'v_and_b32 v{t1}, 0xf0, v{vL16}')
    a(f'v_lshlrev_b32 v{vAt}, 2, v0'); a(f'v_add_u32 v{aR}, s{sT+1}, v{vAt}')
    if PK: a(f'v_lshrrev_b32 v{t0}, 4, v0'); a(f'v_lshl_add_u32 v{vAt}, v{t0}, 2, v{t1}')
    a(f'v_bfe_u32 v{t0}, v0, 4, 1'); a(f'v_lshl_add_u32 v{vPq}, v{t0}, 9, v{t1}'); a(f'v_lshrrev_b32 v{t0}, 5, v0'); a(f'v_lshl_add_u32 v{vPq}, v{t0}, 8, v{vPq}')
    a(f'v_lshrrev_b32 v{t0}, 4, v0'); a(f'v_lshlrev_b32 v{vwo}, 5, v{t0}'); a(f'v_xor_b32 v{t1}, v{t1}, v{vwo}')
    a(f'v_and_b32 v{vwo}, 128, v{t1}'); a(f'v_mad_u32_u24 v{t1}, v{vwo}, 3, v{t1}')
    a(f'v_lshl_add_u32 v{vwo}, v{t0}, 10, v{t1}'); a(f'v_xor_b32 v{vwo+1}, 512, v{vwo}'); a(f'v_add_u32 v{vwo+1}, 3072, v{vwo+1}')
    sA0, sPq, sWu, sWo, sTo = sT, sT+2, sT+3, sT+4, sT+5
    a(f's_lshl_b32 s{sT+1}, s{sHG}, 12'); a(f's_lshl_b32 s{sA0}, s{sW4}, 10'); a(f's_add_u32 s{sA0}, s{sA0}, s{sT+1}'); a(f's_add_u32 s{sA0}, s{sA0}, {WS_KV}')
    a(f's_lshl_b32 s{sPq}, s{sROW0}, 10'); a(f's_xor_b32 s{sT+1}, s{sHG}, {QX}'); a(f's_lshl_b32 s{sT+1}, s{sT+1}, 12'); a(f's_add_u32 s{sPq}, s{sPq}, s{sT+1}')
    a(f's_lshl_b32 s{sT+1}, s{sW4}, 10'); a(f's_add_u32 s{sPq}, s{sPq}, s{sT+1}'); a(f's_add_u32 s{sPq}, s{sPq}, {WS_PQ}')
    a(f's_lshl_b32 s{sT+1}, s{sHL}, 7'); a(f's_lshl_b32 s{sWo}, s{sW4}, 13'); a(f's_add_u32 s{sWo}, s{sWo}, s{sT+1}')
    a(f's_lshr_b32 s{sTo}, s{sIDX}, 2')
    ones = R.alloc(4); m64 = aK if False else YL
    if PK:
        for j in range(4): a(f'v_mov_b32 v{m64+j}, {F(-64.0)}')
    for j in range(4): a(f'v_mov_b32 v{ones+j}, 0x3f803f80')
    ST('_su')
    while iss[0] < opt('w0', 12): dma(64)
    ST('iss')
    def buf(c, k): return bf + ((c*2+k) % NB)*BS
    def rdlist(c, k, qonly=False):
        b = buf(c, k); L = []
        def tr(dst, ad):
            q = ad // 65536; L.append(f'ds_read_b64_tr_b16 {V(dst,2)}, v{aB+q} offset:{ad-q*65536}')
        def xr(t):
            ad = loc(c, 'X') + t*BLK; q = ad // 65536
            L.append(f'ds_read_b128 {V(b+4*t,4)}, v{aA+2*q+k} offset:{ad-q*65536}')
        def wr(i):
            for jj in range(2): tr(b+16+4*i+2*jj, loc(c, 'KVQ'[i]) + 2*k*BLK + jj*512)
        if qonly: wr(2); xr(0); xr(1); xr(2); xr(3); return L
        wr(0); xr(0); xr(1); wr(1); xr(2); xr(3)
        if c < 8-DQ: wr(2)
        if opt('nord', 0) and 0 < c < 7: L = ['s_nop 0']*10
        return L
    def mm(c, k, i, t):
        if opt('nomm', 0) and 0 < c < 7: return
        b = buf(c, k); acc = (accK, accV, accQ)[i] + 4*t; C = "0" if (c == 0 and k == 0) else V(acc,4)
        if i < 2: a(f'{M16} {V(acc,4)}, {V(b+4*t,4)}, {V(b+16+4*i,4)}, {C}')
        else: a(f'{M16} {V(acc,4)}, {V(b+24,4)}, {V(b+4*t,4)}, {C}')
    nwo = [0]
    def wo_dma(thr=None):
        i = nwo[0]
        if i >= 2*NG: return
        u, ii = WO_ORDER[i//2], i & 1
        if ii == 0:
            a(f's_add_u32 m0, s{sLW}, {wo_unit(u)}')
            a(f's_add_u32 s{sWu}, s{sTo}, {u & 7}'); a(f's_and_b32 s{sWu}, s{sWu}, 7')
            if u >= 8: a(f's_or_b32 s{sWu}, s{sWu}, 8')
            a(f's_lshl_b32 s{sWu}, s{sWu}, 15'); a(f's_add_u32 s{sWu}, s{sWu}, s{sWo}')
        if thr is not None: a(f's_waitcnt vmcnt({thr})')
        a(f'buffer_load_dwordx4 v{vwo+ii}, {SR(sWO)}, s{sWu} offen' + (' offset:1024' if ii else '') + ' lds')
        nwo[0] += 1
    order = [(i, t) for i in range(3) for t in range(4)]
    LAG = 6; AH = opt('ah', 8)
    SL = opt('sl', 1)
    lagged = []
    for c in range(8):
        ST(f'_ga{c}')
        AHc = AH if c <= opt('ahc', 7) else 8
        while iss[0] < (min(cum[c] + AHc, NQ) if c else 8 + opt('ah0', 4)): dma(64)
        a(f's_waitcnt vmcnt({iss[0] - cum[c] + nwo[0] + (4 if (c == 7 and SL) else 0)}) lgkmcnt(0)')
        ST(f'_gb{c}')
        a('s_barrier')
        ST(f'_gc{c}'); ST(f'_T{c}')
        if c in (0, 1, 2, 4, 7): ST(f'B{c}')
        if c == opt('gpc', 7) and opt('gp', 1): a(f's_setprio {opt("gp", 1)}')
        lim = min(cum[c] + 8 + (AH if c+1 <= opt('ahc', 7) else 8), NQ)
        last = c == 7
        od = order if c < 8-DQ else order[:8]
        r0 = rdlist(c, 0); r1 = rdlist(c, 1)
        if last and SL:
            xk = lambda r: r[0:4] + r[6:8]
            vq = [r0[4], r0[5], r1[4], r1[5], r0[8], r0[9], r1[8], r1[9]]
            for l in xk(r0) + xk(r1): a(l)
            for m_ in lagged: mm(*m_)
            a(LG(6))
            for t in range(4): mm(c, 0, 0, t)
            a('s_waitcnt lgkmcnt(0)')
            for t in range(4): mm(c, 1, 0, t)
            break
        for l in r0: a(l)
        for l in r1[:5]: a(l)
        if last:
            for b in QD: emit(a, b)
        if c == 0:
            for _ in range(4): dma(lim)
        for n, m_ in enumerate(lagged):
            mm(*m_)
            if n % 3 == 0: dma(lim)
        a(LG(5))
        if last:
            for l in r1[5:]: a(l)
        for n, (i, t) in enumerate(order[:4] if last else od):
            mm(c, 0, i, t)
            if last: continue
            if n < len(r1)-5: a(r1[5+n])
            elif n % 2 == 1 or len(od) == 8: dma(lim)
        a('s_waitcnt lgkmcnt(0)')
        lg = LAG if len(od) == 12 else 4
        for n, (i, t) in enumerate(order[:4] if last else od[:len(od)-lg]):
            mm(c, 1, i, t)
            if n % 3 == 0: dma(lim)
        lagged = [(c, 1, i, t) for (i, t) in od[len(od)-lg:]]
        if c == opt('pr', -1):
            assert c >= 5
            while iss[0] < NQ: dma(64)
            for _ in range(4): wo_dma(WIN-1)
    pk = accK; vv = accK+8; Dk = accV; Dz = accV+4
    restm = [(k, 1, t) for k in range(2) for t in range(4)]
    if DQ == 0: restm += [(k, 2, t) for k in range(2) for t in range(4)]
    if SL:
        a(f's_waitcnt vmcnt({nwo[0]})'); a('s_barrier')
        for l in vq: a(l)
    sync_read(a, GRP_H)
    if not SL:
        for _ in range(5): mm(7, *restm.pop(0))
    rr = Rec(); phi_pack(rr, accK, 16, pk, tmp)
    WB = opt('wb', 4)
    for n, l in enumerate(rr.l):
        a(l)
        if SL and n == 12: a('s_waitcnt lgkmcnt(0)')
        if (n % 2 == 1 and n > 12 if SL else n % 3 == 2) and restm: mm(7, *restm.pop(0))
        if WB and n % (len(rr.l)//WB) == 4: wo_dma()
    assert not restm
    for j in range(8): a(f'v_cvt_pk_bf16_f32 v{vv+j}, v{accV+2*j}, v{accV+2*j+1}')
    a(f'{M16} {V(Dk,4)}, {V(pk,4)}, {V(vv,4)}, 0'); a(f'{M16} {V(Dz,4)}, {V(pk,4)}, {V(ones,4)}, {V(m64,4) if PK else 0}')
    a(f'{M16} {V(Dk,4)}, {V(pk+4,4)}, {V(vv+4,4)}, {V(Dk,4)}'); a(f'{M16} {V(Dz,4)}, {V(pk+4,4)}, {V(ones,4)}, {V(Dz,4)}')
    ST('kvm')
    if PK:
        sync_check(a, GRP_H, 3); a.fence(2)
        Pp = accV+8
        a(f'v_cvt_pk_bf16_f32 v{Pp}, v{Dk}, v{Dk+1}'); a(f'v_cvt_pk_bf16_f32 v{Pp+1}, v{Dk+2}, v{Dk+3}')
        a(f'v_cvt_pk_bf16_f32 v{Pp+2}, v{Dz}, v{Dz+1}'); a(f'v_cvt_pk_bf16_f32 v{Pp+3}, v{Dz+2}, v{Dz+3}')
        a(f'v_permlane16_swap_b32 v{Pp}, v{Pp+1}'); a(f'v_permlane16_swap_b32 v{Pp+2}, v{Pp+3}')
        for h in range(2): a(f'buffer_atomic_pk_add_bf16 v{Pp+h}, v{vAt}, {SR(sWS)}, s{sA0} offen' + (f' offset:{KS}' if h else ''))
        a('s_mov_b32 exec_lo, 0x00010001'); a('s_mov_b32 exec_hi, 0x00010001')
        for h in range(2): a(f'buffer_atomic_pk_add_bf16 v{Pp+2+h}, v{vAt}, {SR(sWS)}, s{sA0} offen offset:{256+h*KS}')
        a('s_mov_b64 exec, -1')
    else:
        a(f'ds_write_b128 v{aK}, {V(Dk,4)}')
        a('s_mov_b32 exec_lo, 0x00010001'); a('s_mov_b32 exec_hi, 0x00010001')
        a(f'ds_write_b128 v{aZ2}, {V(Dz,4)} offset:1024')
        a('s_mov_b64 exec, -1')
        Pp = accV+8
        a(f'ds_read2st64_b32 {V(Pp,2)}, v{aR} offset0:0 offset1:1'); a(f'ds_read2st64_b32 {V(Pp+2,2)}, v{aR} offset0:2 offset1:3'); a(f'ds_read_b32 v{Pp+4}, v{aR} offset:1024')
        sync_check(a, GRP_H, 3)
        for rnd in range(4): a(f'buffer_atomic_add_f32 v{Pp+rnd}, v{vAt}, {SR(sWS)}, s{sA0} offen' + (f' offset:{rnd*256}' if rnd else ''))
        a('s_mov_b64 exec, 0xffff'); a(f'buffer_atomic_add_f32 v{Pp+4}, v{vAz}, {SR(sWS)}, s{sA0} offen'); a('s_mov_b64 exec, -1')
    ST('atom')
    if DQ:
        a(f's_waitcnt vmcnt({5 + nwo[0]})')
        arrive(a, 10); sync_wait(a, GRP_G, 10)
        ST('_wq')
        steps = [(c, k) for c in range(8-DQ, 8) for k in range(2)]
        for st_ in steps[:2]:
            for l in rdlist(*st_, qonly=True): a(l)
        for n, (c, k) in enumerate(steps):
            a(LG(6 if n+1 < len(steps) else 0))
            mm(c, k, 2, 0)
            if n+2 < len(steps):
                for l in rdlist(*steps[n+2], qonly=True): a(l)
            for t in range(1, 4): mm(c, k, 2, t)
    arrive(a, 11)
    phi_pack(a, accQ, 16, accK, tmp)
    for rt in range(2):
        a(f'v_permlane32_swap_b32 v{accK+4*rt}, v{accK+4*rt+2}'); a(f'v_permlane32_swap_b32 v{accK+4*rt+1}, v{accK+4*rt+3}')
    a(f'buffer_store_dwordx4 {V(accK,4)}, v{vPq}, {SR(sWS)}, s{sPq} offen sc1')
    a(f's_add_u32 s{sPq}, s{sPq}, 32768')
    a(f'buffer_store_dwordx4 {V(accK+4,4)}, v{vPq}, {SR(sWS)}, s{sPq} offen sc1')
    ST('qst')
    if opt('gp', 1) and opt('gpe', 0) in (0, 2): a('s_setprio 0')
    WW = opt('ww', 10); NS = opt('ns', 8)
    for i in range(NS): wo_dma()
    OW = [fOW, fOW+1, fYW, fYW+1]
    for j in range(32): a(f'v_mov_b32 v{KVF+j}, 0x45004500')
    a(f's_lshl_b32 s{sT}, s{sW4}, 2'); a(f's_and_b32 s{sT+2}, s{sT}, 8'); a(f's_sub_u32 s{sT}, s{sT}, s{sTo}')
    for bb in range(4):
        if bb: a(f's_add_u32 s{sT}, s{sT}, 1')
        a(f's_and_b32 s{sT+1}, s{sT}, 7'); a(f's_or_b32 s{sT+1}, s{sT+1}, s{sT+2}'); a(f's_lshl_b32 s{sT+1}, s{sT+1}, 11')
        a(f'v_add_u32 v{OW[bb]}, s{sT+1}, v{vL16}')
    a(f's_add_u32 s{sT}, s{sFKV}, 4096'); a(f's_add_u32 s{sT+1}, s{sFPQ}, 4096')
    G2 = opt('g2', 0)
    if G2: sync2(a, 4, 11, PQ)
    a(f's_waitcnt vmcnt({NS})'); signal_last(a, 32, 3, C_FK, sHG); ST('fk')
    NA = opt('na', 24) if G2 else min(2*NFREE, 2*NG)
    while nwo[0] < NA: wo_dma(WW-1)
    a(f's_waitcnt vmcnt({NA-18})')
    ST('_g2'); arrive(a, 13)
    if G2:
        while nwo[0] < 32: wo_dma(WW-1)
        sync_wait(a, GRP_G, 13)
    else: sync2(a, 4, 13, PQ)
    ST('_g3')
    poll2(a, C_FK)
    rr = Rec(); pull_wo(rr, 1)
    for n, l in enumerate(rr.l):
        a(l)
        if n % 4 == 3: wo_dma(WW-1)
    assert nwo[0] == 2*NG
    assert R.hi <= YL, R.hi
    ST('tab')
    pre_fin_G(a, ST)
    return R.hi

fT0, fT1, fOMG, fG, fYW, fO, fHP, fOUT, fKV, fF, fP, fO2 = [FT+8+i for i in (0,1,2,4,6,8,9,10,11,12,13,3)]
fY = FT; fC = FT+2; fOW = FT+4; fB = FT+6
sFY, sFPQ, sFKV, sFOUT, sFFK, sFFY = 12, 13, 14, 15, 16, 17
def fin_setup(a):
    t0, t1 = fT0, fT1
    a(f'v_and_b32 v{t0}, 31, v0'); a(f'v_lshlrev_b32 v{t1}, 2, v{t0}'); a(f'v_add_u32 v{fOMG}, {L_GP}, v{t1}')
    a(f'v_and_b32 v{fG}, 60, v{t1}'); a(f'v_add_u32 v{fG}, {L_GP}, v{fG}')
    a(f'v_lshrrev_b32 v{t1}, 5, v0')
    if PK: a(f'v_min_u32 v{fKV}, 16, v{t0}'); a(f'v_mul_u32_u24 v{fO}, {KS}, v{t1}'); a(f'v_lshl_add_u32 v{fKV}, v{fKV}, 4, v{fO}')
    else: a(f'v_cmp_gt_u32 vcc, 16, v{t0}'); a(f'v_lshlrev_b32 v{fKV}, 4, v{t0}'); a(f'v_mov_b32 v{fO}, 32768'); a(f'v_cndmask_b32 v{fKV}, v{fO}, v{fKV}, vcc'); a(f'v_lshl_add_u32 v{fKV}, v{t1}, 8, v{fKV}')
    a(f'v_bfe_u32 v{t0}, v0, 2, 3'); a(f'v_lshl_add_u32 v{fB}, v{t1}, 4, v{t0}'); a(f'v_lshlrev_b32 v{fB}, 8, v{fB}')
    a(f'v_xor_b32 v{t0}, s{sW4}, v{t0}'); a(f'v_lshl_add_u32 v{fB}, v{t0}, 5, v{fB}')
    a(f'v_and_b32 v{t0}, 3, v0'); a(f'v_lshl_add_u32 v{fB}, v{t0}, 3, v{fB}'); a(f'v_xor_b32 v{fB+1}, 128, v{fB}')
    a(f'v_bfe_u32 v{t1}, v0, 3, 1'); a(f'v_and_b32 v{fYW}, 0x70, v{vL16}'); a(f'v_lshl_add_u32 v{fYW}, v{t1}, 14, v{fYW}')
    a(f'v_lshlrev_b32 v{fY}, 7, v{t1}'); a(f'v_lshl_add_u32 v{fY}, v{t0}, 4, v{fY}')
    a(f'v_lshrrev_b32 v{t1}, 4, v0'); a(f'v_lshl_add_u32 v{fYW}, v{t1}, 7, v{fYW}')
    a(f's_lshl_b32 s{sT}, s{sW4}, 12'); a(f'v_add_u32 v{fYW}, s{sT}, v{fYW}'); a(f'v_xor_b32 v{fYW+1}, 64, v{fYW}')
    a(f's_lshl_b32 s{sT}, s{sKH}, 14')
    a(f'v_and_b32 v{t0}, 0xf0, v{vL16}'); a(f'v_lshl_add_u32 v{fO}, v{t1}, 9, s{sT}')
    a(f'v_add_u32 v{fY}, v{fY}, v{fO}'); a(f'v_add_u32 v{fO}, v{fO}, v{t0}')
    a(f'v_bfe_u32 v{t0}, v0, 4, 1'); a(f'v_lshl_add_u32 v{fY}, v{t0}, 6, v{fY}')
    a(f'v_bfe_u32 v{t0}, v0, 2, 1'); a(f'v_lshl_add_u32 v{fY}, v{t0}, 3, v{fY}'); a(f'v_xor_b32 v{fY+1}, 64, v{fY}')
    a(f'v_and_b32 v{t0}, 15, v0'); a(f'v_mul_u32_u24 v{fHP}, {RS}, v{t0}'); a(f'v_lshl_add_u32 v{fHP}, v{t1}, 4, v{fHP}')
    a(f's_mul_i32 s{sT}, s{sKH}, {32*RS}'); a(f's_lshl_b32 s{sT+1}, s{sW4}, 6'); a(f's_add_u32 s{sT}, s{sT}, s{sT+1}'); a(f's_add_u32 s{sT}, s{sT}, {L_EP}'); a(f'v_add_u32 v{fHP}, s{sT}, v{fHP}')
    a(f's_lshl_b32 s{sT}, s{sWV}, 2'); a(f'v_add_u32 v{t1}, s{sT}, v{t1}')
    a(f'v_mul_u32_u24 v{fP}, {RS}, v{t1}'); a(f'v_lshl_add_u32 v{fP}, v{t0}, 5, v{fP}'); a(f'v_add_u32 v{fP}, {L_EP}, v{fP}')
    a(f'v_and_b32 v{fOUT}, 8, v0'); a(f'v_mad_u32_u24 v{t0}, v{fOUT}, 3, v{t0}'); a(f'v_lshlrev_b32 v{t0}, 4, v{t0}'); a(f'v_lshl_add_u32 v{fOUT}, v{t1}, 10, v{t0}')
    a(f's_lshl_b32 s{sT}, s{sAT}, 15'); a(f's_lshl_b32 s{sFKV}, s{sW4}, 13'); a(f's_add_u32 s{sT+1}, s{sT}, s{sFKV}')
    a(f's_add_u32 s{sFPQ}, s{sT+1}, {WS_PQ}'); a(f's_add_u32 s{sFY}, s{sT+1}, {WS_Y}'); a(f's_add_u32 s{sFKV}, s{sFKV}, {WS_KV}')
    a(f's_lshl_b32 s{sFOUT}, s{sHL}, 7'); a(f's_add_u32 s{sFOUT}, s{sFOUT}, s{sT}')

def pull_wo(a, kh):
    B = ACB
    for q in (1, 2):
        for cu in range(2): a(f'v_add_u32 v{B+2*q+cu}, {57344*q}, v{fB+cu}')
    for n in range(8):
        for cu in range(2):
            for jj in range(2):
                ad = wo_unit(8*kh+n) + jj*2048
                q = ad // 57344
                a(f'ds_read_b64_tr_b16 {V(WF+8*n+4*cu+2*jj,2)}, v{(B+2*q if q else fB)+cu} offset:{ad - q*57344}')
YR = [HP+4*j for j in range(8)]
def yloads(a):
    for j in range(8):
        if j == 4: a(f's_add_u32 s{sFY}, s{sFY}, 4096')
        a(f'buffer_load_dwordx4 {V(YR[j],4)}, v{vL16}, {SR(sWS)}, s{sFY} offen offset:{(j&3)*1024} sc1')
def pre_fin_G(a, ST):
    assert PK
    KV8 = [KVF + 4*j for j in range(8)]; PQ8 = [HP + 4*j for j in range(8)]; OF = [PQ, PQ+4, PQ+8, PQ+12]
    OW = [fOW, fOW+1, fYW, fYW+1]
    LA = opt('la', 6)
    def ld(j):
        a('s_mov_b32 exec_lo, 0x0011ffff'); a('s_mov_b32 exec_hi, 0x0011ffff')
        a(f'buffer_load_dwordx4 {V(KV8[j],4)}, v{fKV}, {SR(sWS)}, s{sFKV if j < 4 else sT} offen offset:{(j&3)*1024} sc1')
        a('s_mov_b64 exec, -1')
        a(f'buffer_load_dwordx4 {V(PQ8[j],4)}, v{vL16}, {SR(sWS)}, s{sFPQ if j < 4 else sT+1} offen offset:{(j&3)*1024} sc1')
    Lc = a.newlabel('c'); Ld = a.newlabel('d')
    a('s_waitcnt lgkmcnt(0)'); ST('_g4')
    arrive(a, 14)
    test2(a); a(f's_cbranch_scc0 {Lc}')
    poll2(a, C_FK)
    a('s_waitcnt vmcnt(0)'); arrive(a, 15)
    poll2_loop(a, C_FK, True)
    a.label(Lc)
    ST('pk')
    if opt('gpe', 0) == 2: a('s_setprio 1')
    for j in range(LA): ld(j)
    ST('rdy')
    a(f's_waitcnt vmcnt({2*LA})'); arrive(a, 15)
    sync2(a, 8, 14, PQ)
    a(f'ds_read_b32 v{fOMG}, v{fOMG}')
    a('s_waitcnt lgkmcnt(0)')
    a(f'v_sub_f32 v{fOMG}, 1.0, v{fOMG}'); a(f'v_cvt_pk_bf16_f32 v{fOMG}, v{fOMG}, v{fOMG}'); a(f'v_and_b32 v{fOMG}, 0xffff0000, v{fOMG}')
    ST('_g5')
    def fo(j):
        D = ACA if j % 2 == 0 else ACB; O = OF[j % 4]
        a(f'v_add_f32 v{D+8}, v{D+8}, v{D+9}')
        a(f'v_add_f32 v{fT0}, {F(1e-6)}, v{D+8}'); a(f'v_rcp_f32 v{fT0}, v{fT0}'); a(f'v_mul_f32 v{fC}, v{fT0}, v{fOMG}'); a(f'v_mul_f32 v{fC+1}, v{fT0}, v{fOMG}')
        for q in range(0, 8, 2): a(f'v_pk_mul_f32 {V(D+q,2)}, {V(D+q,2)}, {V(fC,2)}')
        for q in range(4): a(f'v_cvt_pk_bf16_f32 v{O+q}, v{D+2*q}, v{D+2*q+1}')
        a(f'ds_write_b128 v{OW[j//2]}, {V(O,4)} offset:{L_O+(j&1)*1024}')
    for j in range(8):
        D = ACA if j % 2 == 0 else ACB
        a(f's_waitcnt vmcnt({2*(min(8, LA+j) - j - 1)})')
        a(f'{M32} {V(D,16)}, {V(KV8[j],4)}, {V(PQ8[j],4)}, 0')
        if j in (0, 4): ST(f'_a{j}')
        if LA + j < 8: ld(LA + j)
        if j > 0: fo(j-1)
    fo(7)
    a(f's_mov_b32 s{sSC}, 2'); ST('_g6')
    if opt('gpe', 0): a('s_setprio 0')

def gen_FIN(a, ST):
    a('s_waitcnt lgkmcnt(0)'); a('s_barrier')
    a(f'ds_read2_b32 {V(fG,2)}, v{fG} offset0:0 offset1:16')
    ST('J3')
    BF = KVF; PF = 3; N1 = opt('n1', 6)
    def rdo(n):
        for su in range(2): a(f'ds_read_b128 {V(BF+(n%4)*8+4*su,4)}, v{fO} offset:{L_O+n*2048+su*256}')
    def rdy(n):
        for su in range(2):
            for jj in range(2): a(f'ds_read_b64_tr_b16 {V(WF+n*8+4*su+2*jj,2)}, v{fY+su} offset:{L_Y+(16*n+2*jj)*128}')
    for n in range(PF): rdo(n)
    Ll = a.newlabel('yl')
    a(f's_cmp_lg_u32 s{sSC}, 0'); a(f's_cbranch_scc1 {Ll}')
    if opt('yb', 0): poll2_loop(a, C_FY, True)
    else: test2(a); a(f's_cbranch_scc1 {Ll}')
    ST('_yp')
    yloads(a); a(f's_mov_b32 s{sSC}, 1')
    a.label(Ll)
    def bstep(n, wait=True):
        b = BF + (n % 4)*8
        if wait: a(f's_waitcnt lgkmcnt({2*min(PF-1, 7-n)})' if not (STAMP and n == 0) else 's_waitcnt lgkmcnt(0)')
        for i, (cu, su) in enumerate(((0,0),(0,1),(1,0),(1,1))):
            d = ACB + 8*su + 4*cu
            a(f'{M16} {V(d,4)}, {V(WF+8*n+4*cu,4)}, {V(b+4*su,4)}, {"0" if n==0 else V(d,4)}')
            if i == 0 and n+PF < 8: rdo(n+PF)
    assert N1 >= 5
    for n in range(N1): bstep(n)
    ST('bp')
    Lo = a.newlabel('yo'); Lz = a.newlabel('yz')
    a(f's_cmp_eq_u32 s{sSC}, 2'); a(f's_cbranch_scc1 {Lz}')
    a(f's_cmp_eq_u32 s{sSC}, 1'); a(f's_cbranch_scc1 {Lo}')
    poll2_loop(a, C_FY)
    yloads(a)
    a.label(Lo)
    for j in range(8):
        a(f's_waitcnt vmcnt({7-j})')
        if j in (0, 7): ST(f'_y{j}')
        a(f'ds_write_b128 v{fYW+(j&1)}, {V(YR[j],4)} offset:{L_Y+j*512}')
    a.label(Lz)
    a('s_waitcnt lgkmcnt(0)'); a('s_barrier')
    ST('J3b')
    for n in range(3): rdy(n)
    for n in range(N1, 8): bstep(n, False)
    a(f's_lshl_b32 s{sT}, s{sKH}, 31')
    for su in range(2): a(f'v_mul_f32 v{fG+su}, {F(2.0**-19)}, v{fG+su}'); a(f'v_xor_b32 v{fC+su}, s{sT}, v{fG+su}')
    for n in range(8):
        a(f's_waitcnt lgkmcnt({4*min(2, 7-n)})' if not (STAMP and n == 0) else 's_waitcnt lgkmcnt(0)')
        for su in range(2):
            d = ACA + 4*su
            a(f'{M16} {V(d,4)}, {V(TF+4*n,4)}, {V(WF+n*8+4*su,4)}, {"0" if n==0 else V(d,4)}')
        if n+3 < 8: rdy(n+3)
    for su in range(2):
        for cu in range(2):
            d = ACB + 8*su + 4*cu
            for r in range(4): a(f'v_fmac_f32 v{d+r}, v{(fC if cu else fG)+su}, v{ACA+4*su+r}')
            a(f'ds_write_b128 v{fHP}, {V(d,4)} offset:{su*16*RS+cu*256}')
    ST('_e4'); a('s_waitcnt lgkmcnt(0)'); a('s_barrier'); ST('_j4')
    for q in range(2): a(f'ds_read_b128 {V(HP+4*q,4)}, v{fP} offset:{16*q}'); a(f'ds_read_b128 {V(HP+8+4*q,4)}, v{fP} offset:{32*RS+16*q}')
    for q in range(2):
        a(f's_waitcnt lgkmcnt({2-2*q})')
        for j in (0, 2): a(f'v_pk_add_f32 {V(HP+4*q+j,2)}, {V(HP+8+4*q+j,2)}, {V(HP+4*q+j,2)}')
        for j in (0, 2): a(f'v_cvt_pk_bf16_f32 v{ACA+2*q+j//2}, v{HP+4*q+j}, v{HP+4*q+j+1}')
    a(f'buffer_store_dwordx4 {V(ACA,4)}, v{fOUT}, {SR(sOUT)}, s{sFOUT} offen nt')
    a.label('L_end')
    ST('end')
    stamp_flush(a, len(ST.names))

if __name__ == '__main__':
    a = build()
    if opt('al', 0):
        from align import align
        a.lines = align(a.lines, minrun=opt('mr', 5))
    out = '; @launch grid=(256,1,1) block=(512,1,1) lds=163840\n.amdgcn_target "amdgcn-amd-amdhsa--gfx950"\n.text\n'
    out += '.p2align 12\n' + kernel_header(NAME) + a.text()
    out += f'.p2align 8\n.fill (33792 - (. - {NAME})) / 4, 4, 0xbf800000\n'
    out += '.section .rodata,"a"\n.p2align 6\n' + kernel_desc(NAME, 256, 102)
    open(sys.argv[1], 'w').write(out)
```

```python
import sys, math, os
sys.path.insert(0,'lib')
from asmgen import *
NAME='gated_mix__spectral_gfnet__linear_attn_block__prompt_kernel'
STAMP = int(os.environ.get('STAMP','0'))
STSEL = [x for x in os.environ.get('STSEL','').split(',') if x]
PROBE = os.environ.get('PROBE','')
OPT = dict(x.split('=') for x in os.environ.get('OPT','').split(',') if x)
def opt(k, d): return int(OPT.get(k, d))

WS_Z=0; ZSTRIDE=16640; WS_PQ=0x420000; WS_Y=0x620000; WS_KV=0x880000; WS_C=0x890000; C_F1=0; C_FK=32768; C_FY=65536; WS_B=0x8b0000; WS_ST=0x8c0000; WS_SIZE=0x900000
HS=16384; BLK=4096; NH=7
def loc(c, part):
    h = 2*c + (0 if part in 'XK' else 1)
    return (h % NH)*HS + (2048 if part in 'XV' else 0)
SC=NH*HS; PS=1088
L_SY=SC; L_GP=SC+256; L_GW=SC+768; L_A=L_GW+2048; L_B=L_A+16384; L_XT=L_B+4*PS*4; L_END=L_XT+8192
L_P1X=L_A; L_WRAW=L_A+8192; L_IN=L_A; L_OT=L_A; L_PL=L_B; L_EX=L_B; L_KVR=L_B+8192
assert L_END <= 163840 and L_KVR+8704 <= L_XT and L_A % 256 == 0 and L_XT % 256 == 0, L_END
L_Y=0; L_O=32768; L_EP=65536; RS=528; RP=784
LOG2E=1.4426950408889634
YA=opt('ya', 32768); YK=opt('yk', 128)
PK=opt('pk', 1); KS=opt('ks', 512)
QX=opt('qx', 0); assert QX in (0, 1)
NREP=opt('nrep', 8)
sX,sWR,sWI,sWQ,sWO,sGW,sOUT,sWS = 8,12,16,20,24,28,32,36
sXCD,sIDX,sP,sHG,sROW0,sROT,sWV,sW4,sHH,sHL = 40,41,42,43,44,45,46,47,48,49
sT=50; sSC=58; sL2E=60; sLW=62; sR0=63; sC=28; sPB=30; sDBG=100; sAT=64; sKH=65; sCNT=66; sLB=67; sSX=6; sSW=7; sU=3
M16 = 'v_mfma_f32_16x16x32_bf16'; M32 = 'v_mfma_f32_32x32x16_bf16'
def SR(d): return f's[{d}:{d+3}]'

class Stamps:
    def __init__(self, a): self.a = a; self.names = []
    def __call__(self, name):
        if PROBE:
            if name == 'start' and PROBE != 'start': self.a('s_mov_b64 s[96:97], 0')
            if name == PROBE: self.a('s_memrealtime s[96:97]'); self.a('s_waitcnt lgkmcnt(0)')
            if name == 'end':
                a = self.a
                a('s_cmp_eq_u64 s[96:97], 0'); a('s_cbranch_scc1 L_done')
                if os.environ.get('PM'): a(f's_and_b32 s98, s2, {os.environ["PM"]}'); a(f's_cmp_lg_u32 s98, {os.environ["PV"]}'); a('s_cbranch_scc1 L_done')
                if os.environ.get('PW'): a(f's_cmp_lg_u32 s2, {os.environ["PW"]}'); a('s_cbranch_scc1 L_done')
                a('s_add_u32 s96, s96, 3000')
                a.label('L_spin'); a('s_sleep 2'); a('s_memrealtime s[98:99]'); a('s_waitcnt lgkmcnt(0)')
                a('s_sub_u32 s98, s98, s96'); a('s_cmp_lt_i32 s98, 0'); a('s_cbranch_scc1 L_spin')
            return
        if not STAMP: return
        if STSEL and name not in STSEL: return
        if not STSEL and name.startswith('_'): return
        if name in self.names: n = self.names.index(name)
        else: n = len(self.names); self.names.append(name)
        assert n < 16, name
        self.a(('s_memtime' if name.startswith('_T') else 's_memrealtime') + f' s[{68+2*n}:{69+2*n}]')
def stamp_flush(a, n):
    if not STAMP: return
    L = a.newlabel('stf')
    a('s_waitcnt lgkmcnt(0)')
    a(f's_cmp_lg_u32 s{sW4}, {opt("stw",0)}'); a(f's_cbranch_scc1 {L}')
    a(f's_lshl_b32 s{sT}, s2, 8'); a(f's_add_u32 s{sT}, s{sT}, {WS_ST}')
    a(f's_lshr_b32 s{sT+1}, s{sWV}, 2'); a(f's_lshl_b32 s{sT+1}, s{sT+1}, 7'); a(f's_add_u32 s{sT}, s{sT}, s{sT+1}')
    a('s_mov_b64 exec, 1'); a('v_mov_b32 v4, 0')
    for i in range(n):
        a(f'v_mov_b32 v2, s{68+2*i}'); a(f'v_mov_b32 v3, s{69+2*i}')
        a(f'buffer_store_dwordx2 v[2:3], v4, {SR(sWS)}, s{sT} offen offset:{8*i}'); a('s_nop 1')
    a.label(L)
def LG(n): return f's_waitcnt lgkmcnt({0 if STAMP else n})'

class Rec:
    def __init__(self): self.l = []
    def __call__(self, s): self.l.append(s)

vL16=1; vPA=2; vSY=3; vS=4; VBASE=10
def arrive(a, stage):
    a(f'v_mov_b32 v{vS+4}, {stage}'); a(f'ds_write_b32 v{vPA}, v{vS+4}')
def sync_read(a, grp): a(f'ds_read_b128 {V(vS,4)}, v{vSY} offset:{16*grp}')
def sync_check(a, grp, stage):
    L = a.newlabel('sw'); L2 = a.newlabel('sd')
    a.label(L)
    a('s_waitcnt lgkmcnt(0)')
    a(f'v_min3_u32 v{vS}, v{vS}, v{vS+1}, v{vS+2}'); a(f'v_min_u32 v{vS}, v{vS}, v{vS+3}')
    a(f'v_readfirstlane_b32 s{sT+7}, v{vS}')
    a(f's_cmp_ge_u32 s{sT+7}, {stage}'); a(f's_cbranch_scc1 {L2}')
    sync_read(a, grp); a(f's_branch {L}')
    a.label(L2)
def sync2(a, sH, sG, T):
    L = a.newlabel('s2')
    a.label(L)
    a(f'ds_read_b128 {V(vS,4)}, v{vSY}'); a(f'ds_read_b128 {V(T,4)}, v{vSY} offset:16')
    a('s_waitcnt lgkmcnt(0)')
    a(f'v_min3_u32 v{vS}, v{vS}, v{vS+1}, v{vS+2}'); a(f'v_min3_u32 v{T}, v{T}, v{T+1}, v{T+2}')
    a(f'v_min_u32 v{vS}, v{vS}, v{vS+3}'); a(f'v_add_u32 v{vS}, {sG-sH}, v{vS}'); a(f'v_min3_u32 v{vS}, v{vS}, v{T}, v{T+3}')
    a(f'v_readfirstlane_b32 s{sT+7}, v{vS}')
    a(f's_cmp_lt_u32 s{sT+7}, {sG}'); a(f's_cbranch_scc1 {L}')
def sync_wait(a, grp, stage): sync_read(a, grp); sync_check(a, grp, stage)
GRP_H=0; GRP_G=1
def signal(a, cset, sgrp, split=False):
    if not split and (opt('vsig', 0) & {C_FK: 1, C_FY: 2}[cset]):
        a(f's_lshl_b32 s{sT+6}, s{sgrp}, 8'); a(f's_add_u32 s{sT+6}, s{sT+6}, {WS_C+cset}')
        a(f'v_lshlrev_b32 v{vS}, 11, v0'); a(f'v_mov_b32 v{vS+1}, 1'); a(f's_mov_b64 exec, {(1 << NREP) - 1}')
        a(f'buffer_atomic_add v{vS+1}, v{vS}, {SR(sWS)}, s{sT+6} offen sc1'); a('s_mov_b64 exec, -1')
        return
    a(f's_lshl_b32 s{sT+6}, s{sgrp}, 8')
    if split: a(f's_add_u32 s{sT+6}, s{sT+6}, s{sLW}')
    a(f's_add_u32 s{sT+6}, s{sC}, s{sT+6}'); a(f's_addc_u32 s{sT+7}, s{sC+1}, 0')
    a(f's_mov_b32 s{sU}, 1')
    for r in range(0, NREP, 4 if split else 1): a(f's_atomic_add s{sU}, s[{sT+6}:{sT+7}], {cset + r*2048}')
def spoll(a, dst, pair, imm):
    a(f's_mov_b32 s{dst}, 0'); a(f's_atomic_add s{dst}, s[{pair}:{pair+1}], {imm} glc')
sR1 = sT+2
def poll2(a, cset): spoll(a, sR0, sPB, cset); spoll(a, sR1, sPB, cset+256)
def test2(a): a(f's_and_b32 s{sR0}, s{sR0}, s{sR1}'); a(f's_cmp_lg_u32 s{sR0}, 32')
def poll2_loop(a, cset, pre=False):
    Lp = a.newlabel('p'); Lc = a.newlabel('c'); Lq = a.newlabel('q')
    a(f's_mov_b32 s{sCNT}, 0x2000')
    if pre: a(f's_branch {Lc}')
    a.label(Lp)
    a(f's_sub_u32 s{sCNT}, s{sCNT}, 1'); a(f's_cbranch_scc1 {Lq}')
    poll2(a, cset)
    a.label(Lc)
    a('s_waitcnt lgkmcnt(0)')
    test2(a); a(f's_cbranch_scc1 {Lp}')
    a.label(Lq)
def signal_last(a, cnt_off, last, cset, sgrp):
    L = a.newlabel('sig')
    a('s_mov_b64 exec, 1')
    a(f'v_mov_b32 v{vS+4}, 1'); a(f'ds_add_rtn_u32 v{vS}, v{vSY}, v{vS+4} offset:{cnt_off}')
    a('s_waitcnt lgkmcnt(0)')
    a(f'v_readfirstlane_b32 s{sT+7}, v{vS}')
    a('s_mov_b64 exec, -1')
    a(f's_cmp_lg_u32 s{sT+7}, {last}'); a(f's_cbranch_scc1 {L}')
    signal(a, cset, sgrp)
    a.label(L)

DQ = 0
WO_ORDER = [8, 0, 9, 10, 11, 12, 13, 14, 15, 1, 2, 3, 4, 5, 6, 7]
NFREE = 12
def fysig(a):
    if opt('ssig', 0): arrive(a, 9); sync_wait(a, GRP_H, 9); signal(a, C_FY, sXCD, True)
    else: signal_last(a, 36, 3, C_FY, sXCD)
def wo_unit(u):
    if u == 8: return L_XT
    if u >= 9: return 32768 + (u-9)*8192
    return [L_KVR, 90112, 98304, 106496, 0, 8192, 16384, 24576][u]
WIN = opt('win', 12)
def rot_calc(a):
    RM = opt('rot', 104)
    a(f's_lshr_b32 s{sT}, s{sIDX}, 2')
    if RM == 8: a(f's_lshl_b32 s{sROT}, s{sHL}, 1'); a(f's_add_u32 s{sROT}, s{sROT}, s{sT}'); a(f's_and_b32 s{sROT}, s{sROT}, 7')
    elif RM == 1: a(f's_mov_b32 s{sROT}, 0')
    elif RM >= 200:
        a(f's_and_b32 s{sROT}, s{sXCD}, {6 if RM == 204 else 2}')
        if RM == 202: a(f's_lshl_b32 s{sROT}, s{sROT}, 1')
    elif RM >= 100:
        a(f's_add_u32 s{sT}, s{sT}, s{sHL}'); a(f's_and_b32 s{sT}, s{sT}, 1'); a(f's_mul_i32 s{sT}, s{sT}, {RM-100}')
        a(f's_lshl_b32 s{sROT}, s{sHH}, 2'); a(f's_add_u32 s{sROT}, s{sROT}, s{sXCD}'); a(f's_add_u32 s{sROT}, s{sROT}, s{sT}'); a(f's_and_b32 s{sROT}, s{sROT}, 7')
    else: a(f's_add_u32 s{sROT}, s{sHL}, s{sT}'); a(f's_and_b32 s{sROT}, s{sROT}, {RM-1}'); a(f's_lshl_b32 s{sROT}, s{sROT}, {1 if RM == 4 else 2}')
def dma_setup(a, vd, t0, t1):
    rot_calc(a)
    a(f's_lshl_b32 s{sLB}, s{sW4}, 12')
    a(f'v_lshrrev_b32 v{t0}, 3, v0'); a(f'v_and_b32 v{t1}, 0x70, v{vL16}'); a(f'v_and_b32 v{vd+2}, 0x30, v0')
    a(f'v_xor_b32 v{vd+4}, v{t1}, v{vd+2}')
    a(f's_lshl_b32 s{sT}, s{sW4}, 4'); a(f's_add_u32 s{sT+1}, s{sT}, s{sROW0}')
    a(f'v_add_u32 v{vd+5}, s{sT+1}, v{t0}'); a(f'v_lshl_add_u32 v{vd+4}, v{vd+5}, 10, v{vd+4}')
    a(f'v_xor_b32 v{vd+5}, 64, v{vd+4}'); a(f'v_add_u32 v{vd+5}, {8192-1024}, v{vd+5}')
    a(f'v_and_b32 v{vd+2}, 16, v0'); a(f'v_lshlrev_b32 v{vd+2}, 1, v{vd+2}'); a(f'v_xor_b32 v{vd+2}, v{vd+2}, v{t1}')
    a(f'v_add_u32 v{t0}, s{sT}, v{t0}'); a(f'v_mul_u32_u24 v{t0}, 3072, v{t0}'); a(f's_lshl_b32 s{sT+1}, s{sHG}, 7')
    a(f'v_add3_u32 v{vd+2}, v{vd+2}, v{t0}, s{sT+1}')
    a(f'v_xor_b32 v{t0}, 64, v{vd+2}')
    a(f'v_add_u32 v{vd}, 1024, v{vd+2}'); a(f'v_add_u32 v{vd+1}, 24576, v{t0}'); a(f'v_add_u32 v{vd+3}, 23552, v{t0}')
    if QX: a(f'v_xor_b32 v{vd+6}, {QX*128}, v{vd+2}'); a(f'v_xor_b32 v{vd+7}, {QX*128}, v{vd+3}')
def dma_group(g, vd):
    adv = [f's_add_u32 s{sSX}, s{sROT}, {g}', f's_and_b32 s{sSX}, s{sSX}, 7', f's_lshl_b32 s{sSX}, s{sSX}, 7', f's_mul_i32 s{sSW}, s{sSX}, 1536']
    ld = lambda v, srdr, so, off: f'buffer_load_dwordx4 v{v}, {SR(srdr)}, s{so} offen' + (f' offset:{off}' if off else '') + ' lds'
    return [[f's_add_u32 m0, s{sLB}, {loc(g, "X")}'] + adv + [ld(vd+4, sX, sSX, 0)], [ld(vd+5, sX, sSX, 1024)],
            [f's_add_u32 m0, s{sLB}, {loc(g, "K")}', ld(vd, sWQ, sSW, 0)], [ld(vd+1, sWQ, sSW, 1024)],
            [f's_add_u32 m0, s{sLB}, {loc(g, "Q")}', ld(vd+2, sWQ, sSW, 2048)], [ld(vd+3, sWQ, sSW, 3072)],
            [ld(vd+(6 if QX else 2), sWQ, sSW, 0)], [ld(vd+(7 if QX else 3), sWQ, sSW, 1024)]]
def emit(a, b, thr=None):
    for l in b[:-1]: a(l)
    if thr is not None: a(f's_waitcnt vmcnt({thr})')
    a(b[-1])

sWu, sWo, sTo = sT+3, sT+4, sT+5
def wo_setup(a, vwo, t0, t1):
    a(f'v_and_b32 v{t1}, 0xf0, v{vL16}')
    a(f'v_lshrrev_b32 v{t0}, 4, v0'); a(f'v_lshlrev_b32 v{vwo}, 5, v{t0}'); a(f'v_xor_b32 v{t1}, v{t1}, v{vwo}')
    a(f'v_and_b32 v{vwo}, 128, v{t1}'); a(f'v_mad_u32_u24 v{t1}, v{vwo}, 3, v{t1}')
    a(f'v_lshl_add_u32 v{vwo}, v{t0}, 10, v{t1}'); a(f'v_xor_b32 v{vwo+1}, 512, v{vwo}'); a(f'v_add_u32 v{vwo+1}, 3072, v{vwo+1}')
    a(f's_lshl_b32 s{sTo}, s{sHL}, 7'); a(f's_lshl_b32 s{sWo}, s{sW4}, 13'); a(f's_add_u32 s{sWo}, s{sWo}, s{sTo}')
    a(f's_lshr_b32 s{sTo}, s{sIDX}, 2')
def wo_one(a, vwo, u, ii, thr=None):
    if ii == 0:
        a(f's_add_u32 m0, s{sLW}, {wo_unit(u)}')
        a(f's_add_u32 s{sWu}, s{sTo}, {u & 7}'); a(f's_and_b32 s{sWu}, s{sWu}, 7')
        if u >= 8: a(f's_or_b32 s{sWu}, s{sWu}, 8')
        a(f's_lshl_b32 s{sWu}, s{sWu}, 15'); a(f's_add_u32 s{sWu}, s{sWu}, s{sWo}')
    if thr is not None: a(f's_waitcnt vmcnt({thr})')
    a(f'buffer_load_dwordx4 v{vwo+ii}, {SR(sWO)}, s{sWu} offen' + (' offset:1024' if ii else '') + ' lds')
NG = opt('ng', 16)
def phi_pack(a, acc, n, out, tmp):
    for j in range(0, n, 2): a(f'v_pk_mul_f32 {V(tmp+j,2)}, {V(acc+j,2)}, s[{sL2E}:{sL2E+1}]')
    for j in range(n):
        a(f'v_exp_f32_e64 v{tmp+j}, v{tmp+j} clamp')
        a(f'v_max_f32 v{acc+j}, {F(1e-6)}, v{acc+j}')
    for j in range(0, n, 2): a(f'v_pk_add_f32 {V(tmp+j,2)}, {V(tmp+j,2)}, {V(acc+j,2)}')
    for j in range(0, n, 2): a(f'v_cvt_pk_bf16_f32 v{out+j//2}, v{tmp+j}, v{tmp+j+1}')
def sincos4(a, base, step, r0, c, s):
    for r in range(4):
        k = r0 + r
        if k == 0: a(f'v_mov_b32 v{s+r}, v{base}')
        else: a(f'v_fmamk_f32 v{s+r}, v{step}, {F(float(k))}, v{base}')
    for r in range(4): a(f'v_cos_f32 v{c+r}, v{s+r}')
    for r in range(4): a(f'v_sin_f32 v{s+r}, v{s+r}')
def mat6(a, dst, c, s):
    a(f'v_cvt_pk_bf16_f32 v{dst+2}, v{c}, v{c+1}'); a(f'v_cvt_pk_bf16_f32 v{dst+3}, v{c+2}, v{c+3}')
    a(f'v_cvt_pk_bf16_f32 v{dst+4}, v{s}, v{s+1}'); a(f'v_cvt_pk_bf16_f32 v{dst+5}, v{s+2}, v{s+3}')
    a(f'v_xor_b32 v{dst+0}, 0x80008000, v{dst+4}'); a(f'v_xor_b32 v{dst+1}, 0x80008000, v{dst+5}')
def cmul_pack(a, re, im, tc, ts, out, tmp, conj_out=False):
    for j in (0, 2):
        a(f'v_pk_mul_f32 {V(tmp+j,2)}, {V(re+j,2)}, {V(tc+j,2)}')
        a(f'v_pk_mul_f32 {V(tmp+4+j,2)}, {V(re+j,2)}, {V(ts+j,2)}')
    for j in (0, 2):
        a(f'v_pk_fma_f32 {V(tmp+j,2)}, {V(im+j,2)}, {V(ts+j,2)}, {V(tmp+j,2)} neg_lo:[1,0,0] neg_hi:[1,0,0]')
        a(f'v_pk_fma_f32 {V(tmp+4+j,2)}, {V(im+j,2)}, {V(tc+j,2)}, {V(tmp+4+j,2)}')
    n = '-' if conj_out else ''
    a(f'v_cvt_pk_bf16_f32 v{out}, v{tmp}, v{tmp+1}'); a(f'v_cvt_pk_bf16_f32 v{out+1}, v{tmp+2}, v{tmp+3}')
    a(f'v_cvt_pk_bf16_f32 v{out+2}, {n}v{tmp+4}, {n}v{tmp+5}'); a(f'v_cvt_pk_bf16_f32 v{out+3}, {n}v{tmp+6}, {n}v{tmp+7}')

TF=10; WF=74; ACA=138; ACB=154; PQ=170; KVF=186; YL=218; FT=234
HP = TF+32
def fin_table(a, hook=None, P=None, D=None):
    if P is None: P = YL; D = FT
    step = D+4; base = D+5; t0 = D+6; t1 = D+7
    a(f's_lshl_b32 s{sT}, s{sHL}, 6'); a(f's_lshl_b32 s{sT+1}, s{sW4}, 4'); a(f's_add_u32 s{sT}, s{sT}, s{sT+1}')
    a(f'v_and_b32 v{t0}, 15, v0'); a(f'v_add_u32 v{t0}, s{sT}, v{t0}'); a(f'v_cvt_f32_u32 v{step}, v{t0}'); a(f'v_mul_f32 v{step}, {F(1/512)}, v{step}')
    a(f'v_lshrrev_b32 v{t1}, 4, v0'); a(f'v_lshl_add_u32 v{t1}, v{t1}, 3, s{sKH}')
    a(f'v_cvt_f32_u32 v{base}, v{t1}'); a(f'v_mul_f32 v{base}, v{base}, v{step}')
    a(f'v_mul_f32 v{D+2}, {F(32.0)}, v{step}'); a(f'v_add_f32 v{step}, v{step}, v{step}')
    C = P; free = P+8
    sincos4(a, base, step, 0, C, C+4)
    a(f'v_cos_f32 v{D}, v{D+2}'); a(f'v_sin_f32 v{D+2}, v{D+2}')
    a(f'v_mov_b32 v{D+1}, v{D}'); a(f'v_mov_b32 v{D+3}, v{D+2}')
    hi = 0
    for n in range(8):
        S_ = C+4
        for j in range(4): a(f'v_cvt_pk_bf16_f32 v{TF+4*n+j}, v{C+j}, v{S_+j}')
        hook(hi); hi += 1
        if n < 7:
            for j in (0, 2, 4, 6): a(f'v_pk_mul_f32 {V(free+j,2)}, {V(C+j,2)}, {V(D,2)}')
            hook(hi); hi += 1
            for j in (0, 2):
                a(f'v_pk_fma_f32 {V(free+j,2)}, {V(S_+j,2)}, {V(D+2,2)}, {V(free+j,2)} neg_lo:[1,0,0] neg_hi:[1,0,0]')
                a(f'v_pk_fma_f32 {V(free+4+j,2)}, {V(C+j,2)}, {V(D+2,2)}, {V(free+4+j,2)}')
            C, free = free, C
            hook(hi); hi += 1
    a(f'v_lshlrev_b32 v{t0}, 31, v{t0}'); a(f'v_xor_b32 v{t0}, 0xbf003f00, v{t0}')
    a(f'v_cmp_eq_u32 vcc, 0, v{t1}'); a(f'v_cndmask_b32 v{TF}, v{TF}, v{t0}, vcc')

def srdc(a, d):
    n = {sX:0x200000, sWQ:512*3072, sWR:2048*514, sWI:2048*514, sWS:WS_SIZE, sGW:1024, sWO:512*1024, sOUT:0x200000}[d]
    a(f's_mov_b32 s{d+2}, {n}'); a(f's_mov_b32 s{d+3}, 0x20000')
def ids_gemm(a):
    a(f's_and_b32 s{sHH}, s2, 1'); a(f's_and_b32 s{sHL}, s{sIDX}, 3')
    if opt('hx', 0): a(f's_xor_b32 s{sHL}, s{sHL}, {opt("hx", 0)}')
    if opt('hhx', 0): a(f's_xor_b32 s{sHH}, s{sHH}, 1')
    a(f's_lshl_b32 s{sHG}, s{sHH}, 2'); a(f's_add_u32 s{sHG}, s{sHG}, s{sHL}')
    a(f's_and_b32 s{sROW0}, s2, 6'); a(f's_lshl_b32 s{sROW0}, s{sROW0}, 7')
    a(f's_and_b32 s{sT}, s{sIDX}, 12'); a(f's_lshl_b32 s{sT}, s{sT}, 4'); a(f's_add_u32 s{sROW0}, s{sROW0}, s{sT}')
    a(f's_and_b32 s{sT}, s{sIDX}, 16'); a(f's_lshl_b32 s{sT}, s{sT}, 6'); a(f's_add_u32 s{sROW0}, s{sROW0}, s{sT}')
def late_common(a):
    for d in (sWS, sWO, sOUT): srdc(a, d)
    a(f's_lshr_b32 s{sAT}, s{sROW0}, 5'); a(f's_add_u32 s{sAT}, s{sAT}, s{sHH}'); a(f's_lshr_b32 s{sKH}, s{sWV}, 2')
    a(f's_add_u32 s{sC}, s{sWS}, {WS_C}'); a(f's_addc_u32 s{sC+1}, s{sWS+1}, 0')
    a(f's_mul_i32 s{sT}, s{sP}, {NREP}'); a(f's_lshr_b32 s{sT}, s{sT}, 8'); a(f's_lshl_b32 s{sT}, s{sT}, 11'); a(f's_lshl_b32 s{sT+1}, s{sW4}, 9'); a(f's_add_u32 s{sT}, s{sT}, s{sT+1}')
    a(f's_add_u32 s{sPB}, s{sC}, s{sT}'); a(f's_addc_u32 s{sPB+1}, s{sC+1}, 0')

def build():
    a = Asm(); ST = Stamps(a); ST('start')
    a('s_cmp_ge_u32 s2, 256'); a(f's_cbranch_scc1 L_done')
    for d, off in ((sX,0),(sWQ,32),(sWR,8),(sWI,16),(sWS,72),(sGW,48),(sWO,40),(sOUT,56),(sDBG,64)):
        a(f's_load_dwordx2 s[{d}:{d+1}], s[0:1], {off}')
    a(f'v_readfirstlane_b32 s{sWV}, v0'); a('v_and_b32 v0, 63, v0')
    a(f's_and_b32 s{sXCD}, s2, 7'); a(f's_lshr_b32 s{sIDX}, s2, 3')
    a('s_getpc_b64 s[4:5]')
    a(f's_lshl_b32 s{sT}, s{sIDX}, 10'); a(f's_lshl_b32 s{sT+1}, s{sWV}, 1'); a(f's_add_u32 s{sT}, s{sT}, s{sT+1}')
    CP = opt('cp', 3)
    if CP in (1, 2): a(f's_load_dword s{sU}, s[4:5], s{sT}')
    if CP == 2: a(f's_add_u32 s{sT}, s{sT}, 64'); a(f's_load_dword s{sU}, s[4:5], s{sT}')
    if CP == 3:
        a(f'v_mov_b32 v{vS+5}, s{sT}'); a('s_mov_b64 exec, 1'); a(f'global_load_dword v{vS+5}, v{vS+5}, s[4:5]'); a('s_mov_b64 exec, -1')
    if CP == 4:
        a(f's_lshl_b32 s{sT+1}, s{sWV}, 4'); a(f'v_lshl_add_u32 v{vS+5}, v0, 7, s{sT+1}'); a(f'v_writelane_b32 v{vS+5}, s{sT}, 8')
        a('s_mov_b64 exec, 0x1ff'); a(f'global_load_dword v{vS+5}, v{vS+5}, s[4:5]'); a('s_mov_b64 exec, -1')
    a(f's_lshr_b32 s{sWV}, s{sWV}, 6'); a(f'v_lshlrev_b32 v{vL16}, 4, v0')
    a(f's_and_b32 s{sW4}, s{sWV}, 3'); a(f's_lshl_b32 s{sLW}, s{sW4}, 11')
    a(f'v_mov_b32 v{vSY}, {L_SY}'); a(f'v_mov_b32 v{vS}, 0'); a(f'v_mov_b32 v{vS+1}, 0')
    a(f'v_lshl_add_u32 v{vPA}, s{sWV}, 2, v{vSY}')
    a(f'ds_write_b32 v{vPA}, v{vS}'); a(f'ds_write_b64 v{vSY}, {V(vS,2)} offset:32')
    srdc(a, sX)
    a(f's_lshl_b32 s{sP}, s{sXCD}, 5'); a(f's_add_u32 s{sP}, s{sP}, s{sIDX}')
    a(f's_cmp_ge_u32 s{sWV}, 4'); a('s_cbranch_scc1 L_G0')
    names0 = list(ST.names)
    H = gen_H0(a, ST); nH = list(ST.names)
    a('s_branch L_H1')
    a.label('L_G0'); a.hist = []; ST.names = list(names0)
    G = gen_G0(a, ST); nG = list(ST.names)
    a('s_branch L_G1')
    a.label('L_H1'); a.hist = []; ST.names = nH
    hiH = gen_H(a, ST, H); nH = list(ST.names)
    a('s_branch L_FIN')
    a.label('L_G1'); a.hist = []; ST.names = nG
    hiG = gen_G(a, ST, G)
    while len(ST.names) < len(nH): ST.names.append('-')
    a.label('L_FIN'); a.hist = []
    gen_FIN(a, ST)
    a.label('L_done'); a('s_endpgm')
    gen_special(a)
    if STAMP: print('H:', nH, '\nG:', ST.names, file=sys.stderr)
    print('instrs', a.count, 'nops', a.nops, 'vgprs', hiH, hiG, file=sys.stderr)
    return a

SP = {}
NT = 'nt ' if opt('wnt', 1) else ''
def rloads(a):
    a(f'buffer_load_dwordx4 v{vL16}, {SR(sX)}, s{sT+6} offen lds')
    a(f'buffer_load_dwordx4 v{vL16}, {SR(sX)}, s{sT+7} offen offset:1024 lds')
def wloads(a, vWs, e0, e1, e3):
    if opt('rpos', 0): a(f's_add_u32 m0, s{sLW}, {L_P1X}'); rloads(a)
    a(f's_add_u32 m0, s{sLW}, {L_WRAW}'); a(f'buffer_load_dwordx4 v{vWs}, {SR(sWR)}, s{sT+3} offen {NT}lds')
    a(f's_add_u32 m0, s{sLW}, {L_WRAW+1024}'); a(f'buffer_load_dwordx4 v{vWs}, {SR(sWI)}, s{sT+3} offen {NT}lds')
    a('s_mov_b64 exec, 0xffff')
    a(f'buffer_load_ushort v{e0}, v{e3}, {SR(sWR)}, 0 offen')
    a(f'buffer_load_ushort v{e1}, v{e3}, {SR(sWI)}, 0 offen')
    a('s_mov_b64 exec, -1')
def gen_H0(a, ST):
    R = Regs(VBASE)
    t0, t1, vWs = R.alloc(), R.alloc(), R.alloc()
    srdc(a, sWR); srdc(a, sWI)
    if opt('noh', 0): a(f's_mov_b32 s{sWR+2}, 0'); a(f's_mov_b32 s{sWI+2}, 0'); a(f's_mov_b32 s{sX+2}, 0')
    a(f's_lshl_b32 s{sT}, s{sXCD}, 17'); a(f's_lshl_b32 s{sT+1}, s{sW4}, 15'); a(f's_add_u32 s{sT}, s{sT}, s{sT+1}')
    a(f's_lshl_b32 s{sT+1}, s{sIDX}, 10'); a(f's_add_u32 s{sT}, s{sT}, s{sT+1}'); a(f's_add_u32 s{sT+1}, s{sT}, {1024*1024-1024}')
    a(f'v_lshrrev_b32 v{t0}, 4, v0'); a(f'v_mul_u32_u24 v{vWs}, {64*514-256}, v{t0}'); a(f'v_add_u32 v{vWs}, v{vWs}, v{vL16}')
    a(f's_and_b32 s{sT+2}, s{sP}, 63'); a(f's_and_b32 s{sT+3}, s{sP}, 0xc0'); a(f's_lshl_b32 s{sT+3}, s{sT+3}, 2'); a(f's_add_u32 s{sT+2}, s{sT+2}, s{sT+3}')
    a(f's_and_b32 s{sT+3}, s{sW4}, 1'); a(f's_lshl_b32 s{sT+3}, s{sT+3}, 10'); a(f's_add_u32 s{sT+2}, s{sT+2}, s{sT+3}')
    a(f's_mul_i32 s{sT+3}, s{sT+2}, 514')
    a(f's_and_b32 s{sT+4}, s{sW4}, 2'); a(f's_lshl_b32 s{sT+4}, s{sT+4}, 7'); a(f's_add_u32 s{sT+3}, s{sT+3}, s{sT+4}')
    e0, e1, e2, e3 = [R.alloc() for _ in range(4)]
    a(f'v_and_b32 v{t1}, 3, v0'); a(f'v_lshl_add_u32 v{e0}, v{t1}, 6, s{sT+2}')
    a(f'v_sub_u32 v{e1}, 0x800, v{e0}'); a(f'v_and_b32 v{e1}, 0x7ff, v{e1}')
    a(f'v_and_b32 v{e2}, 8, v0'); a(f'v_cmp_eq_u32 vcc, 0, v{e2}'); a(f'v_and_b32 v{e2}, 4, v0'); a(f'v_lshlrev_b32 v{e2}, 7, v{e2}')
    a(f'v_cndmask_b32 v{e0}, v{e1}, v{e0}, vcc'); a(f'v_mul_u32_u24 v{e0}, 514, v{e0}'); a(f'v_add_u32 v{e3}, v{e0}, v{e2}')
    srdc(a, sGW)
    a(f's_lshr_b32 s{sT+5}, s{sLW}, 2'); a(f's_and_b32 s{sT+4}, s{sT+5}, 512')
    a(f's_add_u32 m0, s{sLW}, {L_P1X}')
    a('s_waitcnt lgkmcnt(0)'); ST('karg')
    a(f's_mov_b32 s{sT+6}, s{sT}'); a(f's_mov_b32 s{sT+7}, s{sT+1}')
    a(f's_add_u32 s{sU}, s{sIDX}, s{sLW}'); a(f's_cmp_eq_u32 s{sU}, {28+3*2048}'); a('s_cbranch_scc1 L_sp5'); a.label('L_sp5r')
    if opt('rpos', 0) == 0: rloads(a)
    a(f's_add_u32 m0, s{sT+5}, {L_GW}'); a('s_mov_b32 exec_hi, 0')
    a(f'buffer_load_dwordx4 v{vL16}, {SR(sGW)}, s{sT+4} offen lds'); a('s_mov_b32 exec_hi, -1')
    if opt('wpos', 2) == 0: wloads(a, vWs, e0, e1, e3)
    return R, t0, t1, vWs, e0, e1, e2, e3

def gen_H(a, ST, H):
    R, t0, t1, vWs, e0, e1, e2, e3 = H
    vl15, fl15, fg4 = R.alloc(), R.alloc(), R.alloc()
    a(f'v_and_b32 v{vl15}, 15, v0'); a(f'v_cvt_f32_u32 v{fl15}, v{vl15}')
    a(f'v_lshlrev_b32 v{fg4}, 2, v{t0}'); a(f'v_cvt_f32_u32 v{fg4}, v{fg4}')
    F16T = R.alloc(6); tc = R.alloc(8); ts = R.alloc(8); base = R.alloc(); step = R.alloc()
    a(f'v_mul_f32 v{step}, {F(1/16)}, v{fl15}'); a(f'v_mul_f32 v{base}, v{fg4}, v{step}')
    sincos4(a, base, step, 0, tc, ts); mat6(a, F16T, tc, ts)
    F32T = R.alloc(24); m = R.alloc(); mo = R.alloc()
    a(f'v_mul_f32 v{step}, {F(1/32)}, v{fl15}'); a(f'v_mul_f32 v{base}, v{fg4}, v{step}')
    sincos4(a, base, step, 0, tc, ts); mat6(a, F32T, tc, ts)
    a(f'v_and_b32 v{mo}, 1, v{vl15}'); a(f'v_sub_u32 v{mo}, 0, v{mo}'); a(f'v_and_b32 v{mo}, 0x80008000, v{mo}')
    for j in range(6):
        a(f'v_xor_b32 v{F32T+6+j}, v{mo}, v{F32T+j}'); a(f'v_xor_b32 v{F32T+12+j}, 0x80000000, v{F32T+j}'); a(f'v_xor_b32 v{F32T+18+j}, 0x80000000, v{F32T+6+j}')
    a(f'v_mul_f32 v{step}, {F(-1/512)}, v{fl15}'); a(f'v_mul_f32 v{base}, v{fg4}, v{step}')
    sincos4(a, base, step, 0, tc, ts); sincos4(a, base, step, 16, tc+4, ts+4)
    if opt('wpos', 2) == 1: wloads(a, vWs, e0, e1, e3)
    aT = R.alloc(); aZ = R.alloc(); aO = R.alloc(4); stp = R.alloc(); aWt = R.alloc(); aWp = R.alloc()
    a(f'v_lshrrev_b32 v{t0}, 2, v0'); a(f'v_lshlrev_b32 v{aWt}, 3, v{t1}'); a(f'v_lshl_add_u32 v{aT}, v{t0}, 6, v{aWt}')
    a(f's_add_u32 s{sT}, s{sLW}, {L_P1X}'); a(f'v_add_u32 v{aT}, s{sT}, v{aT}')
    a(f'v_bfe_u32 v{m}, v0, 2, 1'); a(f'v_lshl_add_u32 v{aWt}, v{m}, 10, v{aWt}')
    a(f'v_bfe_u32 v{m}, v0, 3, 1'); a(f'v_lshl_add_u32 v{aWt}, v{m}, 8, v{aWt}')
    a(f'v_lshrrev_b32 v{m}, 4, v0'); a(f'v_lshl_add_u32 v{aWt}, v{m}, 5, v{aWt}')
    a(f's_add_u32 s{sT}, s{sLW}, {L_WRAW}'); a(f'v_add_u32 v{aWt}, s{sT}, v{aWt}')
    a(f's_and_b32 s{sT}, s{sW4}, 1'); a(f's_mul_i32 s{sT+1}, s{sT}, {264*4}'); a(f's_add_u32 s{sT+1}, s{sT+1}, {L_PL+520*4}')
    aA_, aB_ = R.alloc(), R.alloc()
    a(f'v_mul_u32_u24 v{aA_}, {PS*4}, v{t1}')
    a(f's_lshl_b32 s{sT+2}, s{sT}, 2'); a(f's_add_u32 s{sT+2}, s{sT+2}, {L_PL+1040*4}'); a(f'v_add_u32 v{aB_}, s{sT+2}, v{aA_}')
    a(f'v_add_u32 v{aA_}, s{sT+1}, v{aA_}')
    a(f's_and_b32 s{sT+2}, s{sW4}, 2'); a(f's_lshl_b32 s{sT+2}, s{sT+2}, 8'); a(f's_add_u32 s{sT+1}, s{sT+1}, s{sT+2}'); a(f'v_lshl_add_u32 v{aWp}, v0, 2, s{sT+1}')
    a(f'v_lshlrev_b32 v{m}, 4, v{m}'); a(f'v_lshl_add_u32 v{aZ}, v{vl15}, 6, v{m}')
    a(f's_mul_i32 s{sT}, s{sW4}, {PS*4}'); a(f's_add_u32 s{sT}, s{sT}, {L_PL}'); a(f'v_add_u32 v{aZ}, s{sT}, v{aZ}')
    a(f's_lshl_b32 s{sT}, s{sW4}, 6'); a(f'v_add_u32 v{t0}, s{sT}, v{t0}')
    a(f'v_cmp_eq_u32 vcc, 1, v{t1}')
    a(f'v_sub_u32 v{aO}, 512, v{t0}'); a(f'v_mov_b32 v{stp}, 64'); a(f'v_mov_b32 v{aO+1}, -64')
    a(f'v_cndmask_b32 v{aO}, v{t0}, v{aO}, vcc'); a(f'v_cndmask_b32 v{stp}, v{stp}, v{aO+1}, vcc')
    a(f'v_cmp_eq_u32 vcc, 2, v{t1}'); a(f'v_add_u32 v{aO+1}, 520, v{t0}'); a(f'v_add_u32 v{aO+2}, 784, v{t0}'); a(f'v_cndmask_b32 v{aO}, v{aO}, v{aO+1}, vcc')
    a(f'v_cmp_eq_u32 vcc, 3, v{t1}'); a(f'v_mov_b32 v{t0}, {L_PL+1024}'); a(f's_mov_b32 s{sT}, {L_PL}'); a(f'v_cndmask_b32 v{aO}, v{aO}, v{aO+2}, vcc')
    a(f'v_lshl_add_u32 v{aO}, v{aO}, 2, s{sT}')
    for j in range(1,4): a(f'v_add_u32 v{aO+j}, v{aO+j-1}, v{stp}')
    a(f'v_cmp_eq_u32 vcc, {L_PL+2048}, v{aO}'); a(f'v_and_b32 v{t1}, 1, v0'); a(f's_mov_b32 s{sT}, {L_PL+1040*4}'); a(f'v_cndmask_b32 v{aO}, v{aO}, v{t0}, vcc')
    a(f'v_lshl_add_u32 v{stp}, v{t1}, 2, s{sT}')
    if opt('wpos', 2) == 2: wloads(a, vWs, e0, e1, e3)
    ids_gemm(a); late_common(a); rot_calc(a)
    X = R.alloc(8); Dr = R.alloc(8); Di = R.alloc(8); tmp = R.alloc(8); IN = R.alloc(32); P = IN; Wt = IN+16; GX = IN+24
    a('s_waitcnt lgkmcnt(0)')
    dp = 'row_mask:0xf bank_mask:0xf'
    def p1():
        ST('const'); a(f's_waitcnt vmcnt({4 if opt("wpos", 2) < 3 else 0})'); ST('rows')
        for t in range(2):
            for rho in range(2): a(f'ds_read_b64_tr_b16 {V(X+t*4+rho*2,2)}, v{aT} offset:{rho*1024+t*32}')
        for t in range(2):
            a(LG(2-2*t))
            a(f'{M16} {V(Dr+4*t,4)}, {V(X+4*t,4)}, {V(F16T+2,4)}, 0'); a(f'{M16} {V(Di+4*t,4)}, {V(X+4*t,4)}, {V(F16T,4)}, 0')
        for t in range(2): cmul_pack(a, Dr+4*t, Di+4*t, tc+4*t, ts+4*t, X+4*t, tmp)
        for t in range(2):
            for u in range(2):
                T = F32T + (u*2+t)*6
                a(f'{M16} {V(Dr+4*u,4)}, {V(X+4*t,4)}, {V(T+2,4)}, {"0" if t==0 else V(Dr+4*u,4)}')
                a(f'{M16} {V(Di+4*u,4)}, {V(X+4*t,4)}, {V(T,4)}, {"0" if t==0 else V(Di+4*u,4)}')
        a('s_mov_b64 exec, 1')
        a(f'v_add_f32 v{tmp}, v{Dr}, v{Di+4}'); a(f'v_sub_f32 v{Dr}, v{Dr}, v{Di+4}'); a(f'v_sub_f32 v{Di+4}, v{Di}, v{Dr+4}'); a(f'v_add_f32 v{Di}, v{Di}, v{Dr+4}'); a(f'v_mov_b32 v{Dr+4}, v{tmp}')
        a('s_mov_b64 exec, -1')
        for u in range(2):
            for r in range(4): a(f'v_cvt_pk_bf16_f32 v{P+4*u+r}, v{Dr+4*u+r}, v{Di+4*u+r}')
            a(f'ds_write_b128 v{aZ}, {V(P+4*u,4)} offset:{u*1024}')
        a(f's_add_u32 s{sU}, s{sIDX}, s{sLW}'); a(f's_cmp_eq_u32 s{sU}, {28+3*2048}'); a('s_cbranch_scc1 L_sp6'); a.label('L_sp6r')
        ST('p1')
    P1I = opt('p1i', -1)
    if P1I < 0: p1()
    if opt('wpos', 2) == 3: wloads(a, vWs, e0, e1, e3)
    def wprep():
        a('s_waitcnt vmcnt(0)'); ST('_wv')
        for cg in range(2):
            for hf in range(2): a(f'ds_read_b64_tr_b16 {V(Wt+4*cg+2*hf,2)}, v{aWt} offset:{cg*128+hf*512}')
        a(f'v_lshlrev_b32 v{e0}, 16, v{e0}'); a(f'v_lshlrev_b32 v{e1}, 16, v{e1}')
        a(f'v_mul_f32 v{e0}, 0x3e800000, v{e0}'); a(f'v_mul_f32 v{e1}, 0x3e800000, v{e1}')
        a(f'v_add_f32_dpp v{e2}, v{e0}, v{e0} row_ror:8 {dp}'); a(f'v_subrev_f32_dpp v{e3}, v{e1}, v{e1} row_ror:8 {dp}')
        a(f'v_add_f32_dpp v{e0}, v{e2}, v{e2} row_ror:12 {dp}'); a(f'v_add_f32_dpp v{e1}, v{e3}, v{e3} row_ror:12 {dp}')
        a(f'v_subrev_f32_dpp v{tmp}, v{e2}, v{e2} row_ror:12 {dp}'); a(f'v_subrev_f32_dpp v{tmp+1}, v{e3}, v{e3} row_ror:12 {dp}')
        a(f'v_cvt_pk_bf16_f32 v{e0}, v{e0}, v{e1}'); a(f'v_cvt_pk_bf16_f32 v{e1}, v{tmp}, v{tmp+1}')
        a('s_waitcnt lgkmcnt(0)')
        for r in range(4): a(f'ds_write2st64_b32 v{aWp}, v{Wt+r}, v{Wt+4+r} offset0:{r*17} offset1:{r*17+1}')
        a('s_mov_b64 exec, 15')
        a(f'ds_write_b32 v{aA_}, v{e0}'); a(f'ds_write_b32 v{aB_}, v{e1}')
        a('s_mov_b64 exec, -1')
    R.free(vWs)
    if P1I < 0:
        for r, n in ((F16T,6),(aT,1),(aZ,1)): R.free(r, n)
    wc = R.alloc(8); wsn = R.alloc(8)
    B1 = R.alloc(32); tw2c = R.alloc(8); tw2s = R.alloc(8); F64 = R.alloc(24); tw1c = tc; tw1s = ts
    c = Dr; s = Dr+4; fk = R.alloc(); m2 = R.alloc()
    vA, aW, aWr, aE, aI, aO1, aO2, aOr, vY, aGx, aGw, gacc, aI2 = [R.alloc() for _ in range(13)]
    r = Rec()
    sR, sI = sT+4, sT+5
    a(f's_lshl_b32 s{sT}, s{sHH}, 13'); a(f's_and_b32 s{sT+1}, s{sW4}, 2'); a(f's_lshl_b32 s{sT+1}, s{sT+1}, 11'); a(f's_add_u32 s{sT}, s{sT}, s{sT+1}')
    a(f's_and_b32 s{sT+1}, s{sW4}, 1'); a(f's_lshl_b32 s{sT+1}, s{sT+1}, 10'); a(f's_add_u32 s{sT}, s{sT}, s{sT+1}')
    a(f'v_add_u32 v{aGx}, s{sT}, v{vL16}')
    a(f'v_lshrrev_b32 v{t0}, 4, v{aGx}'); a(f'v_xor_b32 v{t0}, v{t0}, v{aGx}'); a(f'v_and_b32 v{t0}, 0x70, v{t0}'); a(f's_lshl_b32 s{sT}, s{sROT}, 7'); a(f's_add_u32 s{sT}, s{sT}, {L_GW}'); a(f'v_add_u32 v{aGw}, s{sT}, v{t0}')
    a(f'v_mov_b32 v{gacc}, 0')
    r(f'v_lshrrev_b32 v{t0}, 2, v0'); r(f'v_and_b32 v{t1}, 3, v0')
    r(f'v_mul_u32_u24 v{vA}, {ZSTRIDE}, v{t0}'); r(f'v_lshl_add_u32 v{vA}, v{t1}, 4, v{vA}')
    r(f'v_lshlrev_b32 v{aW}, 4, v{t0}'); r(f'v_and_b32 v{t0}, 1, v{t1}'); r(f'v_lshl_add_u32 v{aW}, v{t0}, 8, v{aW}')
    r(f'v_lshrrev_b32 v{t0}, 1, v{t1}'); r(f'v_lshl_add_u32 v{aW}, v{t0}, 13, v{aW}')
    r(f's_lshl_b32 s{sT}, s{sW4}, 10'); r(f's_add_u32 s{sT+1}, s{sT}, {L_IN}'); r(f'v_add_u32 v{aW}, s{sT+1}, v{aW}')
    r([f's_cmp_eq_u32 s{sP}, 0', f's_mov_b32 s{sT+1}, {L_EX}', f's_cmov_b32 s{sT+1}, {L_IN+8192}', f'v_add_u32 v{aI2}, s{sT+1}, v{vL16}']); r(f'v_add_u32 v{aE}, s{sT}, v{aI2}')
    r(f'v_add_u32 v{aI}, {L_IN}, v{vL16}')
    r(f'v_lshrrev_b32 v{t0}, 4, v0'); r(f'v_lshlrev_b32 v{aWr}, 10, v{t0}'); r(f'v_lshl_add_u32 v{aWr}, v{vl15}, 4, v{aWr}')
    r(f's_and_b32 s{sT}, s{sW4}, 1'); r(f's_lshl_b32 s{sT}, s{sT}, 12'); r(f's_lshr_b32 s{sT+1}, s{sW4}, 1'); r(f's_lshl_b32 s{sT+1}, s{sT+1}, 9')
    r(f's_add_u32 s{sT}, s{sT}, s{sT+1}'); r(f's_add_u32 s{sT}, s{sT}, {L_IN+8192}'); r(f'v_add_u32 v{aWr}, s{sT}, v{aWr}')
    r(f'v_and_b32 v{t1}, 7, v0'); r(f'v_xor_b32 v{t0}, v{t0}, v{t1}'); r(f'v_lshlrev_b32 v{t0}, 4, v{t0}')
    r(f'v_lshl_add_u32 v{aO1}, v{vl15}, 7, v{t0}'); r(f's_add_u32 s{sT}, s{sLW}, {L_OT}'); r(f'v_add_u32 v{aO1}, s{sT}, v{aO1}'); r(f'v_xor_b32 v{aO2}, 64, v{aO1}')
    r(f'v_lshrrev_b32 v{t0}, 3, v0'); r(f'v_xor_b32 v{aOr}, v{t1}, v{t0}'); r(f'v_lshlrev_b32 v{aOr}, 4, v{aOr}'); r(f'v_lshl_add_u32 v{aOr}, v{t0}, 7, v{aOr}'); r(f'v_add_u32 v{aOr}, s{sT}, v{aOr}')
    r(f'v_mul_u32_u24 v{t0}, {YA}, v{vl15 if opt("yd", 0) else t0}'); r([f'v_lshrrev_b32 v{t1}, 4, v0' if opt('yd', 0) else 's_nop 0', f'v_lshl_add_u32 v{vY}, v{t1}, 4, v{t0}'])
    r(f's_lshl_b32 s{sT}, s{sW4}, 4'); r(f'v_add_u32 v{t0}, s{sT}, v{vl15}'); r(f'v_cvt_f32_u32 v{fk}, v{t0}')
    r(f'v_cvt_f32_u32 v{t0}, s{sT}'); r(f'v_add_f32 v{t0}, v{t0}, v{fg4}')
    for t in range(2):
        if t == 0: r(f'v_mul_f32 v{step}, {F(-1/2048)}, v{fl15}')
        else: r(f'v_add_f32 v{step}, {F(-16/2048)}, v{step}')
        r(f'v_mul_f32 v{base}, v{t0}, v{step}')
        sincos4(r, base, step, 0, tw2c+4*t, tw2s+4*t)
    r(f'v_mul_f32 v{step}, {F(-1/64)}, v{fk}')
    r(f'v_lshrrev_b32 v{t0}, 5, v0'); r(f'v_lshlrev_b32 v{t0}, 2, v{t0}'); r(f'v_cvt_f32_u32 v{t0}, v{t0}')
    r(f'v_bfe_u32 v{t1}, v0, 4, 1')
    r(f'v_xor_b32 v{m}, v{t1}, v0'); r(f'v_lshlrev_b32 v{m}, 31, v{m}'); r(f'v_xor_b32 v{base}, {F(-0.125)}, v{m}')
    r(f'v_lshlrev_b32 v{m}, 31, v{t1}'); r(f'v_fmac_f32 v{base}, v{t0}, v{step}')
    r(f's_mov_b32 s{sSC}, {F(math.sqrt(0.5))}'); r(f's_mov_b32 s{sSC+1}, {F(math.sqrt(0.5))}')
    for k in range(2):
        sincos4(r, base, step, 8*k, c, s)
        for i in range(4):
            r(f'v_cvt_pk_bf16_f32 v{B1+k*8+i}, v{c+i}, -v{s+i}'); r(f'v_cvt_pk_bf16_f32 v{B1+k*8+4+i}, v{s+i}, v{c+i}')
        for i in range(8): r(f'v_xor_b32 v{B1+k*8+i}, v{m}, v{B1+k*8+i}')
    r('s_mov_b32 s4, 0xaaaaaaaa'); r('s_mov_b32 s5, 0xaaaaaaaa')
    r(f'v_bfe_i32 v{m2}, v0, 1, 1'); r(f'v_and_b32 v{m2}, 0x80008000, v{m2}'); r(f'v_xor_b32 v{m}, v{m2}, v{mo}')
    for k in range(2):
        for i in range(4):
            re_, im_ = B1+k*8+i, B1+k*8+4+i
            r(f'v_cndmask_b32 v{re_+16}, v{re_}, v{im_}, s[4:5]'); r(f'v_cndmask_b32 v{im_+16}, v{im_}, v{re_}, s[4:5]')
            r(f'v_xor_b32 v{re_+16}, v{m2}, v{re_+16}'); r(f'v_xor_b32 v{im_+16}, v{m}, v{im_+16}')
    r(f'v_mul_f32 v{step}, {F(-1/2048)}, v{fk}'); r(f'v_mul_f32 v{base}, v{fg4}, v{step}')
    sincos4(r, base, step, 0, tw1c, tw1s); sincos4(r, base, step, 16, tw1c+4, tw1s+4)
    for j in range(0, 8, 2):
        r(f'v_pk_mul_f32 {V(tw1c+j,2)}, {V(tw1c+j,2)}, s[{sSC}:{sSC+1}]'); r(f'v_pk_mul_f32 {V(tw1s+j,2)}, {V(tw1s+j,2)}, s[{sSC}:{sSC+1}]')
    r(f'v_mul_f32 v{step}, {F(1/64)}, v{fk}'); r(f'v_mul_f32 v{base}, v{fg4}, v{step}')
    for k in range(2):
        sincos4(r, base, step, 16*k, c, s); mat6(r, F64+6*k, c, s)
    for j in range(12): r(f'v_xor_b32 v{F64+12+j}, v{mo}, v{F64+j}')
    pend = list(r.l)
    def fill(n):
        while n > 0 and pend:
            x = pend.pop(0)
            for y in (x if isinstance(x, list) else [x]): a(y)
            n -= 1
    print('H const entries', len(pend), file=sys.stderr)
    def readout():
        for j in range(4):
            a(f'ds_read2st64_b32 {V(P+4*j,2)}, v{aO+j} offset0:0 offset1:17'); a(f'ds_read2st64_b32 {V(P+4*j+2,2)}, v{aO+j} offset0:34 offset1:51')
        a(f'ds_read2st64_b32 {V(Wt,2)}, v{stp} offset0:0 offset1:17'); a(f'ds_read2st64_b32 {V(Wt+2,2)}, v{stp} offset0:34 offset1:51')
        a(f's_mul_i32 s{sT}, s{sP}, {ZSTRIDE}'); a(f's_lshl_b32 s{sT+1}, s{sW4}, 12'); a(f's_add_u32 s{sT+1}, s{sT}, s{sT+1}')
        for j in range(4):
            a(LG(8-2*j))
            a(f'buffer_store_dwordx4 {V(P+4*j,4)}, v{vL16}, {SR(sWS)}, s{sT+1} offen offset:{j*1024} sc1')
        Lx = a.newlabel('x')
        a(f's_cmp_lg_u32 s{sW4}, 0'); a(f's_cbranch_scc1 {Lx}')
        a(f's_and_b32 s{sT}, s{sP}, 0x30'); a(f's_lshl_b32 s{sT}, s{sT}, 7'); a(f's_and_b32 s{sT+1}, s{sP}, 15'); a(f's_lshl_b32 s{sT+1}, s{sT+1}, 4'); a(f's_add_u32 s{sT}, s{sT}, s{sT+1}')
        a(f's_and_b32 s{sT+1}, s{sP}, 0xc0'); a(f's_lshl_b32 s{sT+1}, s{sT+1}, 2'); a(f's_add_u32 s{sT}, s{sT}, s{sT+1}'); a(f's_add_u32 s{sT}, s{sT}, {WS_B}')
        a(f'v_lshlrev_b32 v{tmp}, 10, v0')
        a('s_waitcnt lgkmcnt(0)'); a('s_mov_b64 exec, 3')
        a(f'buffer_store_dwordx4 {V(Wt,4)}, v{tmp}, {SR(sWS)}, s{sT} offen sc1')
        a('s_mov_b64 exec, -1')
        a(f's_cmp_ge_u32 s{sP}, 64'); a(f's_cbranch_scc1 {Lx}')
        for j in range(4): a(f'v_mov_b32 v{tmp+j}, 0')
        a(f's_lshl_b32 s{sT}, s{sP}, 10'); a(f's_add_u32 s{sT}, s{sT}, {WS_KV}')
        a(f'buffer_store_dwordx4 {V(tmp,4)}, v{vL16}, {SR(sWS)}, s{sT} offen sc1'); a('s_nop 1')
        a.label(Lx)
        ST('zst')
    per = opt('hfill', 32)
    FB = opt('fb', 3)
    PI = opt('pi', 5)
    sMs = sT+3
    def f1poll(): poll2(a, C_F1)
    def f1test(): test2(a)
    a(f's_mul_i32 s{sMs}, s{sW4}, {64*ZSTRIDE}'); a(f's_lshl_b32 s{sT+1}, s{sP}, 6'); a(f's_add_u32 s{sMs}, s{sMs}, s{sT+1}')
    Bv = R.alloc(8) if False else P - 0
    def msgs():
        Lm = a.newlabel('m')
        a(f's_cmp_lg_u32 s{sP}, 0'); a(f's_cbranch_scc1 {Lm}')
        a(f's_getpc_b64 s[{sSX}:{sSX+1}]'); a('s_branch L_sp3')
        a.label(Lm)
        for j in range(4):
            if j: a(f's_add_u32 s{sMs}, s{sMs}, {16*ZSTRIDE}')
            a(f'buffer_load_dwordx4 {V(IN+4*j,4)}, v{vA}, {SR(sWS)}, s{sMs} offen sc1')
        arrive(a, 3)
    WI = opt('wi', 0)
    if P1I >= 0:
        fill(44); a(f's_waitcnt vmcnt({6 if opt("rpos", 0) else 4})')
    NZ = 8
    fill(opt('hp', 60))
    for cch in range(7):
        if cch == FB: a('s_waitcnt vmcnt(0)')
        ST(f'_hb{cch}')
        a('s_barrier')
        ST(f'_hc{cch}')
        if cch in (1, 2, 4, 6): ST(f'B{cch}')
        if cch == WI+1 and not opt('noh', 0): readout()
        if cch == P1I: p1()
        if loc(cch, 'X') < 65536: a(f'ds_read_b128 {V(GX,4)}, v{aGx} offset:{loc(cch, "X")}')
        else: a(f'v_add_u32 v{GX}, {loc(cch, "X")}, v{aGx}'); a(f'ds_read_b128 {V(GX,4)}, v{GX}')
        a(f'ds_read_b128 {V(GX+4,4)}, v{aGw} offset:{cch*128}')
        nf = opt('h6', 16) if cch == 6 else (opt('h0', 40) if (cch == 0 and P1I < 0) else (per if cch > WI+1 else opt('h1', 20)))
        early = cch > WI+1
        if early and cch not in (FB, 6): fill(10); nf -= 10
        if not early:
            fill(nf); nf = 0
            if cch == WI and not opt('noh', 0): wprep()
        a('s_waitcnt lgkmcnt(0)')
        if cch == FB: signal(a, C_F1, sXCD, True)
        if cch == FB-1:
            Lr = a.newlabel('r'); Lr2 = a.newlabel('r')
            a(f's_cmp_lg_u32 s{sW4}, 0'); a(f's_cbranch_scc1 {Lr2}')
            a(f's_mov_b32 s{sCNT}, 0x2000')
            a.label(Lr)
            a(f's_cmp_ge_u32 s{sR0}, {NZ}'); a(f's_cbranch_scc1 {Lr2}')
            a('s_sleep 8'); a(f's_load_dword s{sR0}, s[{sDBG}:{sDBG+1}], 0 glc'); a('s_waitcnt lgkmcnt(0)')
            a(f's_sub_u32 s{sCNT}, s{sCNT}, 1'); a(f's_cbranch_scc0 {Lr}')
            a.label(Lr2)
        if cch == FB-2:
            Lw = a.newlabel('w')
            a(f's_cmp_lg_u32 s{sW4}, 0'); a(f's_cbranch_scc1 {Lw}')
            a(f's_load_dword s{sR0}, s[{sDBG}:{sDBG+1}], 0'); a.label(Lw)
        if cch == opt('mp', -1):
            a(f's_lshl_b32 s{sT+6}, s{sP}, 11'); a(f's_lshl_b32 s{sT+7}, s{sW4}, 9'); a(f's_add_u32 s{sT+6}, s{sT+6}, s{sT+7}')
            a(f's_add_u32 s{sT+6}, s{sWO}, s{sT+6}'); a(f's_addc_u32 s{sT+7}, s{sWO+1}, 0')
            for j in range(8): a(f's_load_dword s{sU}, s[{sT+6}:{sT+7}], {64*j}')
        if cch == PI:
            assert PI > FB and PI < 6
            f1poll()
            a(f's_cmp_eq_u32 s{sP}, 0'); a('s_cbranch_scc1 L_sp4'); a.label('L_sp4r')
        if cch == 6:
            Ll = a.newlabel('late')
            a(f's_mov_b32 s{sCNT}, 0x2000')
            f1test(); a(f's_cbranch_scc1 {Ll}')
            msgs()
            a(f's_mov_b32 s{sCNT}, 0')
            a.label(Ll)
        for j in range(4): a(f'v_dot2_f32_bf16 v{gacc}, v{GX+j}, v{GX+4+j}, v{gacc}')
        fill(nf)
    a('s_barrier')
    ST('B7')
    a(f'ds_read_b128 {V(GX,4)}, v{aGx} offset:{loc(7, "X")}'); a(f'ds_read_b128 {V(GX+4,4)}, v{aGw} offset:{7*128}')
    if opt('sl', 1): fill(opt('h7', 20)); a('s_barrier')
    Lp = a.newlabel('p'); Lq = a.newlabel('q'); Lok = a.newlabel('ok')
    a(f's_cmp_eq_u32 s{sCNT}, 0'); a(f's_cbranch_scc1 {Lok}')
    a.label(Lp)
    a(f's_sub_u32 s{sCNT}, s{sCNT}, 1'); a(f's_cbranch_scc1 {Lq}')
    f1poll(); a('s_waitcnt lgkmcnt(0)')
    f1test(); a(f's_cbranch_scc1 {Lp}')
    a.label(Lq)
    msgs()
    a.label(Lok)
    fill(10000)
    a('s_waitcnt lgkmcnt(0)')
    for j in range(4): a(f'v_dot2_f32_bf16 v{gacc}, v{GX+j}, v{GX+4+j}, v{gacc}')
    ST('c2')
    for j in range(4):
        a(f's_waitcnt vmcnt({3-j})')
        a(f'ds_write_b128 v{aW}, {V(IN+4*j,4)} offset:{(j&1)*4096 + (j>>1)*512}')
    ST('_ml'); arrive(a, 4); sync_wait(a, GRP_H, 4)
    ST('in')
    Wv = R.alloc(8)
    for n in range(8): a(f'ds_read_b128 {V(IN+4*n,4)}, v{aI} offset:{n*1024}')
    for t in range(2): a(f'ds_read_b128 {V(Wv+4*t,4)}, v{aWr} offset:{t*256}')
    for t in range(2):
        for k in range(4):
            n = t*4+k
            a(LG(9-n))
            a(f'{M16} {V(Dr+4*t,4)}, {V(IN+4*n,4)}, {V(B1+8*k,4)}, {"0" if k==0 else V(Dr+4*t,4)}')
            a(f'{M16} {V(Di+4*t,4)}, {V(IN+4*n,4)}, {V(B1+8*k+4,4)}, {"0" if k==0 else V(Di+4*t,4)}')
    ST('_s1')
    for t in range(2): cmul_pack(a, Dr+4*t, Di+4*t, tw1c+4*t, tw1s+4*t, X+4*t, tmp)
    ST('_t1')
    for t in range(2):
        for u in range(2):
            T = F32T + (u*2+t)*6
            a(f'{M16} {V(Dr+4*u,4)}, {V(T+2,4)}, {V(X+4*t,4)}, {"0" if t==0 else V(Dr+4*u,4)}')
            a(f'{M16} {V(Di+4*u,4)}, {V(T,4)}, {V(X+4*t,4)}, {"0" if t==0 else V(Di+4*u,4)}')
    a('s_waitcnt lgkmcnt(0)')
    a(f's_cmp_eq_u32 s{sP}, 0'); a('s_cbranch_scc1 L_sp2')
    for j in range(8):
        a(f'v_lshlrev_b32 v{wc+j}, 16, v{Wv+j}'); a(f'v_and_b32 v{wsn+j}, 0xffff0000, v{Wv+j}')
    for u in range(2): cmul_pack(a, Dr+4*u, Di+4*u, wc+4*u, wsn+4*u, X+4*u, tmp, conj_out=True)
    a.label('L_sp2r')
    ST('_w')
    for u in range(2):
        for t in range(2):
            T = F32T + (t*2+u)*6
            a(f'{M16} {V(Dr+4*t,4)}, {V(X+4*u,4)}, {V(T+2,4)}, {"0" if u==0 else V(Dr+4*t,4)}')
            a(f'{M16} {V(Di+4*t,4)}, {V(X+4*u,4)}, {V(T,4)}, {"0" if u==0 else V(Di+4*t,4)}')
    for t in range(2):
        cmul_pack(a, Dr+4*t, Di+4*t, tw2c+4*t, tw2s+4*t, X+4*t, tmp)
        a(f'ds_write_b128 v{aE}, {V(X+4*t,4)} offset:{t*4096}')
    ST('_e0')
    arrive(a, 7); sync_wait(a, GRP_H, 7)
    ST('_e1')
    for n in range(8): a(f'ds_read_b128 {V(IN+4*n,4)}, v{aI2} offset:{n*1024}')
    for t in range(2):
        for k in range(4):
            n = t*4+k; T = F64 + 6*k
            a(LG(7-n))
            a(f'{M16} {V(Dr+4*t,4)}, {V(IN+4*n,4)}, {V(T+2,4)}, {"0" if k==0 else V(Dr+4*t,4)}')
            a(f'{M16} {V(Di+4*t,4)}, {V(IN+4*n,4)}, {V(T,4)}, {"0" if k==0 else V(Di+4*t,4)}')
    ST('_s4')
    a(f's_mul_i32 s{sT}, s{sW4}, {16*YA}'); a(f's_mul_i32 s{sT+1}, s{sP}, {YK}'); a(f's_add_u32 s{sT}, s{sT}, s{sT+1}'); a(f's_add_u32 s{sT}, s{sT}, {WS_Y}')
    a(f's_add_u32 s{sT+1}, s{sT}, {8*YA}')
    for t in range(2):
        a(f'v_cvt_pk_bf16_f32 v{X+4*t}, v{Dr+4*t}, v{Dr+4*t+1}'); a(f'v_cvt_pk_bf16_f32 v{X+4*t+1}, v{Dr+4*t+2}, v{Dr+4*t+3}')
        a(f'v_cvt_pk_bf16_f32 v{X+4*t+2}, v{Di+4*t}, v{Di+4*t+1}'); a(f'v_cvt_pk_bf16_f32 v{X+4*t+3}, v{Di+4*t+2}, v{Di+4*t+3}')
        if opt('yd', 0): a(f'buffer_store_dwordx4 {V(X+4*t,4)}, v{vY}, {SR(sWS)}, s{sT} offen offset:{64*t} sc1')
        else: a(f'ds_write_b128 v{aO1 if t==0 else aO2}, {V(X+4*t,4)}')
    if not opt('yd', 0):
        a(f'ds_read_b128 {V(IN,4)}, v{aOr}'); a(f'ds_read_b128 {V(IN+4,4)}, v{aOr} offset:1024')
        a(LG(1)); a(f'buffer_store_dwordx4 {V(IN,4)}, v{vY}, {SR(sWS)}, s{sT} offen sc1')
        a('s_waitcnt lgkmcnt(0)'); a(f'buffer_store_dwordx4 {V(IN+4,4)}, v{vY}, {SR(sWS)}, s{sT+1} offen sc1')
    ST('yst')
    a(f'v_add_f32_dpp v{gacc}, v{gacc}, v{gacc} quad_perm:[1,0,3,2] {dp}')
    a(f'v_add_f32_dpp v{gacc}, v{gacc}, v{gacc} quad_perm:[2,3,0,1] {dp}')
    a(f'v_add_f32_dpp v{gacc}, v{gacc}, v{gacc} row_half_mirror {dp}')
    a(f'v_lshrrev_b32 v{t0}, 3, v0'); a(f's_lshl_b32 s{sT}, s{sW4}, 5'); a(f's_add_u32 s{sT}, s{sT}, {L_GP}'); a(f'v_lshl_add_u32 v{t0}, v{t0}, 2, s{sT}')
    a(f'v_cvt_pk_bf16_f32 v{gacc}, v{gacc}, v{gacc}'); a(f'v_and_b32 v{gacc}, 0xffff0000, v{gacc}')
    a(f'v_mul_f32 v{gacc}, {F(-LOG2E)}, v{gacc}'); a(f'v_exp_f32 v{gacc}, v{gacc}'); a(f'v_add_f32 v{gacc}, 1.0, v{gacc}'); a(f'v_rcp_f32 v{gacc}, v{gacc}')
    a(f'v_cvt_pk_bf16_f32 v{gacc}, v{gacc}, v{gacc}'); a(f'v_and_b32 v{gacc}, 0xffff0000, v{gacc}')
    a(f'ds_write_b32 v{t0}, v{gacc}')
    arrive(a, 8)
    HT = opt('ht', 3)
    if HT == 0: fin_table(a, lambda i: None)
    hl = [(u, ii) for u in WO_ORDER[NG:] for ii in range(2)]
    nh = 0
    if hl:
        vwo = YL
        sync_read(a, GRP_G); wo_setup(a, vwo, YL+2, YL+3); sync_check(a, GRP_G, 11)
    rr = Rec(); fin_setup(rr)
    for n, l in enumerate(rr.l):
        a(l)
        if n % 6 == 0 and hl and nh < opt('hf', 10): wo_one(a, vwo, *hl.pop(0)); nh += 1
    ST('_su'); a(f's_waitcnt vmcnt({nh})'); ST('_ak'); fysig(a); ST('fy')
    while hl: wo_one(a, vwo, *hl.pop(0))
    if HT == 3: fin_table(a, lambda i: None, PQ, ACA)
    if NG < 16: a('s_waitcnt vmcnt(0)'); arrive(a, 10); sync2(a, 10, 15, KVF)
    else: sync_wait(a, GRP_G, 15)
    pull_wo(a, 0)
    if HT == 2: fin_table(a, lambda i: None, PQ, ACA)
    a(f's_mov_b32 s{sSC}, 0')
    Lg = a.newlabel('yg'); Ld = a.newlabel('yd')
    for _ in range(opt('yp', 0)):
        poll2(a, C_FY); a('s_waitcnt lgkmcnt(0)')
        test2(a); a(f's_cbranch_scc0 {Lg}')
    poll2(a, C_FY)
    a(f's_branch {Ld}')
    a.label(Lg)
    yloads(a); a(f's_mov_b32 s{sSC}, 1')
    a.label(Ld)
    ST('_h9')
    SP.update(locals())
    return R.hi

def gen_special(a):
    g = SP
    t0, t1, B1 = [g[k] for k in ('t0','t1','B1')]
    IN, Dr, Di, Wv, tmp, wc, wsn, X, vl15 = [g[k] for k in ('IN','Dr','Di','Wv','tmp','wc','wsn','X','vl15')]
    a.label('L_sp5'); a.hist = []
    srdc(a, sWS)
    a(f'v_lshlrev_b32 v{vS+2}, 8, v0'); a(f's_mul_i32 s{sU}, s{sXCD}, {48*256}'); a(f's_add_u32 s{sU}, s{sU}, {WS_C}')
    a('s_mov_b32 exec_hi, 0xffff')
    a(f'buffer_store_dword v{vS}, v{vS+2}, {SR(sWS)}, s{sU} offen sc1')
    a('s_mov_b32 exec_hi, -1')
    a('s_branch L_sp5r')
    a.label('L_sp6')
    a(f's_mov_b32 s{sU}, 1'); a(f's_atomic_add s{sU}, s[{sDBG}:{sDBG+1}], 0')
    a('s_branch L_sp6r')
    a.label('L_sp4'); a.hist = []
    for j in range(8): spoll(a, 8+j, sC, C_F1+256*j)
    a('s_branch L_sp4r')
    a.label('L_sp3'); a.hist = []
    a(f's_mov_b32 s{sT+7}, 0x2000')
    a('s_branch L_sp3c')
    a.label('L_sp3p')
    a(f's_sub_u32 s{sT+7}, s{sT+7}, 1'); a('s_cbranch_scc1 L_sp3q')
    for j in range(8): spoll(a, 8+j, sC, C_F1+256*j)
    a.label('L_sp3c')
    a('s_waitcnt lgkmcnt(0)')
    for j in range(1, 8): a(f's_and_b32 s8, s8, s{8+j}')
    a('s_cmp_lg_u32 s8, 32'); a('s_cbranch_scc1 L_sp3p')
    a.label('L_sp3q')
    a(f's_add_u32 s{sT+6}, s{sLW}, {WS_B}')
    a(f'buffer_load_dwordx4 {V(wsn,4)}, v{vL16}, {SR(sWS)}, s{sT+6} offen sc1'); a(f'buffer_load_dwordx4 {V(wsn+4,4)}, v{vL16}, {SR(sWS)}, s{sT+6} offen offset:1024 sc1')
    a(f's_add_u32 s{sSX}, s{sSX}, 4'); a(f's_addc_u32 s{sSX+1}, s{sSX+1}, 0'); a(f's_setpc_b64 s[{sSX}:{sSX+1}]')
    a.label('L_sp2'); a.hist = []
    bc = IN; bs = IN+8; N = IN+16; t2 = IN+24; Nr = B1; Ni = B1+8; Yr = B1+16; Yi = B1+24
    a(f'v_lshrrev_b32 v{t0}, 4, v0'); a(f's_lshl_b32 s{sT}, s{sW4}, 4'); a(f'v_lshl_add_u32 v{t0}, v{t0}, 8, v{vl15}'); a(f'v_add_u32 v{t0}, s{sT}, v{t0}')
    a(f'v_sub_u32 v{t1}, {2047-64*19}, v{t0}'); a(f's_mov_b32 s{sT}, {L_EX}'); a(f'v_lshl_add_u32 v{t1}, v{t1}, 2, s{sT}')
    a(f'v_subrev_u32 v{t0}, 1, v{t0}'); a(f'v_and_b32 v{t2}, 2047, v{t0}')
    a(f'v_lshl_add_u32 v{t0}, v{t0}, 2, s{sT}'); a(f'v_lshl_add_u32 v{t2}, v{t2}, 2, s{sT}')
    for j in range(8): a(f'v_cvt_pk_bf16_f32 v{N+j}, v{Dr+j}, v{Di+j}')
    a(f'ds_write_b32 v{t2}, v{N}'); a(f'ds_write_b32 v{t0}, v{N+1} offset:256')
    for j in (2, 4, 6):
        o = 16*(j//4) + j%4
        a(f'ds_write2st64_b32 v{t0}, v{N+j}, v{N+j+1} offset0:{o} offset1:{o+1}')
    arrive(a, 6); sync_read(a, GRP_H)
    for j in range(8):
        a(f'v_lshlrev_b32 v{bc+j}, 16, v{wsn+j}'); a(f'v_and_b32 v{bs+j}, 0xffff0000, v{wsn+j}')
    sync_check(a, GRP_H, 6)
    for j in range(0, 8, 2):
        o = 19 - 16*(j//4) - j%4
        a(f'ds_read2st64_b32 {V(N+j,2)}, v{t1} offset0:{o} offset1:{o-1}')
    for j in range(8):
        a(f'v_lshlrev_b32 v{wc+j}, 16, v{Wv+j}'); a(f'v_and_b32 v{wsn+j}, 0xffff0000, v{Wv+j}')
    ng = 'neg_lo:[1,0,0] neg_hi:[1,0,0]'
    for j in range(0, 8, 2):
        a(f'v_pk_mul_f32 {V(Yr+j,2)}, {V(Dr+j,2)}, {V(wc+j,2)}'); a(f'v_pk_mul_f32 {V(Yi+j,2)}, {V(Dr+j,2)}, {V(wsn+j,2)}')
    for j in range(0, 8, 2):
        a(f'v_pk_fma_f32 {V(Yr+j,2)}, {V(Di+j,2)}, {V(wsn+j,2)}, {V(Yr+j,2)} {ng}'); a(f'v_pk_fma_f32 {V(Yi+j,2)}, {V(Di+j,2)}, {V(wc+j,2)}, {V(Yi+j,2)}')
    a('s_waitcnt lgkmcnt(0)')
    for j in range(8):
        a(f'v_lshlrev_b32 v{Nr+j}, 16, v{N+j}'); a(f'v_and_b32 v{Ni+j}, 0xffff0000, v{N+j}')
    for j in range(0, 8, 2):
        a(f'v_pk_fma_f32 {V(Yr+j,2)}, {V(Nr+j,2)}, {V(bc+j,2)}, {V(Yr+j,2)}'); a(f'v_pk_fma_f32 {V(Yi+j,2)}, {V(Nr+j,2)}, {V(bs+j,2)}, {V(Yi+j,2)}')
    for j in range(0, 8, 2):
        a(f'v_pk_fma_f32 {V(Yr+j,2)}, {V(Ni+j,2)}, {V(bs+j,2)}, {V(Yr+j,2)}'); a(f'v_pk_fma_f32 {V(Yi+j,2)}, {V(Ni+j,2)}, {V(bc+j,2)}, {V(Yi+j,2)} {ng}')
    for u in range(2):
        a(f'v_cvt_pk_bf16_f32 v{X+4*u}, v{Yr+4*u}, v{Yr+4*u+1}'); a(f'v_cvt_pk_bf16_f32 v{X+4*u+1}, v{Yr+4*u+2}, v{Yr+4*u+3}')
        a(f'v_cvt_pk_bf16_f32 v{X+4*u+2}, -v{Yi+4*u}, -v{Yi+4*u+1}'); a(f'v_cvt_pk_bf16_f32 v{X+4*u+3}, -v{Yi+4*u+2}, -v{Yi+4*u+3}')
    a('s_nop 1'); a('s_branch L_sp2r')

def gen_G0(a, ST):
    R = Regs(190)
    vd = R.alloc(8); t0, t1 = R.alloc(), R.alloc()
    srdc(a, sWQ); ids_gemm(a)
    dma_setup(a, vd, t0, t1)
    B0 = dma_group(0, vd)
    for l in B0[0][:-1]: a(l)
    a('s_waitcnt lgkmcnt(0)'); ST('karg')
    a(B0[0][-1])
    for b in B0[1:]: emit(a, b)
    return R, vd, t0, t1

def gen_G(a, ST, G):
    R, vd, t0, t1 = G
    bf = 42; NB = 3; BS = 28; accK = 126; accV = 142; accQ = 158; tmp = 174
    late_common(a)
    Q = []; QD = []; cum = [8]
    for g in range(1, 8):
        B = dma_group(g, vd)
        if g >= 8-DQ:
            Q += B[:6]
            QD += [[B[4][0]] + B[0][1:5] + B[6], B[7]]
        else: Q += B
        cum.append(8 + len(Q))
    NQ = cum[-1]
    iss = [8]
    def dma(limit):
        if iss[0] < min(limit, NQ):
            emit(a, Q[iss[0]-8], WIN-1 if iss[0] >= WIN else None); iss[0] += 1
    fin_table(a, lambda i: None); fin_setup(a)
    aA = R.alloc(4); aB = R.alloc(2)
    a(f'v_bfe_u32 v{t1}, v0, 1, 3'); a(f'v_lshrrev_b32 v{t0}, 4, v0'); a(f'v_xor_b32 v{t1}, v{t1}, v{t0}'); a(f'v_lshlrev_b32 v{t1}, 4, v{t1}')
    a(f'v_and_b32 v{aA}, 15, v0'); a(f'v_lshl_add_u32 v{aA}, v{aA}, 7, v{t1}')
    a(f'v_xor_b32 v{aA+1}, 64, v{aA}'); a(f'v_add_u32 v{aA+2}, 65536, v{aA}'); a(f'v_add_u32 v{aA+3}, 65536, v{aA+1}')
    a(f'v_lshrrev_b32 v{t0}, 5, v0'); a(f'v_lshlrev_b32 v{aB}, 12, v{t0}')
    a(f'v_bfe_u32 v{t1}, v0, 4, 1'); a(f'v_lshl_add_u32 v{aB}, v{t1}, 10, v{aB}')
    a(f'v_bfe_u32 v{t1}, v0, 2, 2'); a(f'v_lshl_add_u32 v{aB}, v{t1}, 7, v{aB}')
    a(f'v_bfe_u32 v{t1}, v0, 3, 2'); a(f'v_xor_b32 v{t1}, s{sW4}, v{t1}'); a(f'v_lshl_add_u32 v{aB}, v{t1}, 5, v{aB}')
    a(f'v_and_b32 v{t1}, 3, v0'); a(f'v_lshl_add_u32 v{aB}, v{t1}, 3, v{aB}')
    a(f'v_add_u32 v{aB+1}, 65536, v{aB}')
    a(f's_mov_b32 s{sL2E}, {F(LOG2E)}'); a(f's_mov_b32 s{sL2E+1}, {F(LOG2E)}')
    aK, aR, vAt, vPq, aZ2, vAz = [R.alloc() for _ in range(6)]; vwo = YL+4
    a(f's_mul_i32 s{sT}, s{sW4}, 1088'); a(f's_add_u32 s{sT+1}, s{sT}, {L_KVR}')
    a(f'v_add_u32 v{aK}, s{sT+1}, v{vL16}'); a(f'v_add_u32 v{aZ2}, s{sT+1}, v0')
    a(f'v_lshrrev_b32 v{t0}, 2, v0'); a(f'v_mul_u32_u24 v{t0}, 240, v{t0}'); a(f'v_lshl_add_u32 v{vAz}, v0, 2, v{t0}'); a(f'v_add_u32 v{vAz}, 32768, v{vAz}')
    a(f'v_and_b32 v{t1}, 0xf0, v{vL16}')
    a(f'v_lshlrev_b32 v{vAt}, 2, v0'); a(f'v_add_u32 v{aR}, s{sT+1}, v{vAt}')
    if PK: a(f'v_lshrrev_b32 v{t0}, 4, v0'); a(f'v_lshl_add_u32 v{vAt}, v{t0}, 2, v{t1}')
    a(f'v_bfe_u32 v{t0}, v0, 4, 1'); a(f'v_lshl_add_u32 v{vPq}, v{t0}, 9, v{t1}'); a(f'v_lshrrev_b32 v{t0}, 5, v0'); a(f'v_lshl_add_u32 v{vPq}, v{t0}, 8, v{vPq}')
    a(f'v_lshrrev_b32 v{t0}, 4, v0'); a(f'v_lshlrev_b32 v{vwo}, 5, v{t0}'); a(f'v_xor_b32 v{t1}, v{t1}, v{vwo}')
    a(f'v_and_b32 v{vwo}, 128, v{t1}'); a(f'v_mad_u32_u24 v{t1}, v{vwo}, 3, v{t1}')
    a(f'v_lshl_add_u32 v{vwo}, v{t0}, 10, v{t1}'); a(f'v_xor_b32 v{vwo+1}, 512, v{vwo}'); a(f'v_add_u32 v{vwo+1}, 3072, v{vwo+1}')
    sA0, sPq, sWu, sWo, sTo = sT, sT+2, sT+3, sT+4, sT+5
    a(f's_lshl_b32 s{sT+1}, s{sHG}, 12'); a(f's_lshl_b32 s{sA0}, s{sW4}, 10'); a(f's_add_u32 s{sA0}, s{sA0}, s{sT+1}'); a(f's_add_u32 s{sA0}, s{sA0}, {WS_KV}')
    a(f's_lshl_b32 s{sPq}, s{sROW0}, 10'); a(f's_xor_b32 s{sT+1}, s{sHG}, {QX}'); a(f's_lshl_b32 s{sT+1}, s{sT+1}, 12'); a(f's_add_u32 s{sPq}, s{sPq}, s{sT+1}')
    a(f's_lshl_b32 s{sT+1}, s{sW4}, 10'); a(f's_add_u32 s{sPq}, s{sPq}, s{sT+1}'); a(f's_add_u32 s{sPq}, s{sPq}, {WS_PQ}')
    a(f's_lshl_b32 s{sT+1}, s{sHL}, 7'); a(f's_lshl_b32 s{sWo}, s{sW4}, 13'); a(f's_add_u32 s{sWo}, s{sWo}, s{sT+1}')
    a(f's_lshr_b32 s{sTo}, s{sIDX}, 2')
    ones = R.alloc(4); m64 = aK if False else YL
    if PK:
        for j in range(4): a(f'v_mov_b32 v{m64+j}, {F(-64.0)}')
    for j in range(4): a(f'v_mov_b32 v{ones+j}, 0x3f803f80')
    ST('_su')
    while iss[0] < opt('w0', 12): dma(64)
    ST('iss')
    def buf(c, k): return bf + ((c*2+k) % NB)*BS
    def rdlist(c, k, qonly=False):
        b = buf(c, k); L = []
        def tr(dst, ad):
            q = ad // 65536; L.append(f'ds_read_b64_tr_b16 {V(dst,2)}, v{aB+q} offset:{ad-q*65536}')
        def xr(t):
            ad = loc(c, 'X') + t*BLK; q = ad // 65536
            L.append(f'ds_read_b128 {V(b+4*t,4)}, v{aA+2*q+k} offset:{ad-q*65536}')
        def wr(i):
            for jj in range(2): tr(b+16+4*i+2*jj, loc(c, 'KVQ'[i]) + 2*k*BLK + jj*512)
        if qonly: wr(2); xr(0); xr(1); xr(2); xr(3); return L
        wr(0); xr(0); xr(1); wr(1); xr(2); xr(3)
        if c < 8-DQ: wr(2)
        if opt('nord', 0) and 0 < c < 7: L = ['s_nop 0']*10
        return L
    def mm(c, k, i, t):
        if opt('nomm', 0) and 0 < c < 7: return
        b = buf(c, k); acc = (accK, accV, accQ)[i] + 4*t; C = "0" if (c == 0 and k == 0) else V(acc,4)
        if i < 2: a(f'{M16} {V(acc,4)}, {V(b+4*t,4)}, {V(b+16+4*i,4)}, {C}')
        else: a(f'{M16} {V(acc,4)}, {V(b+24,4)}, {V(b+4*t,4)}, {C}')
    nwo = [0]
    def wo_dma(thr=None):
        i = nwo[0]
        if i >= 2*NG: return
        u, ii = WO_ORDER[i//2], i & 1
        if ii == 0:
            a(f's_add_u32 m0, s{sLW}, {wo_unit(u)}')
            a(f's_add_u32 s{sWu}, s{sTo}, {u & 7}'); a(f's_and_b32 s{sWu}, s{sWu}, 7')
            if u >= 8: a(f's_or_b32 s{sWu}, s{sWu}, 8')
            a(f's_lshl_b32 s{sWu}, s{sWu}, 15'); a(f's_add_u32 s{sWu}, s{sWu}, s{sWo}')
        if thr is not None: a(f's_waitcnt vmcnt({thr})')
        a(f'buffer_load_dwordx4 v{vwo+ii}, {SR(sWO)}, s{sWu} offen' + (' offset:1024' if ii else '') + ' lds')
        nwo[0] += 1
    order = [(i, t) for i in range(3) for t in range(4)]
    LAG = 6; AH = opt('ah', 12)
    SL = opt('sl', 1)
    lagged = []
    for c in range(8):
        ST(f'_ga{c}')
        AHc = AH if c <= opt('ahc', 1) else 8
        while iss[0] < (min(cum[c] + AHc, NQ) if c else 8 + opt('ah0', 4)): dma(64)
        a(f's_waitcnt vmcnt({iss[0] - cum[c] + nwo[0] + (4 if (c == 7 and SL) else 0)}) lgkmcnt(0)')
        ST(f'_gb{c}')
        a('s_barrier')
        ST(f'_gc{c}'); ST(f'_T{c}')
        if c in (0, 1, 2, 4, 7): ST(f'B{c}')
        if c == opt('gpc', 7) and opt('gp', 1): a(f's_setprio {opt("gp", 1)}')
        lim = min(cum[c] + 8 + (AH if c+1 <= opt('ahc', 1) else 8), NQ)
        last = c == 7
        od = order if c < 8-DQ else order[:8]
        r0 = rdlist(c, 0); r1 = rdlist(c, 1)
        if last and SL:
            xk = lambda r: r[0:4] + r[6:8]
            vq = [r0[4], r0[5], r1[4], r1[5], r0[8], r0[9], r1[8], r1[9]]
            for l in xk(r0) + xk(r1): a(l)
            for m_ in lagged: mm(*m_)
            a(LG(6))
            for t in range(4): mm(c, 0, 0, t)
            a('s_waitcnt lgkmcnt(0)')
            for t in range(4): mm(c, 1, 0, t)
            break
        for l in r0: a(l)
        for l in r1[:5]: a(l)
        if last:
            for b in QD: emit(a, b)
        if c == 0:
            for _ in range(4): dma(lim)
        for n, m_ in enumerate(lagged):
            mm(*m_)
            if n % 3 == 0: dma(lim)
        a(LG(5))
        if last:
            for l in r1[5:]: a(l)
        for n, (i, t) in enumerate(order[:4] if last else od):
            mm(c, 0, i, t)
            if last: continue
            if n < len(r1)-5: a(r1[5+n])
            elif n % 2 == 1 or len(od) == 8: dma(lim)
        a('s_waitcnt lgkmcnt(0)')
        lg = LAG if len(od) == 12 else 4
        for n, (i, t) in enumerate(order[:4] if last else od[:len(od)-lg]):
            mm(c, 1, i, t)
            if n % 3 == 0: dma(lim)
        lagged = [(c, 1, i, t) for (i, t) in od[len(od)-lg:]]
        if c == opt('pr', -1):
            assert c >= 5
            while iss[0] < NQ: dma(64)
            for _ in range(4): wo_dma(WIN-1)
    pk = accK; vv = accK+8; Dk = accV; Dz = accV+4
    restm = [(k, 1, t) for k in range(2) for t in range(4)]
    if DQ == 0: restm += [(k, 2, t) for k in range(2) for t in range(4)]
    if SL:
        a(f's_waitcnt vmcnt({nwo[0]})'); a('s_barrier')
        for l in vq: a(l)
    sync_read(a, GRP_H)
    if not SL:
        for _ in range(5): mm(7, *restm.pop(0))
    rr = Rec(); phi_pack(rr, accK, 16, pk, tmp)
    WB = opt('wb', 4)
    for n, l in enumerate(rr.l):
        a(l)
        if SL and n == 12: a('s_waitcnt lgkmcnt(0)')
        if (n % 2 == 1 and n > 12 if SL else n % 3 == 2) and restm: mm(7, *restm.pop(0))
        if WB and n % (len(rr.l)//WB) == 4: wo_dma()
    assert not restm
    for j in range(8): a(f'v_cvt_pk_bf16_f32 v{vv+j}, v{accV+2*j}, v{accV+2*j+1}')
    a(f'{M16} {V(Dk,4)}, {V(pk,4)}, {V(vv,4)}, 0'); a(f'{M16} {V(Dz,4)}, {V(pk,4)}, {V(ones,4)}, {V(m64,4) if PK else 0}')
    a(f'{M16} {V(Dk,4)}, {V(pk+4,4)}, {V(vv+4,4)}, {V(Dk,4)}'); a(f'{M16} {V(Dz,4)}, {V(pk+4,4)}, {V(ones,4)}, {V(Dz,4)}')
    ST('kvm')
    if PK:
        sync_check(a, GRP_H, 3); a.fence(2)
        Pp = accV+8
        a(f'v_cvt_pk_bf16_f32 v{Pp}, v{Dk}, v{Dk+1}'); a(f'v_cvt_pk_bf16_f32 v{Pp+1}, v{Dk+2}, v{Dk+3}')
        a(f'v_cvt_pk_bf16_f32 v{Pp+2}, v{Dz}, v{Dz+1}'); a(f'v_cvt_pk_bf16_f32 v{Pp+3}, v{Dz+2}, v{Dz+3}')
        a(f'v_permlane16_swap_b32 v{Pp}, v{Pp+1}'); a(f'v_permlane16_swap_b32 v{Pp+2}, v{Pp+3}')
        for h in range(2): a(f'buffer_atomic_pk_add_bf16 v{Pp+h}, v{vAt}, {SR(sWS)}, s{sA0} offen' + (f' offset:{KS}' if h else ''))
        a('s_mov_b32 exec_lo, 0x00010001'); a('s_mov_b32 exec_hi, 0x00010001')
        for h in range(2): a(f'buffer_atomic_pk_add_bf16 v{Pp+2+h}, v{vAt}, {SR(sWS)}, s{sA0} offen offset:{256+h*KS}')
        a('s_mov_b64 exec, -1')
    else:
        a(f'ds_write_b128 v{aK}, {V(Dk,4)}')
        a('s_mov_b32 exec_lo, 0x00010001'); a('s_mov_b32 exec_hi, 0x00010001')
        a(f'ds_write_b128 v{aZ2}, {V(Dz,4)} offset:1024')
        a('s_mov_b64 exec, -1')
        Pp = accV+8
        a(f'ds_read2st64_b32 {V(Pp,2)}, v{aR} offset0:0 offset1:1'); a(f'ds_read2st64_b32 {V(Pp+2,2)}, v{aR} offset0:2 offset1:3'); a(f'ds_read_b32 v{Pp+4}, v{aR} offset:1024')
        sync_check(a, GRP_H, 3)
        for rnd in range(4): a(f'buffer_atomic_add_f32 v{Pp+rnd}, v{vAt}, {SR(sWS)}, s{sA0} offen' + (f' offset:{rnd*256}' if rnd else ''))
        a('s_mov_b64 exec, 0xffff'); a(f'buffer_atomic_add_f32 v{Pp+4}, v{vAz}, {SR(sWS)}, s{sA0} offen'); a('s_mov_b64 exec, -1')
    ST('atom')
    if DQ:
        a(f's_waitcnt vmcnt({5 + nwo[0]})')
        arrive(a, 10); sync_wait(a, GRP_G, 10)
        ST('_wq')
        steps = [(c, k) for c in range(8-DQ, 8) for k in range(2)]
        for st_ in steps[:2]:
            for l in rdlist(*st_, qonly=True): a(l)
        for n, (c, k) in enumerate(steps):
            a(LG(6 if n+1 < len(steps) else 0))
            mm(c, k, 2, 0)
            if n+2 < len(steps):
                for l in rdlist(*steps[n+2], qonly=True): a(l)
            for t in range(1, 4): mm(c, k, 2, t)
    arrive(a, 11)
    phi_pack(a, accQ, 16, accK, tmp)
    for rt in range(2):
        a(f'v_permlane32_swap_b32 v{accK+4*rt}, v{accK+4*rt+2}'); a(f'v_permlane32_swap_b32 v{accK+4*rt+1}, v{accK+4*rt+3}')
    a(f'buffer_store_dwordx4 {V(accK,4)}, v{vPq}, {SR(sWS)}, s{sPq} offen sc1')
    a(f's_add_u32 s{sPq}, s{sPq}, 32768')
    a(f'buffer_store_dwordx4 {V(accK+4,4)}, v{vPq}, {SR(sWS)}, s{sPq} offen sc1')
    ST('qst')
    if opt('gp', 1) and opt('gpe', 0) in (0, 2): a('s_setprio 0')
    WW = opt('ww', 10); NS = opt('ns', 8)
    for i in range(NS): wo_dma()
    OW = [fOW, fOW+1, fYW, fYW+1]
    for j in range(32): a(f'v_mov_b32 v{KVF+j}, 0x45004500')
    a(f's_lshl_b32 s{sT}, s{sW4}, 2'); a(f's_and_b32 s{sT+2}, s{sT}, 8'); a(f's_sub_u32 s{sT}, s{sT}, s{sTo}')
    for bb in range(4):
        if bb: a(f's_add_u32 s{sT}, s{sT}, 1')
        a(f's_and_b32 s{sT+1}, s{sT}, 7'); a(f's_or_b32 s{sT+1}, s{sT+1}, s{sT+2}'); a(f's_lshl_b32 s{sT+1}, s{sT+1}, 11')
        a(f'v_add_u32 v{OW[bb]}, s{sT+1}, v{vL16}')
    a(f's_add_u32 s{sT}, s{sFKV}, 4096'); a(f's_add_u32 s{sT+1}, s{sFPQ}, 4096')
    G2 = opt('g2', 0)
    if G2: sync2(a, 4, 11, PQ)
    a(f's_waitcnt vmcnt({NS})'); signal_last(a, 32, 3, C_FK, sHG); ST('fk')
    NA = opt('na', 24) if G2 else min(2*NFREE, 2*NG)
    while nwo[0] < NA: wo_dma(WW-1)
    a(f's_waitcnt vmcnt({NA-18})')
    ST('_g2'); arrive(a, 13)
    if G2:
        while nwo[0] < 32: wo_dma(WW-1)
        sync_wait(a, GRP_G, 13)
    else: sync2(a, 4, 13, PQ)
    ST('_g3')
    poll2(a, C_FK)
    rr = Rec(); pull_wo(rr, 1)
    for n, l in enumerate(rr.l):
        a(l)
        if n % 4 == 3: wo_dma(WW-1)
    assert nwo[0] == 2*NG
    assert R.hi <= YL, R.hi
    ST('tab')
    pre_fin_G(a, ST)
    return R.hi

fT0, fT1, fOMG, fG, fYW, fO, fHP, fOUT, fKV, fF, fP, fO2 = [FT+8+i for i in (0,1,2,4,6,8,9,10,11,12,13,3)]
fY = FT; fC = FT+2; fOW = FT+4; fB = FT+6
sFY, sFPQ, sFKV, sFOUT, sFFK, sFFY = 12, 13, 14, 15, 16, 17
def fin_setup(a):
    t0, t1 = fT0, fT1
    a(f'v_and_b32 v{t0}, 31, v0'); a(f'v_lshlrev_b32 v{t1}, 2, v{t0}'); a(f'v_add_u32 v{fOMG}, {L_GP}, v{t1}')
    a(f'v_and_b32 v{fG}, 60, v{t1}'); a(f'v_add_u32 v{fG}, {L_GP}, v{fG}')
    a(f'v_lshrrev_b32 v{t1}, 5, v0')
    if PK: a(f'v_min_u32 v{fKV}, 16, v{t0}'); a(f'v_mul_u32_u24 v{fO}, {KS}, v{t1}'); a(f'v_lshl_add_u32 v{fKV}, v{fKV}, 4, v{fO}')
    else: a(f'v_cmp_gt_u32 vcc, 16, v{t0}'); a(f'v_lshlrev_b32 v{fKV}, 4, v{t0}'); a(f'v_mov_b32 v{fO}, 32768'); a(f'v_cndmask_b32 v{fKV}, v{fO}, v{fKV}, vcc'); a(f'v_lshl_add_u32 v{fKV}, v{t1}, 8, v{fKV}')
    a(f'v_bfe_u32 v{t0}, v0, 2, 3'); a(f'v_lshl_add_u32 v{fB}, v{t1}, 4, v{t0}'); a(f'v_lshlrev_b32 v{fB}, 8, v{fB}')
    a(f'v_xor_b32 v{t0}, s{sW4}, v{t0}'); a(f'v_lshl_add_u32 v{fB}, v{t0}, 5, v{fB}')
    a(f'v_and_b32 v{t0}, 3, v0'); a(f'v_lshl_add_u32 v{fB}, v{t0}, 3, v{fB}'); a(f'v_xor_b32 v{fB+1}, 128, v{fB}')
    a(f'v_bfe_u32 v{t1}, v0, 3, 1'); a(f'v_and_b32 v{fYW}, 0x70, v{vL16}'); a(f'v_lshl_add_u32 v{fYW}, v{t1}, 14, v{fYW}')
    a(f'v_lshlrev_b32 v{fY}, 7, v{t1}'); a(f'v_lshl_add_u32 v{fY}, v{t0}, 4, v{fY}')
    a(f'v_lshrrev_b32 v{t1}, 4, v0'); a(f'v_lshl_add_u32 v{fYW}, v{t1}, 7, v{fYW}')
    a(f's_lshl_b32 s{sT}, s{sW4}, 12'); a(f'v_add_u32 v{fYW}, s{sT}, v{fYW}'); a(f'v_xor_b32 v{fYW+1}, 64, v{fYW}')
    a(f's_lshl_b32 s{sT}, s{sKH}, 14')
    a(f'v_and_b32 v{t0}, 0xf0, v{vL16}'); a(f'v_lshl_add_u32 v{fO}, v{t1}, 9, s{sT}')
    a(f'v_add_u32 v{fY}, v{fY}, v{fO}'); a(f'v_add_u32 v{fO}, v{fO}, v{t0}')
    a(f'v_bfe_u32 v{t0}, v0, 4, 1'); a(f'v_lshl_add_u32 v{fY}, v{t0}, 6, v{fY}')
    a(f'v_bfe_u32 v{t0}, v0, 2, 1'); a(f'v_lshl_add_u32 v{fY}, v{t0}, 3, v{fY}'); a(f'v_xor_b32 v{fY+1}, 64, v{fY}')
    a(f'v_and_b32 v{t0}, 15, v0'); a(f'v_mul_u32_u24 v{fHP}, {RS}, v{t0}'); a(f'v_lshl_add_u32 v{fHP}, v{t1}, 4, v{fHP}')
    a(f's_mul_i32 s{sT}, s{sKH}, {32*RS}'); a(f's_lshl_b32 s{sT+1}, s{sW4}, 6'); a(f's_add_u32 s{sT}, s{sT}, s{sT+1}'); a(f's_add_u32 s{sT}, s{sT}, {L_EP}'); a(f'v_add_u32 v{fHP}, s{sT}, v{fHP}')
    a(f's_lshl_b32 s{sT}, s{sWV}, 2'); a(f'v_add_u32 v{t1}, s{sT}, v{t1}')
    a(f'v_mul_u32_u24 v{fP}, {RS}, v{t1}'); a(f'v_lshl_add_u32 v{fP}, v{t0}, 5, v{fP}'); a(f'v_add_u32 v{fP}, {L_EP}, v{fP}')
    a(f'v_and_b32 v{fOUT}, 8, v0'); a(f'v_mad_u32_u24 v{t0}, v{fOUT}, 3, v{t0}'); a(f'v_lshlrev_b32 v{t0}, 4, v{t0}'); a(f'v_lshl_add_u32 v{fOUT}, v{t1}, 10, v{t0}')
    a(f's_lshl_b32 s{sT}, s{sAT}, 15'); a(f's_lshl_b32 s{sFKV}, s{sW4}, 13'); a(f's_add_u32 s{sT+1}, s{sT}, s{sFKV}')
    a(f's_add_u32 s{sFPQ}, s{sT+1}, {WS_PQ}'); a(f's_add_u32 s{sFY}, s{sT+1}, {WS_Y}'); a(f's_add_u32 s{sFKV}, s{sFKV}, {WS_KV}')
    a(f's_lshl_b32 s{sFOUT}, s{sHL}, 7'); a(f's_add_u32 s{sFOUT}, s{sFOUT}, s{sT}')

def pull_wo(a, kh):
    B = ACB
    for q in (1, 2):
        for cu in range(2): a(f'v_add_u32 v{B+2*q+cu}, {57344*q}, v{fB+cu}')
    for n in range(8):
        for cu in range(2):
            for jj in range(2):
                ad = wo_unit(8*kh+n) + jj*2048
                q = ad // 57344
                a(f'ds_read_b64_tr_b16 {V(WF+8*n+4*cu+2*jj,2)}, v{(B+2*q if q else fB)+cu} offset:{ad - q*57344}')
YR = [HP+4*j for j in range(8)]
def yloads(a):
    for j in range(8):
        if j == 4: a(f's_add_u32 s{sFY}, s{sFY}, 4096')
        a(f'buffer_load_dwordx4 {V(YR[j],4)}, v{vL16}, {SR(sWS)}, s{sFY} offen offset:{(j&3)*1024} sc1')
def pre_fin_G(a, ST):
    assert PK
    KV8 = [KVF + 4*j for j in range(8)]; PQ8 = [HP + 4*j for j in range(8)]; OF = [PQ, PQ+4, PQ+8, PQ+12]
    OW = [fOW, fOW+1, fYW, fYW+1]
    LA = opt('la', 6)
    def ld(j):
        a('s_mov_b32 exec_lo, 0x0011ffff'); a('s_mov_b32 exec_hi, 0x0011ffff')
        a(f'buffer_load_dwordx4 {V(KV8[j],4)}, v{fKV}, {SR(sWS)}, s{sFKV if j < 4 else sT} offen offset:{(j&3)*1024} sc1')
        a('s_mov_b64 exec, -1')
        a(f'buffer_load_dwordx4 {V(PQ8[j],4)}, v{vL16}, {SR(sWS)}, s{sFPQ if j < 4 else sT+1} offen offset:{(j&3)*1024} sc1')
    Lc = a.newlabel('c'); Ld = a.newlabel('d')
    a('s_waitcnt lgkmcnt(0)'); ST('_g4')
    arrive(a, 14)
    test2(a); a(f's_cbranch_scc0 {Lc}')
    poll2(a, C_FK)
    a('s_waitcnt vmcnt(0)'); arrive(a, 15)
    poll2_loop(a, C_FK, True)
    a.label(Lc)
    ST('pk')
    if opt('gpe', 0) == 2: a('s_setprio 1')
    for j in range(LA): ld(j)
    ST('rdy')
    a(f's_waitcnt vmcnt({2*LA})'); arrive(a, 15)
    sync2(a, 8, 14, PQ)
    a(f'ds_read_b32 v{fOMG}, v{fOMG}')
    a('s_waitcnt lgkmcnt(0)')
    a(f'v_sub_f32 v{fOMG}, 1.0, v{fOMG}'); a(f'v_cvt_pk_bf16_f32 v{fOMG}, v{fOMG}, v{fOMG}'); a(f'v_and_b32 v{fOMG}, 0xffff0000, v{fOMG}')
    ST('_g5')
    def fo(j):
        D = ACA if j % 2 == 0 else ACB; O = OF[j % 4]
        a(f'v_add_f32 v{D+8}, v{D+8}, v{D+9}')
        a(f'v_add_f32 v{fT0}, {F(1e-6)}, v{D+8}'); a(f'v_rcp_f32 v{fT0}, v{fT0}'); a(f'v_mul_f32 v{fC}, v{fT0}, v{fOMG}'); a(f'v_mul_f32 v{fC+1}, v{fT0}, v{fOMG}')
        for q in range(0, 8, 2): a(f'v_pk_mul_f32 {V(D+q,2)}, {V(D+q,2)}, {V(fC,2)}')
        for q in range(4): a(f'v_cvt_pk_bf16_f32 v{O+q}, v{D+2*q}, v{D+2*q+1}')
        a(f'ds_write_b128 v{OW[j//2]}, {V(O,4)} offset:{L_O+(j&1)*1024}')
    for j in range(8):
        D = ACA if j % 2 == 0 else ACB
        a(f's_waitcnt vmcnt({2*(min(8, LA+j) - j - 1)})')
        a(f'{M32} {V(D,16)}, {V(KV8[j],4)}, {V(PQ8[j],4)}, 0')
        if j in (0, 4): ST(f'_a{j}')
        if LA + j < 8: ld(LA + j)
        if j > 0: fo(j-1)
    fo(7)
    a(f's_mov_b32 s{sSC}, 2'); ST('_g6')
    if opt('gpe', 0): a('s_setprio 0')

def gen_FIN(a, ST):
    a('s_waitcnt lgkmcnt(0)'); a('s_barrier')
    a(f'ds_read2_b32 {V(fG,2)}, v{fG} offset0:0 offset1:16')
    ST('J3')
    BF = KVF; PF = 3; N1 = opt('n1', 6)
    def rdo(n):
        for su in range(2): a(f'ds_read_b128 {V(BF+(n%4)*8+4*su,4)}, v{fO} offset:{L_O+n*2048+su*256}')
    def rdy(n):
        for su in range(2):
            for jj in range(2): a(f'ds_read_b64_tr_b16 {V(WF+n*8+4*su+2*jj,2)}, v{fY+su} offset:{L_Y+(16*n+2*jj)*128}')
    for n in range(PF): rdo(n)
    Ll = a.newlabel('yl')
    a(f's_cmp_lg_u32 s{sSC}, 0'); a(f's_cbranch_scc1 {Ll}')
    if opt('yb', 0): poll2_loop(a, C_FY, True)
    else: test2(a); a(f's_cbranch_scc1 {Ll}')
    ST('_yp')
    yloads(a); a(f's_mov_b32 s{sSC}, 1')
    a.label(Ll)
    def bstep(n, wait=True):
        b = BF + (n % 4)*8
        if wait: a(f's_waitcnt lgkmcnt({2*min(PF-1, 7-n)})' if not (STAMP and n == 0) else 's_waitcnt lgkmcnt(0)')
        for i, (cu, su) in enumerate(((0,0),(0,1),(1,0),(1,1))):
            d = ACB + 8*su + 4*cu
            a(f'{M16} {V(d,4)}, {V(WF+8*n+4*cu,4)}, {V(b+4*su,4)}, {"0" if n==0 else V(d,4)}')
            if i == 0 and n+PF < 8: rdo(n+PF)
    assert N1 >= 5
    for n in range(N1): bstep(n)
    ST('bp')
    Lo = a.newlabel('yo'); Lz = a.newlabel('yz')
    a(f's_cmp_eq_u32 s{sSC}, 2'); a(f's_cbranch_scc1 {Lz}')
    a(f's_cmp_eq_u32 s{sSC}, 1'); a(f's_cbranch_scc1 {Lo}')
    poll2_loop(a, C_FY)
    yloads(a)
    a.label(Lo)
    for j in range(8):
        a(f's_waitcnt vmcnt({7-j})')
        if j in (0, 7): ST(f'_y{j}')
        a(f'ds_write_b128 v{fYW+(j&1)}, {V(YR[j],4)} offset:{L_Y+j*512}')
    a.label(Lz)
    a('s_waitcnt lgkmcnt(0)'); a('s_barrier')
    ST('J3b')
    for n in range(3): rdy(n)
    for n in range(N1, 8): bstep(n, False)
    a(f's_lshl_b32 s{sT}, s{sKH}, 31')
    for su in range(2): a(f'v_mul_f32 v{fG+su}, {F(2.0**-19)}, v{fG+su}'); a(f'v_xor_b32 v{fC+su}, s{sT}, v{fG+su}')
    for n in range(8):
        a(f's_waitcnt lgkmcnt({4*min(2, 7-n)})' if not (STAMP and n == 0) else 's_waitcnt lgkmcnt(0)')
        for su in range(2):
            d = ACA + 4*su
            a(f'{M16} {V(d,4)}, {V(TF+4*n,4)}, {V(WF+n*8+4*su,4)}, {"0" if n==0 else V(d,4)}')
        if n+3 < 8: rdy(n+3)
    for su in range(2):
        for cu in range(2):
            d = ACB + 8*su + 4*cu
            for r in range(4): a(f'v_fmac_f32 v{d+r}, v{(fC if cu else fG)+su}, v{ACA+4*su+r}')
            a(f'ds_write_b128 v{fHP}, {V(d,4)} offset:{su*16*RS+cu*256}')
    ST('_e4'); a('s_waitcnt lgkmcnt(0)'); a('s_barrier'); ST('_j4')
    for q in range(2): a(f'ds_read_b128 {V(HP+4*q,4)}, v{fP} offset:{16*q}'); a(f'ds_read_b128 {V(HP+8+4*q,4)}, v{fP} offset:{32*RS+16*q}')
    for q in range(2):
        a(f's_waitcnt lgkmcnt({2-2*q})')
        for j in (0, 2): a(f'v_pk_add_f32 {V(HP+4*q+j,2)}, {V(HP+8+4*q+j,2)}, {V(HP+4*q+j,2)}')
        for j in (0, 2): a(f'v_cvt_pk_bf16_f32 v{ACA+2*q+j//2}, v{HP+4*q+j}, v{HP+4*q+j+1}')
    a(f'buffer_store_dwordx4 {V(ACA,4)}, v{fOUT}, {SR(sOUT)}, s{sFOUT} offen nt')
    a.label('L_end')
    ST('end')
    stamp_flush(a, len(ST.names))

if __name__ == '__main__':
    a = build()
    if opt('al', 0):
        from align import align
        a.lines = align(a.lines, minrun=opt('mr', 5))
    out = '; @launch grid=(256,1,1) block=(512,1,1) lds=163840\n.amdgcn_target "amdgcn-amd-amdhsa--gfx950"\n.text\n'
    out += '.p2align 12\n' + kernel_header(NAME) + a.text()
    out += f'.p2align 8\n.fill (33792 - (. - {NAME})) / 4, 4, 0xbf800000\n'
    out += '.section .rodata,"a"\n.p2align 6\n' + kernel_desc(NAME, 256, 102)
    open(sys.argv[1], 'w').write(out)
```
